```python
import torch

def _softmax(x, axis=-1):
    return torch.softmax(x, dim=axis)
def _gelu(x):
    return torch.nn.functional.gelu(x, approximate="tanh")
def _silu(x):
    return torch.nn.functional.silu(x)
def _sigmoid(x):
    return torch.sigmoid(x)
def _layernorm(x, axis=-1, eps=1e-5):
    m = x.mean(dim=axis, keepdim=True)
    v = x.var(dim=axis, keepdim=True, unbiased=False)
    return (x - m) / torch.sqrt(v + eps)
def _scatter_add(tgt, idx, src, axis=0):
    return tgt.clone().index_add_(axis, idx, src)
def _segment_sum(src, seg, n):
    out = torch.zeros((n,) + src.shape[1:], dtype=src.dtype)
    return out.index_add_(0, seg, src)
def _pad(x, pw):
    flat = tuple(v for pair in reversed(pw) for v in pair)
    return torch.nn.functional.pad(x, flat)

kernel_name = 'gated_mix__linear_attn_block__compressed_kv_cla__prompt'

def setup_inputs():

    _w = (lambda a: (lambda t: t.to(torch.bfloat16) if t.is_floating_point() else t)(torch.as_tensor(a)))
    def _A_setup():
        B, S, D = 1, 2048, 512
        return {
            "x": _w((lambda *s: torch.randn(*s, dtype=torch.bfloat16) * 0.05)(B, S, D)),
            "wqkv": _w((lambda *s: torch.randn(*s, dtype=torch.bfloat16) * 0.8)(D, 3 * D)),
            "wo": _w((lambda *s: torch.randn(*s, dtype=torch.bfloat16) * 0.4)(D, D)),
        }
    _A_in = _A_setup()

    def _B_setup():
        B, H, Sq, Sk, D, M = 1, 32, 2048, 2048, 128, 512
        Dc = 4 * D
        return {
            "x": _w((lambda *s: torch.randn(*s, dtype=torch.bfloat16) * 0.05)(B, Sq, M)),
            "c_kv": _w((lambda *s: torch.randn(*s, dtype=torch.bfloat16) * 0.8)(B, Sk, Dc)),
            "w_q": _w((lambda *s: torch.randn(*s, dtype=torch.bfloat16) * 6.4)(M, H, D) * (M ** -0.5)),
            "w_uk": _w((lambda *s: torch.randn(*s, dtype=torch.bfloat16) * 6.4)(Dc, H, D) * (Dc ** -0.5)),
            "w_uv": _w((lambda *s: torch.randn(*s, dtype=torch.bfloat16) * 0.8)(Dc, H, D) * (Dc ** -0.5)),
            "w_o": _w((lambda *s: torch.randn(*s, dtype=torch.bfloat16) * 0.8)(H, D, M) * ((H * D) ** -0.5)),
        }
    _B_in = _B_setup()

    return {
        "A_x": _A_in["x"],
        "A_wqkv": _A_in["wqkv"],
        "A_wo": _A_in["wo"],
        "B_x": _B_in["x"],
        "B_c_kv": _B_in["c_kv"],
        "B_w_q": _B_in["w_q"],
        "B_w_uk": _B_in["w_uk"],
        "B_w_uv": _B_in["w_uv"],
        "B_w_o": _B_in["w_o"],
        "gate_w": _w((lambda *s: torch.randn(*s, dtype=torch.bfloat16) * 0.05)(512) * 16.0),
    }

def reference(A_x, A_wqkv, A_wo, B_x, B_c_kv, B_w_q, B_w_uk, B_w_uv, B_w_o, gate_w):
    def _A_ref(x, wqkv, wo):
        B, S, D = x.shape
        H = 32; Dh = D // H
        qkv = (lambda x, *d: x.permute(*d))((x @ wqkv).reshape(B, S, 3, H, Dh), 2, 0, 3, 1, 4)
        q, k, v = qkv[0], qkv[1], qkv[2]
        phi = lambda t: torch.where(t > 0, t + 1, torch.exp(t)) + 1e-6
        pq, pk = phi(q), phi(k)
        kv = torch.einsum("bhsd,bhse->bhde", pk, v)
        z = torch.einsum("bhsd->bhd", pk)
        num = torch.einsum("bhqd,bhde->bhqe", pq, kv)
        den = torch.einsum("bhqd,bhd->bhq", pq, z)[..., None] + 1e-6
        o = num / den
        return (lambda x, *d: x.permute(*d))(o, 0, 2, 1, 3).reshape(B, S, D) @ wo

    def _B_ref(x, c_kv, w_q, w_uk, w_uv, w_o):
        B, Sq, M = x.shape[0], x.shape[1], x.shape[2]
        Sk = c_kv.shape[1]
        H, D = w_q.shape[1], w_q.shape[2]
        q = torch.einsum("bqm,mhd->bhqd", x, w_q)
        k = torch.einsum("bkc,chd->bhkd", c_kv, w_uk)
        v = torch.einsum("bkc,chd->bhkd", c_kv, w_uv)
        scores = torch.einsum("bhqd,bhkd->bhqk", q, k) * (D ** -0.5)
        off = Sk - Sq
        qi = torch.arange(Sq)[:, None]
        kj = torch.arange(Sk)[None, :]
        cmask = kj <= (qi + off)
        scores = torch.where(cmask[None, None], scores, -1e9)
        p = _softmax(scores, axis=-1)
        ctx = torch.einsum("bhqk,bhkd->bhqd", p, v)
        return torch.einsum("bhqd,hdm->bqm", ctx, w_o)

    x = A_x
    g = _sigmoid((x * gate_w).sum(-1, keepdims=True))
    a = _A_ref(x, A_wqkv, A_wo)
    b = _B_ref(x, B_c_kv, B_w_q, B_w_uk, B_w_uv, B_w_o)
    return g * a + (1 - g) * b
```

```python
import re

REG_RE = re.compile(r'^(v|a|s)(\d+)$|^(v|a|s)\[(\d+):(\d+)\]$')

def regs_of(op):
    op = op.strip()
    neg = op.lstrip('-')
    if neg.startswith('abs(') and neg.endswith(')'): neg = neg[4:-1]
    if neg.startswith('|') and neg.endswith('|'): neg = neg[1:-1]
    m = REG_RE.match(neg)
    if m:
        if m.group(1): return [(m.group(1), int(m.group(2)))]
        return [(m.group(3), i) for i in range(int(m.group(4)), int(m.group(5)) + 1)]
    if neg == 'vcc': return [('s', 106), ('s', 107)]
    if neg == 'vcc_lo': return [('s', 106)]
    if neg == 'vcc_hi': return [('s', 107)]
    if neg == 'exec': return [('s', 126), ('s', 127)]
    if neg == 'm0': return [('s', 124)]
    return []

TRANS = ('v_exp_f32', 'v_log_f32', 'v_rcp_f32', 'v_rsq_f32', 'v_sqrt_f32', 'v_sin_f32', 'v_cos_f32', 'v_rcp_iflag_f32')

class Ins:
    __slots__ = ('text', 'op', 'kind', 'rd', 'wr', 'srcC', 'srcAB', 'passes', 'dpp', 'label', 'target', 'nop', 'wide_data',
                 'vm', 'lgkm', 'wait_vm', 'wait_lgkm', 'pre_nop', 'pre_vm', 'pre_lgkm', 'uncond', 'sgpr_const', 'also')
    def __init__(self, text):
        self.text = text
        t = text.split(';')[0].strip()
        self.also = []
        if '; also ' in text:
            for o in text.split('; also ')[1].split(','): self.also += regs_of(o)
        self.op = ''; self.kind = 'other'; self.rd = []; self.wr = []; self.srcC = []; self.srcAB = []
        self.passes = 0; self.dpp = False; self.label = None; self.target = None; self.nop = 0
        self.wide_data = []; self.vm = False; self.lgkm = False; self.wait_vm = None; self.wait_lgkm = None
        self.pre_nop = 0; self.pre_vm = None; self.pre_lgkm = None; self.uncond = False
        if not t: self.kind = 'empty'; return
        if t.endswith(':'): self.kind = 'label'; self.label = t[:-1]; return
        if t.startswith('.'): self.kind = 'directive'; return
        parts = t.split(None, 1)
        op = parts[0]; self.op = op
        rest = parts[1] if len(parts) > 1 else ''
        rest_ = re.sub(r'\s+op_sel(_hi)?:\[[01,]+\]', '', rest)
        ops = [o.strip() for o in rest_.split(',')] if rest_ else []
        mods = []
        if ops:
            last = ops[-1].split()
            if last:
                ops[-1] = last[0]; mods = last[1:]
        R = regs_of
        if op.startswith('v_mfma'):
            self.kind = 'mfma'
            self.wr = R(ops[0]); self.srcAB = R(ops[1]) + R(ops[2]); self.srcC = R(ops[3]); self.rd = self.srcAB + self.srcC
            self.passes = 8 if '32x32' in op else 4
        elif op.startswith('v_'):
            self.kind = 'valu'
            base = op.replace('_e32', '').replace('_e64', '').replace('_dpp', '')
            self.dpp = op.endswith('_dpp') or any(m.startswith(('row_', 'quad_perm', 'wave_')) for m in mods)
            if base.startswith('v_permlane') and 'swap' in base:
                self.kind = 'permlane'; self.wr = R(ops[0]) + R(ops[1]); self.rd = list(self.wr)
            elif base in ('v_add_co_u32', 'v_sub_co_u32', 'v_subrev_co_u32', 'v_addc_co_u32', 'v_subb_co_u32', 'v_div_scale_f32', 'v_mad_u64_u32'):
                self.wr = R(ops[0]) + R(ops[1]); self.rd = sum((R(o) for o in ops[2:]), [])
            else:
                self.wr = R(ops[0]); self.rd = sum((R(o) for o in ops[1:]), [])
                if base in ('v_fmac_f32', 'v_mac_f32', 'v_dot2c_f32_bf16', 'v_pk_fmac_f16') or self.dpp or base == 'v_writelane_b32': self.rd += R(ops[0])
                if base in ('v_readfirstlane_b32', 'v_readlane_b32'): self.kind = 'readlane'
                if base in TRANS: self.kind = 'trans'
                if base == 'v_nop': self.wr = []; self.rd = []
        elif op.startswith('ds_'):
            self.kind = 'ds'; self.lgkm = True
            if op.startswith(('ds_read', 'ds_bpermute', 'ds_permute', 'ds_swizzle')):
                self.wr = R(ops[0]); self.rd = sum((R(o) for o in ops[1:]), [])
            else:
                self.rd = sum((R(o) for o in ops), [])
        elif op.startswith('buffer_'):
            self.kind = 'vmem'; self.vm = True
            if op.startswith('buffer_load') and 'lds' in mods:
                self.rd = sum((R(o) for o in ops), []) + [('s', 124)]; self.kind = 'dma'
            elif op.startswith('buffer_load'):
                self.wr = R(ops[0]); self.rd = sum((R(o) for o in ops[1:]), [])
            elif op.startswith(('buffer_inv', 'buffer_wbl2')):
                pass
            else:
                self.rd = sum((R(o) for o in ops), [])
                if 'sc0' in mods and 'atomic' in op: self.wr = R(ops[0])
                if op.endswith(('x3', 'x4')): self.wide_data = R(ops[0])
        elif op.startswith('global_'):
            self.kind = 'vmem'; self.vm = True
            if op.startswith('global_load_lds'):
                self.rd = sum((R(o) for o in ops), []) + [('s', 124)]; self.kind = 'dma'
            elif op.startswith('global_load'):
                self.wr = R(ops[0]); self.rd = sum((R(o) for o in ops[1:]), [])
            else:
                self.rd = sum((R(o) for o in ops), [])
                if op.endswith(('x3', 'x4')): self.wide_data = R(ops[1])
        elif op == 's_nop':
            self.kind = 'nop'; self.nop = int(ops[0], 0)
        elif op == 's_waitcnt':
            self.kind = 'waitcnt'
            m = re.search(r'vmcnt\((\d+)\)', rest); self.wait_vm = int(m.group(1)) if m else None
            m = re.search(r'lgkmcnt\((\d+)\)', rest); self.wait_lgkm = int(m.group(1)) if m else None
        elif op.startswith('s_cbranch') or op == 's_branch':
            self.kind = 'branch'; self.target = ops[0]; self.uncond = op == 's_branch'
        elif op == 's_endpgm':
            self.kind = 'end'
        elif op.startswith(('s_load', 's_buffer_load', 's_memtime', 's_memrealtime')):
            self.kind = 'smem'; self.lgkm = True
            self.wr = R(ops[0]); self.rd = sum((R(o) for o in ops[1:]), [])
        elif op.startswith('s_'):
            self.kind = 'salu'
            if op.startswith(('s_cmp', 's_barrier', 's_setprio', 's_sleep', 's_bitcmp', 's_setreg')):
                self.rd = sum((R(o) for o in ops), [])
            else:
                self.wr = R(ops[0]) if ops else []; self.rd = sum((R(o) for o in ops[1:]), [])
                if 'saveexec' in op: self.wr = self.wr + [('s', 126), ('s', 127)]
        else:
            raise ValueError('unknown instruction: ' + text)

    def is_real(self):
        return self.kind not in ('empty', 'label', 'directive')
    def is_valu(self):
        return self.kind in ('valu', 'trans', 'permlane', 'readlane')

MAXAGE = 24

class State:
    def __init__(self):
        self.haz = {}; self.vm = {}; self.lg = {}; self.smem = False
    def copy(self):
        s = State(); s.haz = dict(self.haz); s.vm = dict(self.vm); s.lg = dict(self.lg); s.smem = self.smem; return s
    def merge(self, o):
        ch = False
        for mine, other in ((self.haz, o.haz), (self.vm, o.vm), (self.lg, o.lg)):
            for k, v in other.items():
                if k not in mine or v < mine[k]:
                    mine[k] = v; ch = True
        if o.smem and not self.smem: self.smem = True; ch = True
        return ch
    def age(self, n):
        self.haz = {k: v + n for k, v in self.haz.items() if v + n < MAXAGE}

def need(st, tag, regs, dist):
    m = 0
    for r in regs:
        a = st.haz.get((tag, r))
        if a is not None and a < dist: m = max(m, dist - a)
    return m

def step(ins, st):
    ch = False
    if not ins.is_real(): return ch
    touched = ins.rd + ins.wr + ins.also
    vm_need = None; lg_need = None
    for r in touched:
        if r in st.vm:
            if ins.vm and r in ins.wr and r not in ins.rd: continue
            v = st.vm[r]; vm_need = v if vm_need is None else min(vm_need, v)
        if r in st.lg:
            if ins.kind == 'ds' and r in ins.wr and r not in ins.rd and not st.smem: continue
            v = 0 if st.smem else st.lg[r]; lg_need = v if lg_need is None else min(lg_need, v)
    if vm_need is not None:
        vm_need = min(vm_need, 63)
        if ins.pre_vm is None or vm_need < ins.pre_vm: ins.pre_vm = vm_need; ch = True
    if lg_need is not None:
        lg_need = min(lg_need, 15)
        if ins.pre_lgkm is None or lg_need < ins.pre_lgkm: ins.pre_lgkm = lg_need; ch = True
    extra = 0
    if ins.pre_vm is not None or ins.pre_lgkm is not None:
        extra = 1
        if ins.pre_vm is not None: st.vm = {k: v for k, v in st.vm.items() if v < ins.pre_vm}
        if ins.pre_lgkm is not None:
            st.lg = {k: v for k, v in st.lg.items() if v < ins.pre_lgkm and not (ins.pre_lgkm == 0)}
            if ins.pre_lgkm == 0: st.smem = False
        st.age(1)
    n = 0
    vrd = [r for r in ins.rd if r[0] != 's']; vwr = [r for r in ins.wr if r[0] != 's']
    srd = [r for r in ins.rd if r[0] == 's']
    if ins.kind == 'mfma':
        n = max(n, need(st, 'valu_w', ins.rd, 2))
        for p, d in ((4, 8), (8, 12)):
            n = max(n, need(st, 'mfma_w%d' % p, ins.srcAB, d))
        for p, d in ((4, 6), (8, 10)):
            for r in ins.srcC:
                a = st.haz.get(('mfma_w%d' % p, r))
                if a is not None and a < d:
                    exact = st.haz.get(('mfma_D', (ins.srcC[0], len(ins.srcC), p)))
                    if not (exact is not None and exact <= a and p == ins.passes):
                        n = max(n, d - a)
        n = max(n, need(st, 'exec_w', [('s', 126)], 4))
    else:
        for p, d in ((4, 8), (8, 12)):
            if ins.is_valu() or ins.kind in ('vmem', 'ds', 'dma'):
                n = max(n, need(st, 'mfma_w%d' % p, vrd + vwr, d))
        if ins.is_valu():
            for p, d in ((4, 3), (8, 7)):
                n = max(n, need(st, 'mfma_c%d' % p, vwr, d))
            if ins.kind != 'trans': n = max(n, need(st, 'trans_w', vrd + vwr, 1))
            if ins.kind == 'readlane': n = max(n, need(st, 'valu_w', vrd, 1)); n = max(n, need(st, 'valu_sw', srd, 4))
            if ins.kind == 'permlane' or ins.dpp: n = max(n, need(st, 'valu_w', vrd, 2))
            n = max(n, need(st, 'valu_sw', srd, 2))
            if ins.op.startswith('v_div_fmas'): n = max(n, need(st, 'valu_sw', [('s', 106)], 4))
            n = max(n, need(st, 'wide', vwr, 2))
        elif vwr:
            n = max(n, need(st, 'wide', vwr, 1))
        if ins.kind in ('vmem', 'dma'):
            n = max(n, need(st, 'valu_sw', srd, 5))
            n = max(n, need(st, 'trans_w', vrd, 1))
        if ins.kind in ('ds',):
            n = max(n, need(st, 'trans_w', vrd, 1))
        if ins.kind == 'dma': n = max(n, need(st, 'm0_w', [('s', 124)], 1))
    if n > ins.pre_nop: ins.pre_nop = n; ch = True
    st.age(ins.pre_nop)
    if ins.kind == 'waitcnt':
        if ins.wait_vm is not None: st.vm = {k: v for k, v in st.vm.items() if v < ins.wait_vm}
        if ins.wait_lgkm is not None:
            if ins.wait_lgkm == 0: st.lg = {}; st.smem = False
            elif not st.smem: st.lg = {k: v for k, v in st.lg.items() if v < ins.wait_lgkm}
    st.age(1 + (ins.nop if ins.kind == 'nop' else 0))
    if ins.vm:
        st.vm = {k: v + 1 for k, v in st.vm.items()}
        for r in ins.wr: st.vm[r] = 0
    if ins.lgkm:
        st.lg = {k: v + 1 for k, v in st.lg.items()}
        for r in ins.wr: st.lg[r] = 0
        if ins.kind == 'smem': st.smem = True
    if ins.kind == 'mfma':
        for r in ins.wr: st.haz[('mfma_w%d' % ins.passes, r)] = 0
        st.haz[('mfma_D', (ins.wr[0], len(ins.wr), ins.passes))] = 0
        for r in ins.srcC: st.haz[('mfma_c%d' % ins.passes, r)] = 0
    elif ins.is_valu():
        for r in ins.wr:
            if r[0] == 's':
                st.haz[('valu_sw', r)] = 0
                if r == ('s', 126): st.haz[('exec_w', r)] = 0
            else:
                st.haz[('valu_w', r)] = 0
                if ins.kind == 'trans': st.haz[('trans_w', r)] = 0
    elif ins.kind == 'salu':
        if ('s', 124) in ins.wr: st.haz[('m0_w', ('s', 124))] = 0
    for r in ins.wide_data: st.haz[('wide', r)] = 0
    return ch

def fixup(lines, entry_labels):
    ins = [Ins(l) for l in lines]
    lab = {x.label: i for i, x in enumerate(ins) if x.kind == 'label'}
    changed = True
    rounds = 0
    while changed:
        rounds += 1
        assert rounds < 50
        changed = False
        instate = {}
        work = []
        for e in entry_labels:
            instate[lab[e]] = State(); work.append(lab[e])
        while work:
            i = work.pop()
            st = instate[i].copy()
            first = True
            while i < len(ins):
                x = ins[i]
                if x.kind == 'label' and not first:
                    if i not in instate: instate[i] = st.copy(); work.append(i)
                    elif instate[i].merge(st): work.append(i)
                    break
                first = False
                if step(x, st): changed = True
                if x.kind == 'branch':
                    t = lab[x.target]
                    if t not in instate: instate[t] = st.copy(); work.append(t)
                    elif instate[t].merge(st): work.append(t)
                    if x.uncond: break
                if x.kind == 'end': break
                i += 1
    out = []
    for x in ins:
        if x.pre_vm is not None or x.pre_lgkm is not None:
            w = 's_waitcnt'
            if x.pre_vm is not None: w += ' vmcnt(%d)' % x.pre_vm
            if x.pre_lgkm is not None: w += ' lgkmcnt(%d)' % x.pre_lgkm
            out.append(w)
        n = x.pre_nop
        while n > 0:
            k = min(n, 16); out.append('s_nop %d' % (k - 1)); n -= k
        out.append(x.text)
    return out

class Asm:
    def __init__(self):
        self.lines = []
    def e(self, s):
        for l in s.split('\n'):
            l = l.strip()
            if l: self.lines.append(l)
    def label(self, n): self.lines.append(n + ':')

def vr(b, n=1):
    return 'v%d' % b if n == 1 else 'v[%d:%d]' % (b, b + n - 1)
def sr(b, n=1):
    return 's%d' % b if n == 1 else 's[%d:%d]' % (b, b + n - 1)

def interleave(main, fillers):
    by = {}
    for p, s in fillers: by.setdefault(min(p, len(main) - 1), []).append(s)
    out = list(by.get(-1, []))
    for i, m in enumerate(main):
        out.append(m); out.extend(by.get(i, []))
    return out
```

```python
from asmcore import *
MB = 1 << 20
WS_QF = 0
WS_KF = 16 * MB
WS_VF = 32 * MB
WS_CTX = 48 * MB
WS_PQ = 68 * MB
WS_KVP = 70 * MB
WS_G = 71 * MB
WS_SIZE = 256 * MB
KA_X, KA_WQKV, KA_WO, KA_BX, KA_CKV, KA_WQ, KA_WUK, KA_WUV, KA_WO4, KA_GATE, KA_OUT, KA_DBG, KA_WS = [8 * i for i in range(13)]

def kdesc(name, vgpr=256, sgpr=96, accum=None):
    accum = accum or ((vgpr + 3) // 4 * 4 if vgpr <= 256 else 256)
    return f""".section .rodata,"a"
.p2align 6
.amdhsa_kernel {name}
  .amdhsa_next_free_vgpr {vgpr}
  .amdhsa_next_free_sgpr {sgpr}
  .amdhsa_accum_offset {accum}
  .amdhsa_group_segment_fixed_size 0
  .amdhsa_kernarg_size 104
  .amdhsa_user_sgpr_count 2
  .amdhsa_user_sgpr_kernarg_segment_ptr 1
  .amdhsa_system_sgpr_workgroup_id_x 1
.end_amdhsa_kernel
.text"""

def khead(a, name):
    a.e(f".globl {name}\n.p2align 8\n.type {name},@function")
    a.label(name)

def srd(a, d, ptr, nbytes):
    a.e(f"s_mov_b32 s{d}, s{ptr}\ns_and_b32 s{d+1}, s{ptr+1}, 0xffff\ns_mov_b32 s{d+2}, {nbytes}\ns_mov_b32 s{d+3}, 0x20000")

class VmTrack:
    def __init__(self): self.tags = []
    def issue(self, tag): self.tags.append(tag)
    def n_after(self, pred):
        last = -1
        for i, t in enumerate(self.tags):
            if pred(t): last = i
        return min(63, len(self.tags) - 1 - last)

WS_TS = 200 * MB
def ts_start(a, sreg=90):
    a.e(f"s_memrealtime s[{sreg}:{sreg+1}]")
def ts_mid(a, sreg=92):
    a.e(f"s_memrealtime s[{sreg}:{sreg+1}]\ns_waitcnt lgkmcnt(0)")
def ts_end(a, kidx, ws_srd, wave_sreg, sreg=90, vtmp=240):
    a.e(f"s_waitcnt vmcnt(0)\ns_memrealtime s[{sreg+4}:{sreg+5}]\ns_waitcnt lgkmcnt(0)")
    a.e(f"s_getreg_b32 s{sreg+1}, hwreg(HW_REG_XCC_ID)")
    a.e(f"v_mov_b32 v{vtmp}, s{sreg}\nv_mov_b32 v{vtmp+1}, s{sreg+2}\nv_mov_b32 v{vtmp+2}, s{sreg+4}\nv_mov_b32 v{vtmp+3}, s{sreg+1}")
    a.e(f"s_lshl_b32 s{sreg}, s2, 3\ns_add_u32 s{sreg}, s{sreg}, s{wave_sreg}\ns_lshl_b32 s{sreg}, s{sreg}, 4\ns_add_u32 s{sreg}, s{sreg}, {WS_TS + kidx*65536}")
    a.e(f"v_mov_b32 v{vtmp+4}, 0\nbuffer_store_dwordx4 v[{vtmp}:{vtmp+3}], v{vtmp+4}, s[{ws_srd}:{ws_srd+3}], s{sreg} offen")
```

```python
from common import *
import math
LOG2E = 1.4426950408889634
def f32hex(x):
    import struct
    return "0x%08x" % struct.unpack("<I", struct.pack("<f", x))[0]

V_LANE16 = 1
V_A = 2
V_W = 6
V_P = 8
V_RA = 10
V_RW = 14
V_RP = 22
V_T = 24
AF = 32
WF = 64
RING = 6
TMP = 88
ACC1 = 96
ACC2 = 160
STORE_MOD = ""

def gen_k1(name="k1_kernel", ts=False, store_mod=""):
    a = Asm(); e = a.e
    khead(a, name)
    if ts: ts_start(a)
    e(f"s_cmp_ge_u32 s2, 256\ns_cbranch_scc1 L_{name}_end")
    e(f"s_load_dwordx4 s[4:7], s[0:1], {KA_X}")
    e(f"s_load_dwordx4 s[8:11], s[0:1], {KA_CKV}")
    e(f"s_load_dwordx4 s[12:15], s[0:1], {KA_WUK}")
    e(f"s_load_dwordx2 s[16:17], s[0:1], {KA_GATE}\ns_load_dwordx2 s[18:19], s[0:1], {KA_WS}")
    e("v_lshrrev_b32 v1, 6, v0\nv_and_b32 v0, 63, v0\nv_readfirstlane_b32 s3, v1")
    e("s_and_b32 s20, s2, 31\ns_lshr_b32 s21, s2, 5")
    e("s_and_b32 s22, s3, 3\ns_lshr_b32 s23, s3, 2")
    e(f"v_lshlrev_b32 v{V_LANE16}, 4, v0")
    T = V_T
    e(f"v_lshrrev_b32 v{T}, 3, v0\nv_lshlrev_b32 v{T}, 10, v{T}\ns_lshl_b32 s24, s3, 15\nv_add_u32 v{T}, s24, v{T}")
    e(f"v_lshrrev_b32 v{T+1}, 4, v0\nv_and_b32 v{T+2}, 7, v0\nv_xor_b32 v{T+1}, v{T+1}, v{T+2}\nv_lshlrev_b32 v{T+1}, 4, v{T+1}")
    e(f"v_add_u32 v{V_A}, v{T}, v{T+1}\nv_xor_b32 v{V_A+1}, 64, v{V_A}\nv_add_u32 v{V_A+1}, 7168, v{V_A+1}")
    e(f"v_add_u32 v{V_A+2}, 14336, v{V_A}\nv_add_u32 v{V_A+3}, 14336, v{V_A+1}")
    e(f"v_lshrrev_b32 v{T}, 4, v0\ns_and_b32 s24, s22, 1\ns_lshl_b32 s24, s24, 2\nv_or_b32 v{T+1}, s24, v{T}\nv_lshlrev_b32 v{T+1}, 1, v{T+1}")
    e(f"v_and_b32 v{T+2}, 15, v0\nv_xor_b32 v{T+1}, v{T+1}, v{T+2}\nv_lshlrev_b32 v{T+1}, 4, v{T+1}")
    e(f"v_lshlrev_b32 v{T}, 13, v{T}\ns_lshl_b32 s24, s22, 16\nv_add3_u32 v{V_W}, v{T}, v{T+1}, s24\nv_add_u32 v{V_W+1}, {4*8192-1024}, v{V_W}")
    e(f"v_lshrrev_b32 v{T}, 1, v0\nv_lshrrev_b32 v{T+1}, 2, v0\nv_and_b32 v{T+1}, 4, v{T+1}\nv_xor_b32 v{T}, v{T}, v{T+1}\nv_mul_u32_u24 v{T}, 3072, v{T}")
    e(f"v_and_b32 v{T+1}, 1, v0\nv_lshlrev_b32 v{T+1}, 4, v{T+1}\ns_lshl_b32 s24, s22, 10\nv_add3_u32 v{V_P}, v{T}, v{T+1}, s24")
    e(f"v_and_b32 v{T}, 15, v0\nv_lshrrev_b32 v{T+1}, 1, v{T}\nv_lshrrev_b32 v{T+2}, 4, v0\nv_xor_b32 v{T+1}, v{T+1}, v{T+2}\nv_lshlrev_b32 v{T+1}, 4, v{T+1}")
    e(f"v_lshlrev_b32 v{T}, 7, v{T}\ns_lshl_b32 s24, s22, 13\ns_add_u32 s24, s24, 65536\nv_add3_u32 v{V_RA}, v{T}, v{T+1}, s24")
    e(f"v_xor_b32 v{V_RA+1}, 64, v{V_RA}\nv_add_u32 v{V_RA+2}, 0x10000, v{V_RA}\nv_add_u32 v{V_RA+3}, 0x10000, v{V_RA+1}")
    e(f"v_lshrrev_b32 v{T}, 4, v0\nv_bfe_u32 v{T+1}, v0, 2, 2\nv_lshl_add_u32 v{T+2}, v{T}, 3, v{T+1}\nv_lshlrev_b32 v{T+2}, 8, v{T+2}")
    e(f"v_and_b32 v{T+3}, 1, v{T}\nv_lshl_add_u32 v{T+3}, v{T+3}, 2, v{T+1}\nv_lshlrev_b32 v{T+3}, 5, v{T+3}")
    e(f"v_and_b32 v{T+4}, 3, v0\nv_lshlrev_b32 v{T+4}, 3, v{T+4}\nv_add3_u32 v{V_RW}, v{T+2}, v{T+3}, v{T+4}")
    for n in range(1, 8): e(f"v_xor_b32 v{V_RW+n}, {32*n}, v{V_RW}")
    e(f"v_lshlrev_b32 v{T+2}, 8, v{T}\nv_add3_u32 v{V_RP}, v{T+2}, v{T+3}, v{T+4}\nv_xor_b32 v{V_RP+1}, 128, v{V_RP}")
    e("s_waitcnt lgkmcnt(0)")
    S_X, S_CKV, S_W1, S_W2, S_WS, S_GT = 28, 32, 36, 40, 44, 48
    srd(a, S_X, 4, 2048 * 1024); srd(a, S_CKV, 8, 2048 * 1024); srd(a, S_WS, 18, WS_SIZE); srd(a, S_GT, 16, 1024)
    e("s_cmp_eq_u32 s23, 0")
    e(f"s_cselect_b32 s{S_W1}, s12, s14\ns_cselect_b32 s{S_W1+1}, s13, s15\ns_and_b32 s{S_W1+1}, s{S_W1+1}, 0xffff\ns_mov_b32 s{S_W1+2}, {512*8192}\ns_mov_b32 s{S_W1+3}, 0x20000")
    e("s_cmp_eq_u32 s23, 0")
    e(f"s_cselect_b32 s{S_W2}, s10, s6\ns_cselect_b32 s{S_W2+1}, s11, s7\ns_cselect_b32 s{S_W2+2}, {512*8192}, s{S_W1+3}\ns_and_b32 s{S_W2+1}, s{S_W2+1}, 0xffff\ns_mov_b32 s{S_W2+3}, 0x20000")
    e(f"s_cmp_eq_u32 s23, 0\ns_cselect_b32 s{S_W2+2}, s{S_W2+2}, {512*3072}")
    sA, sW, sP, sMA, sMW, sST = 52, 53, 54, 55, 56, 60
    e(f"s_lshl_b32 s{sA}, s21, 18")
    e(f"s_lshl_b32 s{sW}, s20, 8\ns_lshl_b32 s{sP}, s20, 5")
    e(f"s_lshl_b32 s{sMA}, s3, 12\ns_add_u32 s{sMA}, s{sMA}, 65536")
    e(f"s_lshl_b32 s{sMW}, s3, 11")
    e(f"s_lshl_b32 s57, s20, 19\ns_lshl_b32 s58, s21, 2\ns_add_u32 s58, s58, s22\ns_lshl_b32 s58, s58, 14\ns_add_u32 s57, s57, s58")
    e(f"s_lshl_b32 s58, s21, 8\ns_lshl_b32 s59, s20, 3\ns_add_u32 s58, s58, s59\ns_add_u32 s58, s58, s3\ns_lshl_b32 s59, s58, 10")
    e(f"s_cmp_eq_u32 s23, 0\ns_cbranch_scc0 L_{name}_ch1")
    for ch in range(2):
        if ch: a.label(f"L_{name}_ch1")
        gen_path(a, name, ch, dict(S_X=S_X, S_CKV=S_CKV, S_W1=S_W1, S_W2=S_W2, S_WS=S_WS, S_GT=S_GT, sA=sA, sW=sW, sP=sP, sMA=sMA, sMW=sMW, sST=sST), ts, store_mod)
    a.label(f"L_{name}_end")
    e("s_endpgm")
    lines = fixup(a.lines, [name])
    return "\n".join(lines) + "\n" + kdesc(name, 256, 96) + "\n"

def gen_path(a, name, ch, R, ts, store_mod):
    e = a.e
    vm = VmTrack()
    S_X, S_CKV, S_W1, S_W2, S_WS, S_GT = (R[k] for k in ("S_X", "S_CKV", "S_W1", "S_W2", "S_WS", "S_GT"))
    sA, sW, sP, sMA, sMW, sST = (R[k] for k in ("sA", "sW", "sP", "sMA", "sMW", "sST"))
    NH = 32
    def dmaW(u):
        if u >= NH: return []
        out = []
        slot = (u % 4) * 16384
        if u < 16 or ch == 0:
            rs = S_W1 if u < 16 else S_W2
            so = (u % 16) * 32 * 8192
            out.append(f"s_add_u32 m0, s{sMW}, {slot}\ns_add_u32 s64, s{sW}, {so}")
            for i in range(2):
                out.append((f"buffer_load_dwordx4 v{V_W+i}, s[{rs}:{rs+3}], s64 offen offset:{i*1024} lds", ('W', u)))
        else:
            so = (u % 16) * 32 * 3072
            out.append(f"s_add_u32 m0, s65, {slot}\ns_add_u32 s64, s{sP}, {so}")
            out.append((f"buffer_load_dwordx4 v{V_P}, s[{S_W2}:{S_W2+3}], s64 offen lds", ('W', u)))
        return out
    def dmaA(s, half):
        if s >= 16: return []
        rs = S_CKV if s < 8 else S_X
        out = [f"s_add_u32 m0, s{sMA}, {(s % 3) * 32768}\ns_add_u32 s66, s{sA}, {(s % 8) * 128}"]
        for i in (2 * half, 2 * half + 1):
            out.append((f"buffer_load_dwordx4 v{V_A+i}, s[{rs}:{rs+3}], s66 offen offset:{i*1024} lds", ('A', s)))
        return out
    def emit(x):
        if isinstance(x, tuple):
            e(x[0]); vm.issue(x[1])
        else: e(x)
    if ch: e("s_lshl_b32 s65, s22, 10\ns_add_u32 s65, s65, 8192")
    GX, GW = ACC2, ACC2 + 4
    for x in dmaW(0) + dmaA(0, 0) + dmaA(0, 1): emit(x)
    emit((f"buffer_load_dwordx4 {vr(GX,4)}, v{V_LANE16}, s[{S_X}:{S_X+3}], s59 offen", ('G', 0)))
    emit((f"buffer_load_dwordx4 {vr(GW,4)}, v{V_LANE16}, s[{S_GT}:{S_GT+3}], 0 offen", ('G', 0)))
    for x in dmaW(1) + dmaA(1, 0) + dmaW(2) + dmaA(1, 1): emit(x)
    base = WS_VF if ch else WS_KF
    for i in range(4): e(f"s_add_u32 s{sST+i}, s57, {base + i*4096}")
    t = TMP
    e(f"v_mov_b32 v{t}, 0")
    for j in range(4):
        e(f"v_lshlrev_b32 v{t+1}, 16, v{GX+j}\nv_lshlrev_b32 v{t+2}, 16, v{GW+j}\nv_fmac_f32 v{t}, v{t+1}, v{t+2}")
        e(f"v_and_b32 v{t+1}, 0xffff0000, v{GX+j}\nv_and_b32 v{t+2}, 0xffff0000, v{GW+j}\nv_fmac_f32 v{t}, v{t+1}, v{t+2}")
    for sh in ("row_shr:1", "row_shr:2", "row_shr:4", "row_shr:8"):
        e(f"v_add_f32_dpp v{t}, v{t}, v{t} {sh} row_mask:0xf bank_mask:0xf bound_ctrl:0")
    e(f"v_add_f32_dpp v{t}, v{t}, v{t} row_bcast:15 row_mask:0xa bank_mask:0xf")
    e(f"v_add_f32_dpp v{t}, v{t}, v{t} row_bcast:31 row_mask:0xc bank_mask:0xf")
    e(f"v_mul_f32 v{t}, {f32hex(-LOG2E)}, v{t}\nv_exp_f32 v{t}, v{t}\nv_add_f32 v{t}, 1.0, v{t}\nv_rcp_f32 v{t}, v{t}")
    e(f"v_readlane_b32 s67, v{t}, 63\ns_lshl_b32 s68, s58, 2\ns_add_u32 s68, s68, {WS_G}\nv_mov_b32 v{t+1}, s67\nv_mov_b32 v{t+2}, 0")
    emit((f"buffer_store_dword v{t+1}, v{t+2}, s[{S_WS}:{S_WS+3}], s68 offen", ('G', 1)))
    def acc1(mt, nt):
        if ch == 0: return ACC1 + (((nt // 2) * 4 + mt) * 2 + nt % 2) * 4
        return ACC1 + ((nt * 2 + mt // 2) * 2 + mt % 2) * 4
    if ch == 0:
        tiles2 = [('Q', 4), ('Q', 5), ('Q', 0), ('Q', 1), ('Q', 2), ('Q', 3)]
        def acc2(kind, idx, mt): return ACC2 + (((idx // 2) * 4 + mt) * 2 + idx % 2) * 4
    else:
        tiles2 = [('Q', 6), ('Q', 7), ('P', 0), ('P', 1), ('P', 2)]
        def acc2(kind, idx, mt):
            if kind == 'Q': return ACC2 + 64 + (mt * 2 + idx % 2) * 4
            return ACC2 + (idx * 4 + mt) * 4
    frags = []
    for u in range(NH):
        slot = (u % 4) * 16384
        ab = AF + (u % 2) * 16
        first = (u % 16 == 0)
        tl = [('W', n) for n in range(8)] if u < 16 else tiles2
        for kind, idx in tl:
            if kind == 'W':
                rd = (lambda d, idx=idx, slot=slot: [f"ds_read_b64_tr_b16 {vr(d+2*hf,2)}, v{V_RW+idx} offset:{slot+ch*8192+hf*1024}" for hf in range(2)])
                wfirst = (ch == 0)
                accf = (lambda mt, idx=idx: acc1(mt, idx))
            elif kind == 'Q':
                rd = (lambda d, idx=idx, slot=slot: [f"ds_read_b64_tr_b16 {vr(d+2*hf,2)}, v{V_RW+idx} offset:{slot+hf*1024}" for hf in range(2)])
                wfirst = True
                accf = (lambda mt, idx=idx: acc2('Q', idx, mt))
            else:
                rd = (lambda d, idx=idx, slot=slot: [f"ds_read_b64_tr_b16 {vr(d+2*hf,2)}, v{V_RP+hf} offset:{slot+8192+idx*1024}" for hf in range(2)])
                wfirst = (idx == 0)
                accf = (lambda mt, idx=idx: acc2('P', idx, mt))
            def mf(w, mt, accf=accf, wfirst=wfirst, ab=ab, first=first):
                d = vr(accf(mt), 4); A = vr(ab + mt * 4, 4); W = vr(w, 4)
                x, y = (W, A) if wfirst else (A, W)
                return f"v_mfma_f32_16x16x32_bf16 {d}, {x}, {y}, {'0' if first else d}"
            frags.append((u, rd, mf))
    def act_reads(u):
        s = u // 2; ks = u % 2; sl = s % 3
        ab = AF + (u % 2) * 16
        reg = V_RA + ks + (2 if sl == 2 else 0)
        off = 32768 if sl == 1 else 0
        return [f"ds_read_b128 {vr(ab+mt*4,4)}, v{reg} offset:{off+mt*2048}" for mt in range(4)]
    def barrier(u):
        n = vm.n_after(lambda tg: tg == ('W', u) or (tg == ('A', u // 2)))
        e(f"s_waitcnt vmcnt({n}) lgkmcnt(0)\ns_barrier")
    def after_barrier_dma(u):
        return dmaW(u + 3) + dmaA(u // 2 + 2, u % 2)
    def pack_list():
        return [f"v_cvt_pk_bf16_f32 v{ACC1+4*j+i}, v{ACC1+8*j+2*i}, v{ACC1+8*j+2*i+1}" for j in range(16) for i in range(4)]
    def store_kv(j):
        fi = ((j % 4) * 4 + j // 4) if ch == 0 else ((j % 2) * 8 + j // 2)
        return (f"buffer_store_dwordx4 {vr(ACC1+4*j,4)}, v{V_LANE16}, s[{S_WS}:{S_WS+3}], s{sST+fi//4} offen offset:{(fi%4)*1024} {store_mod}", ('S', j))
    barrier(0)
    if ts: ts_mark(a)
    pend = list(after_barrier_dma(0))
    for x in act_reads(0): e(x)
    NF = len(frags)
    D = RING - 1
    nread = 0
    for q in range(D):
        for x in frags[q][1](WF + (q % RING) * 4): e(x)
    nread = D
    published = 0
    packs = pack_list(); npacked = 0
    for q in range(NF):
        u, rd, mf = frags[q]
        w = WF + (q % RING) * 4
        nxt = q + D
        reads = []
        need_bar = False
        if nxt < NF:
            if frags[nxt][0] > published: need_bar = True
            reads = frags[nxt][1](WF + (nxt % RING) * 4)
        avail = 0
        if u == 15:
            nt = q - 15 * 8
            avail = (16 * ((nt - 1) // 2) if ch == 0 else 8 * (nt - 1)) if nt >= 1 else 0
            avail = max(avail, 0)
        elif u >= 16: avail = 64
        for mt in range(4):
            if u == 16 and q - 128 >= 2:
                while npacked < 64: e(packs[npacked]); npacked += 1
            e(mf(w, mt))
            if not need_bar and reads and mt < 2: e(reads[mt])
            if pend and (mt >= 2 or not reads): emit(pend.pop(0))
            k = 0
            while npacked < avail and k < 3: e(packs[npacked]); npacked += 1; k += 1
        if need_bar:
            while pend: emit(pend.pop(0))
            published += 1
            barrier(published)
            for x in reads: e(x)
            for x in act_reads(published): e(x)
            pend = list(after_barrier_dma(published))
            if published >= 17 and published - 17 < 16: pend.append(store_kv(published - 17))
    while pend: emit(pend.pop(0))
    emit(store_kv(15))
    if ts: ts_mid(a)
    for i in range(4): e(f"s_add_u32 s{sST+i}, s57, {WS_QF + i*4096}")
    e(f"s_mov_b32 s70, {f32hex(LOG2E / math.sqrt(128.0))}\ns_mov_b32 s71, s70")
    def q_store(src, mt, t):
        for i in range(4): e(f"v_pk_mul_f32 {vr(src+2*i,2)}, {vr(src+2*i,2)}, s[70:71]")
        for i in range(4): e(f"v_cvt_pk_bf16_f32 v{src+i}, v{src+2*i}, v{src+2*i+1}")
        e(f"buffer_store_dwordx4 {vr(src,4)}, v{V_LANE16}, s[{S_WS}:{S_WS+3}], s{sST+mt} offen offset:{t*1024} {store_mod}")
    if ch == 0:
        for t in range(3):
            for mt in range(4): q_store(acc2('Q', 2 * t, mt), mt, t)
        e("s_barrier")
    else:
        e(f"s_mov_b32 s72, {f32hex(LOG2E)}\ns_mov_b32 s73, {f32hex(1e-6)}")
        def phi(r0, n):
            tt = AF
            for i in range(n): e(f"v_min_f32 v{tt+i}, 0, v{r0+i}")
            for i in range(n): e(f"v_mul_f32 v{tt+i}, s72, v{tt+i}")
            for i in range(n): e(f"v_exp_f32 v{tt+i}, v{tt+i}")
            for i in range(n): e(f"v_max_f32 v{r0+i}, 0, v{r0+i}")
            for i in range(n): e(f"v_add_f32 v{r0+i}, s73, v{r0+i}")
            for i in range(n): e(f"v_add_f32 v{r0+i}, v{tt+i}, v{r0+i}")
        qa, ka, va = acc2('P', 0, 0), acc2('P', 1, 0), acc2('P', 2, 0)
        phi(ka, 16)
        for i in range(8): e(f"v_cvt_pk_bf16_f32 v{ka+i}, v{ka+2*i}, v{ka+2*i+1}")
        for i in range(8): e(f"v_cvt_pk_bf16_f32 v{va+i}, v{va+2*i}, v{va+2*i+1}")
        ones = WF; kv = WF + 4; z = WF + 8
        for i in range(4): e(f"v_mov_b32 v{ones+i}, 0x3f803f80")
        for uu in range(2):
            e(f"v_mfma_f32_16x16x32_bf16 {vr(kv,4)}, {vr(ka+4*uu,4)}, {vr(va+4*uu,4)}, {vr(kv,4) if uu else '0'}")
            e(f"v_mfma_f32_16x16x32_bf16 {vr(z,4)}, {vr(ka+4*uu,4)}, {vr(ones,4)}, {vr(z,4) if uu else '0'}")
        e(f"s_lshl_b32 s74, s22, 11\nv_add_u32 v{TMP}, s74, v{V_LANE16}")
        phi(qa, 16)
        e(f"ds_write_b128 v{TMP}, {vr(kv,4)}\nds_write_b128 v{TMP}, {vr(z,4)} offset:1024")
        for i in range(8): e(f"v_cvt_pk_bf16_f32 v{qa+i}, v{qa+2*i}, v{qa+2*i+1}")
        e(f"s_lshl_b32 s74, s20, 16\ns_lshl_b32 s75, s21, 13\ns_add_u32 s74, s74, s75\ns_lshl_b32 s75, s22, 11\ns_add_u32 s74, s74, s75\ns_add_u32 s74, s74, {WS_PQ}")
        for uu in range(2):
            e(f"buffer_store_dwordx4 {vr(qa+4*uu,4)}, v{V_LANE16}, s[{S_WS}:{S_WS+3}], s74 offen offset:{uu*1024} {store_mod}")
        e("s_waitcnt lgkmcnt(0)\ns_barrier")
        for mt in range(4): q_store(acc2('Q', 6, mt), mt, 3)
        e(f"s_cmp_eq_u32 s22, 0\ns_cbranch_scc0 L_{name}_ch1_done")
        for r in range(8): e(f"ds_read_b128 {vr(AF+4*r,4)}, v{V_LANE16} offset:{r*1024}")
        for r in range(1, 4):
            for i in range(8): e(f"v_add_f32 v{AF+i}, v{AF+i}, v{AF+8*r+i}")
        e(f"s_lshl_b32 s74, s20, 14\ns_lshl_b32 s75, s21, 11\ns_add_u32 s74, s74, s75\ns_add_u32 s74, s74, {WS_KVP}")
        for i in range(2):
            e(f"buffer_store_dwordx4 {vr(AF+4*i,4)}, v{V_LANE16}, s[{S_WS}:{S_WS+3}], s74 offen offset:{i*1024} {store_mod}")
        a.label(f"L_{name}_ch1_done")
    if ts: ts_end(a, 0, S_WS, 3, vtmp=AF)
    e("s_endpgm")
```

```python
from common import *
from k1 import f32hex
V_L16 = 1; V_RD = 2; V_L = 4
V_G = 6
V_T = 8
QR = 16; CB = 48; OR = 64; SR = 128; PR = 160; RG = 176; NRING = 16
V_NINF = 240
S_WS, S_DMA = 28, 32
sH, sP, sW4, sGRP, sT, sJL, sREM, sNB = 20, 21, 22, 23, 24, 25, 26, 27
sK, sV, sRD, sWOFF, sFLAG = 36, 37, 38, 39, 48
sMASK = 40
NSLOT = 5
SLOT = 32768

def Qf(qt, t): return QR + (qt * 4 + t) * 4
def Cb(kt, qt): return CB + (kt * 2 + qt) * 4
def Ob(dt, qt): return OR + (((dt // 2) * 2 + qt) * 2 + dt % 2) * 4
def Sb(b, kt, qt): return SR + b * 16 + (qt * 2 + kt) * 4
def Pb(b, qt): return PR + b * 8 + qt * 4
def ring(i): return RG + (i % NRING) * 4
MF = "v_mfma_f32_16x16x32_bf16"

def qk_mfmas(b, fr):
    out = []
    for kt in range(2):
        for ds in range(4):
            for qt in range(2):
                d = vr(Sb(b, kt, qt), 4)
                c = vr(Cb(kt, qt), 4) if ds == 0 else d
                out.append((kt * 4 + ds, f"{MF} {d}, {vr(fr(kt*4+ds),4)}, {vr(Qf(qt,ds),4)}, {c}"))
    return out
def pv_mfmas(b, fr):
    out = []
    for dt in range(8):
        for qt in range(2):
            d = vr(Ob(dt, qt), 4)
            out.append((dt, f"{MF} {d}, {vr(fr(dt),4)}, {vr(Pb(b,qt),4)}, {d}"))
    return out
def sm_ops(b):
    base = SR + b * 16
    exps = [f"v_exp_f32 v{base+e}, v{base+e}" for e in range(16)]
    adds = [f"v_add_f32 v{V_L+e//8}, v{base+e}, v{V_L+e//8}" for e in range(16)]
    cvts = [f"v_cvt_pk_bf16_f32 v{PR+b*8+i}, v{base+2*i}, v{base+2*i+1}" for i in range(8)]
    return exps, adds, cvts

def xgroup(e, op, r, t):
    e(f"v_mov_b32 v{t}, v{r}\nv_permlane16_swap_b32 v{t}, v{r}\n{op} v{r}, v{t}, v{r}")
    e(f"v_mov_b32 v{t}, v{r}\nv_permlane32_swap_b32 v{t}, v{r}\n{op} v{r}, v{t}, v{r}")

def mask_ops(e):
    for r in range(4):
        m = sr(sMASK + 2 * r, 2)
        e(f"v_cndmask_b32 v{Cb(0,0)+r}, v{Cb(0,0)+r}, v{V_NINF}, {m}")
        e(f"v_cndmask_b32 v{Cb(1,1)+r}, v{Cb(1,1)+r}, v{V_NINF}, {m}")
        e(f"v_mov_b32 v{Cb(1,0)+r}, v{V_NINF}")

def gen_k2(name="k2_kernel", ts=False, store_mod="", D=10, force_fb=False):
    a = Asm(); e = a.e
    khead(a, name)
    if ts: ts_start(a)
    e(f"s_cmp_ge_u32 s2, 256\ns_cbranch_scc1 L_{name}_end")
    e(f"s_load_dwordx2 s[18:19], s[0:1], {KA_WS}")
    e("v_lshrrev_b32 v1, 6, v0\nv_and_b32 v0, 63, v0\nv_readfirstlane_b32 s3, v1")
    e(f"s_and_b32 s{sH}, s2, 31\ns_lshr_b32 s{sP}, s2, 5\ns_and_b32 s{sW4}, s3, 3\ns_lshr_b32 s{sGRP}, s3, 2")
    e(f"v_lshlrev_b32 v{V_L16}, 4, v0\nv_mov_b32 v{V_RD}, v{V_L16}\nv_mov_b32 v{V_NINF}, 0xff800000")
    e(f"s_lshl_b32 s4, s{sP}, 1\ns_sub_u32 s{sJL}, 32, s4\ns_lshl_b32 s4, s{sP}, 2")
    e(f"s_add_u32 s5, s4, 3\ns_sub_u32 s5, s5, s{sW4}\ns_sub_u32 s6, 60, s4\ns_add_u32 s6, s6, s{sW4}")
    e(f"s_cmp_eq_u32 s{sGRP}, 0\ns_cselect_b32 s{sT}, s6, s5\ns_mov_b32 s49, s6")
    e(f"v_lshrrev_b32 v{V_T}, 4, v0\nv_lshlrev_b32 v{V_T}, 2, v{V_T}\nv_and_b32 v{V_T+1}, 15, v0")
    for r in range(4):
        e(f"v_cmp_gt_u32 {sr(sMASK+2*r,2)}, v{V_T}, v{V_T+1}")
        if r < 3: e(f"v_add_u32 v{V_T}, 1, v{V_T}")
    e(f"v_lshlrev_b32 v{V_T+2}, 2, v{V_T+1}")
    e("s_waitcnt lgkmcnt(0)")
    srd(a, S_WS, 18, WS_SIZE); srd(a, S_DMA, 18, WS_SIZE)
    e(f"s_lshl_b32 s7, s{sH}, 19")
    e(f"s_lshl_b32 s8, s{sT}, 13\ns_add_u32 s8, s8, s7\ns_add_u32 s9, s8, 4096")
    e(f"s_add_u32 s10, s7, {WS_KF}\ns_add_u32 s11, s10, 4096")
    for i in range(8):
        e(f"buffer_load_dwordx4 {vr(QR+4*i,4)}, v{V_L16}, s[{S_WS}:{S_WS+3}], s{8+i//4} offen offset:{(i%4)*1024}")
    for i in range(8):
        e(f"buffer_load_dwordx4 {vr(ring(i),4)}, v{V_L16}, s[{S_WS}:{S_WS+3}], s{10+i//4} offen offset:{(i%4)*1024}")
    e(f"s_lshl_b32 s12, s{sT}, 7\ns_add_u32 s12, s12, {WS_G}")
    for qt in range(2):
        e(f"buffer_load_dword v{V_G+qt}, v{V_T+2}, s[{S_WS}:{S_WS+3}], s12 offen offset:{qt*64}")
    e(f"s_mov_b32 s{sRD}, 0\ns_mov_b32 s{sNB}, 1\ns_mov_b32 s{sREM}, s{sT}\ns_mov_b32 s{sFLAG}, 0")
    e(f"s_cmp_eq_u32 s{sGRP}, 0\ns_cbranch_scc0 L_{name}_g2")
    for grp in range(2):
        if grp: a.label(f"L_{name}_g2")
        gen_path(a, f"{name}_g{grp+1}", grp, ts, store_mod, D, force_fb)
    a.label(f"L_{name}_end")
    e("s_endpgm")
    lines = fixup(a.lines, [name])
    return "\n".join(lines) + "\n" + kdesc(name, 256, 96) + "\n"

def gen_path(a, nm, grp, ts, store_mod, D, force_fb):
    e = a.e
    WSR = f"s[{S_WS}:{S_WS+3}]"; DMR = f"s[{S_DMA}:{S_DMA+3}]"
    def dma_ops(m0src, sv=None):
        sv = sv or f"s{sV}"
        o = [f"s_mov_b32 m0, {m0src}"]
        o += [f"buffer_load_dwordx4 v{V_L16}, {DMR}, s{sK} offen offset:{i*1024} lds" for i in range(4)]
        o += [f"s_add_u32 m0, {m0src}, 16384"]
        o += [f"buffer_load_dwordx4 v{V_L16}, {DMR}, {sv} offen offset:{i*1024} lds" for i in range(4)]
        o += [f"s_add_u32 s{sK}, s{sK}, 16384\ns_add_u32 s{sV}, s{sV}, 16384"]
        return o
    if grp:
        e(f"s_lshl_b32 s{sWOFF}, s{sW4}, 12")
        e(f"s_add_u32 s{sK}, s7, {WS_KF + 8192}\ns_add_u32 s{sK}, s{sK}, s{sWOFF}")
        e(f"s_add_u32 s{sV}, s7, {WS_VF - 8192}\ns_add_u32 s{sV}, s{sV}, s{sWOFF}")
        e(f"s_cmp_lt_u32 s{sW4}, 2\ns_cselect_b32 s13, 8192, 0\ns_add_u32 s13, s13, s{sV}")
        for j in range(NSLOT):
            e(f"s_add_u32 s14, s{sWOFF}, {j*SLOT}")
            for x in dma_ops("s14", "s13" if j == 0 else None): e(x)
    def bar_pre():
        w = f"s_waitcnt vmcnt({8*(NSLOT-2)}) lgkmcnt(0)" if grp else "s_waitcnt lgkmcnt(0)"
        o = [w, "s_barrier"]
        if grp: o.append(f"s_add_u32 s14, s{sRD}, s{sWOFF}")
        o.append(f"s_add_u32 s{sRD}, s{sRD}, {SLOT}\ns_cmp_eq_u32 s{sRD}, {NSLOT*SLOT}\ns_cselect_b32 s{sRD}, 0, s{sRD}\nv_add_u32 v{V_RD}, s{sRD}, v{V_L16}")
        return o
    def bar_post():
        o = []
        if grp:
            o.append(f"s_add_u32 s15, s{sNB}, {NSLOT-1}\ns_cmp_gt_u32 s15, s{sJL}\ns_cselect_b32 s{S_DMA+2}, 0, s{S_DMA+2}")
            o += dma_ops("s14")
        o.append(f"s_add_u32 s{sNB}, s{sNB}, 1")
        return o
    for r in range(16): e(f"v_mov_b32 v{CB+r}, 0")
    e(f"s_cmp_eq_u32 s{sT}, 0\ns_cbranch_scc0 L_{nm}_nomask0")
    mask_ops(e)
    a.label(f"L_{nm}_nomask0")
    for r in range(64): e(f"v_mov_b32 v{OR+r}, 0")
    for r in range(8): e(f"v_mov_b32 v{PR+8+r}, 0")
    e(f"v_mov_b32 v{V_L}, 0\nv_mov_b32 v{V_L+1}, 0")
    for _, x in qk_mfmas(0, ring): e(x)
    def rowmax(dst, b, qt, acc=False):
        s = SR + b * 16 + qt * 8
        e(f"v_max3_f32 v{dst}, v{s}, v{s+1}, " + (f"v{dst}" if acc else f"v{s+1}"))
        for i in range(1, 4): e(f"v_max3_f32 v{dst}, v{s+2*i}, v{s+2*i+1}, v{dst}")
    def set_c():
        for qt in range(2):
            for kt in range(2):
                for r in range(4): e(f"v_sub_f32 v{Cb(kt,qt)+r}, 0, v{V_T+4+qt}")
    for qt in range(2):
        rowmax(V_T + 4 + qt, 0, qt)
        xgroup(e, "v_max_f32", V_T + 4 + qt, V_T + 6)
    set_c()
    for i in range(16): e(f"v_sub_f32 v{SR+i}, v{SR+i}, v{V_T+4+i//8}")
    e((f"s_waitcnt vmcnt({8*(NSLOT-1)})\n" if grp else "") + "s_barrier")
    def foff(i):
        st, k = divmod(i, 16)
        return (st * 8192 + k * 1024) if k < 8 else (16384 + st * 8192 + (k - 8) * 1024)
    def rd(i): return f"ds_read_b128 {vr(ring(i),4)}, v{V_RD} offset:{foff(i % 32)}"
    if ts: ts_mark(a)
    for i in range(D): e(rd(i))
    e(".p2align 6")
    a.label(f"L_{nm}_loop")
    for st in range(2):
        e(f"s_cmp_le_u32 s{sREM}, 1\ns_cbranch_scc1 L_{nm}_x{st}")
        a.label(f"L_{nm}_r{st}")
        mf = qk_mfmas(1 - st, lambda i: ring(st * 16 + i)) + [(8 + f, x) for f, x in pv_mfmas(1 - st, lambda i: ring(st * 16 + 8 + i))]
        main = []
        for m, (f, x) in enumerate(mf):
            if m % 4 == 0: x += f" ; also {vr(ring(st*16+f+1),4)}"
            main.append(x)
        fill = []
        exps, adds, cvts = sm_ops(st)
        for i in range(16):
            p = (i * 7) // 4
            fill.append((p, exps[i]))
        for i in range(16): fill.append(((i * 7) // 4 + 3, adds[i]))
        for i in range(8): fill.append((((2 * i + 1) * 7) // 4 + 4, cvts[i]))
        fill.append((0, f"s_sub_u32 s{sREM}, s{sREM}, 1"))
        post = []
        for k in range(16):
            tgt = st * 16 + k + D
            pos = 2 * k + 1
            if tgt == 32:
                pos = 2 * k + 3
                for x in bar_pre(): fill.append((pos, x))
                post = bar_post(); ppos = pos + 3
            fill.append((pos, rd(tgt)))
        for i, x in enumerate(post): fill.append((ppos + i, x))
        fill.sort(key=lambda t: t[0])
        for x in interleave(main, fill): e(x)
    e(f"s_branch L_{nm}_loop")
    for st in range(2):
        a.label(f"L_{nm}_x{st}")
        e(f"s_cmp_eq_u32 s{sREM}, 0\ns_cbranch_scc1 L_{nm}_tail{st}")
        mask_ops(e)
        e(f"s_branch L_{nm}_r{st}")
    def sm_pv(b, fr):
        main = [x for _, x in pv_mfmas(1 - b, fr)]
        exps, adds, cvts = sm_ops(b)
        fill = [(i, exps[i]) for i in range(16)] + [(i + 2, adds[i]) for i in range(16)] + [(2 * i + 3, cvts[i]) for i in range(8)]
        fill.sort(key=lambda t: t[0])
        for x in interleave(main, fill): e(x)
    def cond_barrier(tag):
        e(f"s_cmp_gt_u32 s{sNB}, s{sJL}\ns_cbranch_scc1 L_{nm}_{tag}")
        for x in bar_pre() + bar_post(): e(x)
        a.label(f"L_{nm}_{tag}")
    a.label(f"L_{nm}_tail0")
    for k in range(16): e(f"ds_read_b128 {vr(ring(k),4)}, v{V_RD} offset:{16384 + k*1024}")
    sm_pv(0, lambda i: ring(i))
    cond_barrier("t0b")
    for _, x in pv_mfmas(0, lambda i: ring(8 + i)): e(x)
    e(f"s_branch L_{nm}_epi")
    a.label(f"L_{nm}_tail1")
    for k in range(8): e(f"ds_read_b128 {vr(ring(k),4)}, v{V_RD} offset:{24576 + k*1024}")
    for x in bar_pre(): e(x)
    for k in range(8): e(f"ds_read_b128 {vr(ring(8+k),4)}, v{V_RD} offset:{16384 + k*1024}")
    for x in bar_post(): e(x)
    sm_pv(1, lambda i: ring(i))
    for _, x in pv_mfmas(1, lambda i: ring(8 + i)): e(x)
    def epilogue(check):
        for qt in range(2): xgroup(e, "v_add_f32", V_L + qt, V_T + 6)
        if check:
            e(f"v_max_f32 v{V_T+6}, v{V_L}, v{V_L+1}\nv_add_f32 v{V_T+7}, v{V_L}, v{V_L+1}")
            e(f"v_cmp_nle_f32 vcc, v{V_T+7}, v{V_T+3}")
            e(f"s_cmp_lg_u64 vcc, 0")
            if force_fb: e("s_cmp_eq_u32 s2, s2")
            e(f"s_cselect_b32 s{sFLAG}, 1, 0\ns_cbranch_scc1 L_{nm}_post")
        for qt in range(2):
            e(f"v_rcp_f32 v{V_T+4+qt}, v{V_L+qt}\nv_sub_f32 v{V_T+6}, 1.0, v{V_G+qt}\nv_mul_f32 v{V_T+4+qt}, v{V_T+4+qt}, v{V_T+6}")
        e(f"s_lshr_b32 s4, s{sT}, 1\ns_mul_i32 s4, s4, {144*4096}\ns_lshl_b32 s5, s{sH}, 14\ns_add_u32 s4, s4, s5\ns_and_b32 s5, s{sT}, 1\ns_lshl_b32 s5, s5, 11\ns_add_u32 s4, s4, s5\ns_add_u32 s4, s4, {WS_CTX}")
        for t in range(4):
            for qt in range(2):
                o = Ob(2 * t, qt)
                for i in range(8): e(f"v_mul_f32 v{o+i}, v{V_T+4+qt}, v{o+i}")
                for i in range(4): e(f"v_cvt_pk_bf16_f32 v{o+i}, v{o+2*i}, v{o+2*i+1}")
                e(f"buffer_store_dwordx4 {vr(o,4)}, v{V_L16}, {WSR}, s4 offen offset:{qt*1024} {store_mod}")
            if t < 3: e("s_add_u32 s4, s4, 4096")
    a.label(f"L_{nm}_epi")
    if ts: ts_mid(a)
    e(f"v_mov_b32 v{V_T+3}, {f32hex(2.0**30)}")
    epilogue(True)
    a.label(f"L_{nm}_post")
    e(f"s_cmp_gt_u32 s{sNB}, s{sJL}\ns_cbranch_scc1 L_{nm}_postdone")
    for x in bar_pre() + bar_post(): e(x)
    e(f"s_branch L_{nm}_post")
    a.label(f"L_{nm}_postdone")
    e(f"s_cmp_eq_u32 s{sFLAG}, 0\ns_cbranch_scc1 L_{nm}_nofb")
    def ld8(base, so0, so1):
        for i in range(8): e(f"buffer_load_dwordx4 {vr(ring(base+i),4)}, v{V_L16}, {WSR}, {so0 if i < 4 else so1} offen offset:{(i%4)*1024}")
    for r in range(16): e(f"v_mov_b32 v{CB+r}, 0")
    e(f"v_mov_b32 v{V_T+4}, v{V_NINF}\nv_mov_b32 v{V_T+5}, v{V_NINF}")
    e(f"s_add_u32 s10, s7, {WS_KF}\ns_mov_b32 s{sREM}, s{sT}")
    a.label(f"L_{nm}_fb1")
    e("s_add_u32 s11, s10, 4096")
    ld8(0, "s10", "s11")
    e(f"s_cmp_eq_u32 s{sREM}, 0\ns_cbranch_scc0 L_{nm}_fb1n")
    mask_ops(e)
    a.label(f"L_{nm}_fb1n")
    for _, x in qk_mfmas(0, ring): e(x)
    for qt in range(2): rowmax(V_T + 4 + qt, 0, qt, acc=True)
    e(f"s_add_u32 s10, s10, 8192\ns_cmp_eq_u32 s{sREM}, 0\ns_cbranch_scc1 L_{nm}_fb1d\ns_sub_u32 s{sREM}, s{sREM}, 1\ns_branch L_{nm}_fb1")
    a.label(f"L_{nm}_fb1d")
    for qt in range(2): xgroup(e, "v_max_f32", V_T + 4 + qt, V_T + 6)
    set_c()
    for r in range(64): e(f"v_mov_b32 v{OR+r}, 0")
    e(f"v_mov_b32 v{V_L}, 0\nv_mov_b32 v{V_L+1}, 0")
    e(f"s_add_u32 s10, s7, {WS_KF}\ns_add_u32 s12, s7, {WS_VF}\ns_mov_b32 s{sREM}, s{sT}")
    a.label(f"L_{nm}_fb2")
    e("s_add_u32 s11, s10, 4096\ns_add_u32 s13, s12, 4096")
    ld8(0, "s10", "s11"); ld8(8, "s12", "s13")
    e(f"s_cmp_eq_u32 s{sREM}, 0\ns_cbranch_scc0 L_{nm}_fb2n")
    mask_ops(e)
    a.label(f"L_{nm}_fb2n")
    for _, x in qk_mfmas(0, ring): e(x)
    exps, adds, cvts = sm_ops(0)
    for x in exps + adds + cvts: e(x)
    for _, x in pv_mfmas(0, lambda i: ring(8 + i)): e(x)
    e(f"s_add_u32 s10, s10, 8192\ns_add_u32 s12, s12, 8192\ns_cmp_eq_u32 s{sREM}, 0\ns_cbranch_scc1 L_{nm}_fb2d\ns_sub_u32 s{sREM}, s{sREM}, 1\ns_branch L_{nm}_fb2")
    a.label(f"L_{nm}_fb2d")
    epilogue(False)
    a.label(f"L_{nm}_nofb")
    if grp:
        KV = OR
        e(f"s_lshl_b32 s4, s{sH}, 14\ns_add_u32 s4, s4, {WS_KVP}")
        for i in range(16):
            e(f"buffer_load_dwordx4 {vr(KV+4*i,4)}, v{V_L16}, {WSR}, s4 offen offset:{(i%4)*1024}")
            if i % 4 == 3 and i < 15: e("s_add_u32 s4, s4, 4096")
        PQr = SR; GG = SR + 8
        for b, st_ in enumerate((sT, 49)):
            e(f"s_lshl_b32 s5, s{sH}, 16\ns_lshl_b32 s6, s{st_}, 10\ns_add_u32 s5, s5, s6\ns_add_u32 s5, s5, {WS_PQ}")
            e(f"buffer_load_dwordx4 {vr(PQr+4*b,4)}, v{V_L16}, {WSR}, s5 offen")
            e(f"s_lshl_b32 s12, s{st_}, 7\ns_add_u32 s12, s12, {WS_G}")
            for qt in range(2): e(f"buffer_load_dword v{GG+2*b+qt}, v{V_T+2}, {WSR}, s12 offen offset:{qt*64}")
        for r in range(1, 8):
            for i in range(8): e(f"v_add_f32 v{KV+i}, v{KV+i}, v{KV+8*r+i}")
        for i in range(4): e(f"v_cvt_pk_bf16_f32 v{KV+8+i}, v{KV+2*i}, v{KV+2*i+1}")
        NUM = KV + 16
        for j in range(4):
            e(f"v_mfma_f32_16x16x16_bf16 {vr(NUM+8*j,4)}, {vr(KV+8,2)}, {vr(PQr+2*j,2)}, 0")
            e(f"v_mfma_f32_16x16x16_bf16 {vr(NUM+8*j+4,4)}, {vr(KV+10,2)}, {vr(PQr+2*j,2)}, 0")
        e(f"s_and_b32 s6, s{sH}, 1\ns_lshl_b32 s6, s6, 3\ns_lshr_b32 s5, s{sH}, 1\ns_lshl_b32 s5, s5, 12\ns_add_u32 s6, s6, s5\ns_add_u32 s6, s6, {WS_CTX + 128*4096}")
        for b, st_ in enumerate((sT, 49)):
            e(f"s_lshr_b32 s4, s{st_}, 1\ns_mul_i32 s4, s4, {144*4096}\ns_and_b32 s5, s{st_}, 1\ns_lshl_b32 s5, s5, 11\ns_add_u32 s4, s4, s5\ns_add_u32 s4, s4, s6")
            for qt in range(2):
                j = b * 2 + qt; n = NUM + 8 * j
                e(f"v_add_f32 v{n+4}, {f32hex(1e-6)}, v{n+4}\nv_rcp_f32 v{n+4}, v{n+4}\nv_mul_f32 v{n+4}, v{GG+j}, v{n+4}")
                for i in range(4): e(f"v_mul_f32 v{n+i}, v{n+4}, v{n+i}")
                e(f"v_cvt_pk_bf16_f32 v{n}, v{n}, v{n+1}\nv_cvt_pk_bf16_f32 v{n+1}, v{n+2}, v{n+3}")
                e(f"buffer_store_dwordx2 {vr(n,2)}, v{V_L16}, {WSR}, s4 offen offset:{qt*1024} {store_mod}")
    if ts: ts_end(a, 1, S_WS, 3, vtmp=244)
    e("s_endpgm")
```

```python
from common import *
def gen_k3(name="k3_kernel", PD=4, ts=False):
    a = Asm(); e = a.e
    khead(a, name)
    if ts: ts_start(a)
    e(f"s_cmp_ge_u32 s2, 256\ns_cbranch_scc1 L_{name}_end")
    e(f"s_load_dwordx2 s[4:5], s[0:1], {KA_WO}\ns_load_dwordx2 s[6:7], s[0:1], {KA_WO4}")
    e(f"s_load_dwordx2 s[8:9], s[0:1], {KA_OUT}\ns_load_dwordx2 s[10:11], s[0:1], {KA_WS}")
    e("v_lshrrev_b32 v1, 6, v0\nv_and_b32 v0, 63, v0\nv_readfirstlane_b32 s3, v1")
    e("s_and_b32 s30, s2, 7\ns_lshr_b32 s31, s2, 3\ns_and_b32 s32, s31, 3\ns_lshl_b32 s30, s30, 2\ns_add_u32 s30, s30, s32\ns_lshr_b32 s31, s31, 2")
    e("v_lshlrev_b32 v2, 4, v0")
    e("v_lshrrev_b32 v3, 3, v0\nv_lshlrev_b32 v3, 10, v3")
    e("v_lshrrev_b32 v4, 4, v0\nv_lshlrev_b32 v4, 1, v4\nv_and_b32 v5, 7, v0\nv_xor_b32 v4, v4, v5\nv_lshlrev_b32 v4, 4, v4")
    e("v_add_u32 v4, v3, v4\nv_add_u32 v5, 7168, v4\nv_add_u32 v6, 14336, v4\nv_add_u32 v7, 21504, v4")
    e("v_lshrrev_b32 v8, 2, v0\nv_lshlrev_b32 v8, 7, v8")
    e("v_lshrrev_b32 v9, 3, v0\nv_and_b32 v9, 3, v9\nv_lshlrev_b32 v9, 5, v9")
    e("v_and_b32 v10, 3, v0\nv_lshlrev_b32 v10, 3, v10\nv_add3_u32 v8, v8, v9, v10")
    e("s_mul_i32 s33, s3, 20480\nv_add_u32 v8, s33, v8")
    e("v_xor_b32 v9, 32, v8\nv_xor_b32 v10, 64, v8\nv_xor_b32 v11, 96, v8")
    e("s_waitcnt lgkmcnt(0)")
    srd(a, 12, 4, 512 * 512 * 2)
    srd(a, 16, 6, 4096 * 512 * 2)
    srd(a, 20, 8, 2048 * 512 * 2)
    srd(a, 24, 10, WS_SIZE)
    e("s_lshl_b32 s36, s31, 7\ns_lshl_b32 s34, s3, 19\ns_add_u32 s34, s34, s36\ns_lshl_b32 s35, s3, 16\ns_add_u32 s35, s35, s36")
    e(f"s_mul_i32 s37, s30, {144*4096}\ns_add_u32 s37, s37, {WS_CTX}\ns_lshl_b32 s39, s3, 13\ns_add_u32 s38, s37, s39\ns_add_u32 s38, s38, {128*4096}\ns_lshl_b32 s39, s3, 16\ns_add_u32 s37, s37, s39")
    ACC = 64; CF = 128; WF = 208
    NS = 18; NSLOT = 5
    vm = VmTrack()
    def loads(idx):
        slot = idx % NSLOT
        e(f"s_add_u32 m0, s33, {slot*4096}")
        rs, so = ("s[16:19]", "s34") if idx < 16 else ("s[12:15]", "s35")
        for i in range(4):
            e(f"buffer_load_dwordx4 v{4+i}, {rs}, {so} offen offset:{i*1024} lds"); vm.issue(('W', idx))
        e(f"s_add_u32 {so}, {so}, 32768")
        cs = "s37" if idx < 16 else "s38"
        for i in range(4):
            b = CF + slot * 16 + i * 4
            e(f"buffer_load_dwordx4 {vr(b,4)}, v2, s[24:27], {cs} offen offset:{i*1024}"); vm.issue(('C', idx))
        e(f"s_add_u32 {cs}, {cs}, 4096")
    for idx in range(PD): loads(idx)
    for idx in range(NS):
        slot = idx % NSLOT
        e(f"s_waitcnt vmcnt({vm.n_after(lambda t: t == ('W', idx))})")
        wb = WF + (idx % 2) * 16
        for n in range(4):
            for hf in range(2):
                e(f"ds_read_b64_tr_b16 {vr(wb+n*4+hf*2,2)}, v{8+n} offset:{slot*4096+hf*2048}")
        if idx + PD < NS: loads(idx + PD)
        for n in range(4):
            for i in range(4):
                d = ACC + (n * 4 + i) * 4
                c = vr(d, 4) if idx else "0"
                e(f"v_mfma_f32_16x16x32_bf16 {vr(d,4)}, {vr(wb+n*4,4)}, {vr(CF+slot*16+i*4,4)}, {c}")
    if ts: ts_mid(a)
    e("s_barrier")
    e("s_lshl_b32 s40, s3, 14\nv_add_u32 v12, s40, v2")
    for t in range(16):
        e(f"ds_write_b128 v12, {vr(ACC+t*4,4)} offset:{t*1024}")
    e("s_lshr_b32 s41, s3, 1\ns_and_b32 s42, s3, 1")
    e("v_lshrrev_b32 v13, 5, v0\nv_lshlrev_b32 v13, 12, v13")
    e("v_and_b32 v14, 15, v0\nv_lshlrev_b32 v14, 4, v14")
    e("v_and_b32 v15, 16, v0\nv_lshlrev_b32 v15, 5, v15\nv_add3_u32 v13, v13, v14, v15")
    e("s_lshl_b32 s43, s42, 13\ns_lshl_b32 s44, s41, 10\ns_add_u32 s43, s43, s44\nv_add_u32 v13, s43, v13\nv_add_u32 v14, 0x10000, v13")
    e("s_waitcnt lgkmcnt(0)\ns_barrier")
    for u in range(8):
        for ee in range(2):
            e(f"ds_read_b128 {vr(128+(u*2+ee)*4,4)}, v{13+u//4} offset:{(u%4)*16384+ee*256}")
    for u in range(1, 8):
        for j in range(8):
            e(f"v_add_f32 v{128+j}, v{128+j}, v{128+u*8+j}")
    for j in range(4):
        e(f"v_cvt_pk_bf16_f32 v{16+j}, v{128+2*j}, v{129+2*j}")
    e("v_and_b32 v14, 15, v0\nv_lshlrev_b32 v14, 10, v14\nv_lshrrev_b32 v15, 4, v0\nv_lshlrev_b32 v15, 4, v15\nv_add_u32 v14, v14, v15")
    e("s_lshl_b32 s43, s30, 16\ns_lshl_b32 s44, s41, 14\ns_add_u32 s43, s43, s44\ns_add_u32 s43, s43, s36\ns_lshl_b32 s44, s42, 6\ns_add_u32 s43, s43, s44")
    e("buffer_store_dwordx4 v[16:19], v14, s[20:23], s43 offen")
    if ts: ts_end(a, 2, 24, 3)
    a.label(f"L_{name}_end")
    e("s_endpgm")
    lines = fixup(a.lines, [name])
    return "\n".join(lines) + "\n" + kdesc(name, 256, 96) + "\n"
```

```python
import sys
from common import *
import k1, k2, k3
HEADER = open("gated_mix__linear_attn_block__compressed_kv_cla__prompt.s.ref").read().split("; Override")[0]
def build(parts, path):
    out = HEADER
    for name, grid, block, lds, _ in parts:
        out += f"; @launch kernel={name} grid=({grid},1,1) block=({block},1,1) lds={lds}\n"
    out += '.amdgcn_target "amdgcn-amd-amdhsa--gfx950"\n.text\n'
    seen = set()
    for name, _, _, _, txt in parts:
        if name in seen: continue
        seen.add(name); out += txt
    out += "L_code_end:\n"
    open(path, "w").write(out)
def full(path, ts=False, o1={}, o2={}, o3={}):
    build([("k1_kernel", 256, 512, 163840, k1.gen_k1(ts=ts, **o1)),
           ("k2_kernel", 256, 512, 163840, k2.gen_k2(ts=ts, **o2)),
           ("k3_kernel", 256, 512, 163840, k3.gen_k3(ts=ts, **o3))], path)
if __name__ == "__main__":
    full("full_ts.s", ts=True)
    full("full_ts2.s", ts=2)
    full("full_fb.s", ts=False, o2=dict(force_fb=True))
    full("gated_mix__linear_attn_block__compressed_kv_cla__prompt.s")
```

```python
from asmcore import *
MB = 1 << 20
WS_QF = 0
WS_KF = 16 * MB
WS_VF = 32 * MB
WS_CTX = 48 * MB
WS_PQ = 68 * MB
WS_KVP = 70 * MB
WS_G = 71 * MB
WS_SIZE = 256 * MB
KA_X, KA_WQKV, KA_WO, KA_BX, KA_CKV, KA_WQ, KA_WUK, KA_WUV, KA_WO4, KA_GATE, KA_OUT, KA_DBG, KA_WS = [8 * i for i in range(13)]

def kdesc(name, vgpr=256, sgpr=96, accum=None):
    accum = accum or ((vgpr + 3) // 4 * 4 if vgpr <= 256 else 256)
    return f""".section .rodata,"a"
.p2align 6
.amdhsa_kernel {name}
  .amdhsa_next_free_vgpr {vgpr}
  .amdhsa_next_free_sgpr {sgpr}
  .amdhsa_accum_offset {accum}
  .amdhsa_group_segment_fixed_size 0
  .amdhsa_kernarg_size 104
  .amdhsa_user_sgpr_count 2
  .amdhsa_user_sgpr_kernarg_segment_ptr 1
  .amdhsa_system_sgpr_workgroup_id_x 1
.end_amdhsa_kernel
.text"""

def khead(a, name):
    a.e(f".globl {name}\n.p2align 8\n.type {name},@function")
    a.label(name)

def srd(a, d, ptr, nbytes):
    a.e(f"s_mov_b32 s{d}, s{ptr}\ns_and_b32 s{d+1}, s{ptr+1}, 0xffff\ns_mov_b32 s{d+2}, {nbytes}\ns_mov_b32 s{d+3}, 0x20000")

class VmTrack:
    def __init__(self): self.tags = []
    def issue(self, tag): self.tags.append(tag)
    def n_after(self, pred):
        last = -1
        for i, t in enumerate(self.tags):
            if pred(t): last = i
        return min(63, len(self.tags) - 1 - last)

WS_TS = 200 * MB
def ts_start(a):
    a.e("s_memrealtime s[80:81]\ns_memtime s[82:83]\ns_mov_b32 s92, 0\ns_mov_b32 s94, 0")
def ts_mid(a):
    a.e("s_memrealtime s[84:85]\ns_memtime s[86:87]\ns_waitcnt lgkmcnt(0)")
def ts_mark(a):
    a.e("s_memrealtime s[92:93]\ns_memtime s[94:95]\ns_waitcnt lgkmcnt(0)")
def ts_end(a, kidx, ws_srd, wave_sreg, vtmp=240):
    a.e("s_waitcnt vmcnt(0)\ns_memrealtime s[88:89]\ns_memtime s[90:91]\ns_waitcnt lgkmcnt(0)")
    for i, s in enumerate((80, 84, 88, 92, 82, 86, 90, 94)):
        a.e(f"v_mov_b32 v{vtmp+i}, s{s}")
    a.e(f"s_lshl_b32 s80, s2, 3\ns_add_u32 s80, s80, s{wave_sreg}\ns_lshl_b32 s80, s80, 5\ns_add_u32 s80, s80, {WS_TS + kidx*65536}")
    a.e(f"v_mov_b32 v{vtmp+8}, 0\nbuffer_store_dwordx4 v[{vtmp}:{vtmp+3}], v{vtmp+8}, s[{ws_srd}:{ws_srd+3}], s80 offen")
    a.e(f"buffer_store_dwordx4 v[{vtmp+4}:{vtmp+7}], v{vtmp+8}, s[{ws_srd}:{ws_srd+3}], s80 offen offset:16")
```

```python
from gen import *
empty = """.globl e_kernel
.p2align 8
.type e_kernel,@function
e_kernel:
s_endpgm
""" + kdesc("e_kernel", 32, 16) + "\n"
K1 = ("k1_kernel", 256, 512, 163840, k1.gen_k1()); K2 = ("k2_kernel", 256, 512, 163840, k2.gen_k2()); K3 = ("k3_kernel", 256, 512, 163840, k3.gen_k3())
E = ("e_kernel", 1, 64, 0, empty)
build([K1, K2, K3], "e0.s")
build([K1, K2, K3, E], "e1.s")
build([K1, K2, K3, E, E, E, E], "e4.s")
build([K1, K2, K3, K3], "e_k3x2.s")
build([K1, K1, K2, K3], "e_k1x2.s")
build([K1, K2, K2, K3], "e_k2x2.s")
```

```python
from asmcore import *
MB = 1 << 20
WS_QF = 0
WS_KF = 16 * MB
WS_VF = 32 * MB
WS_CTX = 48 * MB
WS_PQ = 68 * MB
WS_KVP = 70 * MB
WS_G = 71 * MB
WS_WT = 72 * MB
WS_SIZE = 256 * MB
KA_X, KA_WQKV, KA_WO, KA_BX, KA_CKV, KA_WQ, KA_WUK, KA_WUV, KA_WO4, KA_GATE, KA_OUT, KA_DBG, KA_WS = [8 * i for i in range(13)]

def kdesc(name, vgpr=256, sgpr=96, accum=None):
    accum = accum or ((vgpr + 3) // 4 * 4 if vgpr <= 256 else 256)
    return f""".section .rodata,"a"
.p2align 6
.amdhsa_kernel {name}
  .amdhsa_next_free_vgpr {vgpr}
  .amdhsa_next_free_sgpr {sgpr}
  .amdhsa_accum_offset {accum}
  .amdhsa_group_segment_fixed_size 0
  .amdhsa_kernarg_size 104
  .amdhsa_user_sgpr_count 2
  .amdhsa_user_sgpr_kernarg_segment_ptr 1
  .amdhsa_system_sgpr_workgroup_id_x 1
.end_amdhsa_kernel
.text"""

def khead(a, name):
    a.e(f".globl {name}\n.p2align 8\n.type {name},@function")
    a.label(name)

def srd(a, d, ptr, nbytes):
    a.e(f"s_mov_b32 s{d}, s{ptr}\ns_and_b32 s{d+1}, s{ptr+1}, 0xffff\ns_mov_b32 s{d+2}, {nbytes}\ns_mov_b32 s{d+3}, 0x20000")

class VmTrack:
    def __init__(self): self.tags = []
    def issue(self, tag): self.tags.append(tag)
    def n_after(self, pred):
        last = -1
        for i, t in enumerate(self.tags):
            if pred(t): last = i
        return min(63, len(self.tags) - 1 - last)

WS_TS = 200 * MB
def ts_start(a):
    a.e("s_memrealtime s[80:81]\ns_memtime s[82:83]\ns_mov_b32 s92, 0\ns_mov_b32 s94, 0")
def ts_mid(a):
    a.e("s_memrealtime s[84:85]\ns_memtime s[86:87]\ns_waitcnt lgkmcnt(0)")
def ts_mark(a):
    a.e("s_memrealtime s[92:93]\ns_memtime s[94:95]\ns_waitcnt lgkmcnt(0)")
def ts_end(a, kidx, ws_srd, wave_sreg, vtmp=240):
    a.e("s_waitcnt vmcnt(0)\ns_memrealtime s[88:89]\ns_memtime s[90:91]\ns_waitcnt lgkmcnt(0)")
    for i, s in enumerate((80, 84, 88, 92, 82, 86, 90, 94)):
        a.e(f"v_mov_b32 v{vtmp+i}, s{s}")
    a.e(f"s_lshl_b32 s80, s2, 3\ns_add_u32 s80, s80, s{wave_sreg}\ns_lshl_b32 s80, s80, 5\ns_add_u32 s80, s80, {WS_TS + kidx*65536}")
    a.e(f"v_mov_b32 v{vtmp+8}, 0\nbuffer_store_dwordx4 v[{vtmp}:{vtmp+3}], v{vtmp+8}, s[{ws_srd}:{ws_srd+3}], s80 offen")
    a.e(f"buffer_store_dwordx4 v[{vtmp+4}:{vtmp+7}], v{vtmp+8}, s[{ws_srd}:{ws_srd+3}], s80 offen offset:16")

def code_prefetch(a, name, va, vd, nl=16):
    a.e(f"s_getpc_b64 s[96:97]")
    a.e(f".set L_pc_{name}, .")
    a.e(f"s_lshr_b32 s98, s2, 3\ns_mul_i32 s98, s98, {nl*128}\nv_and_b32 v{va}, 31, v0\nv_min_u32 v{va}, {nl-1}, v{va}\nv_lshl_add_u32 v{va}, v{va}, 7, s98")
    a.e(f"v_min_u32 v{va}, L_code_end-L_pc_{name}-4, v{va}\nv_mov_b32 v{va+1}, s97\nv_add_co_u32 v{va}, vcc, s96, v{va}\nv_addc_co_u32 v{va+1}, vcc, 0, v{va+1}, vcc")
    a.e(f"global_load_dword v{vd}, v[{va}:{va+1}], off")
```

```python
from common import *
import math
LOG2E = 1.4426950408889634
def f32hex(x):
    import struct
    return "0x%08x" % struct.unpack("<I", struct.pack("<f", x))[0]

V_LANE16 = 1
V_A = 2
V_W = 6
V_P = 8
V_RA = 10
V_RW = 14
V_RP = 22
V_T = 24
AF = 32
WF = 64
RING = 6
TMP = 88
ACC1 = 96
ACC2 = 160
V_PF = 92
V_PFD = 94
V_PF2 = 95

def gen_k1(name="k1_kernel", ts=False, store_mod="sc1", qstore_mod=None, pf=2, pf1_at=1, pf2_at=8, spread=1, exp=()):
    a = Asm(); e = a.e
    khead(a, name)
    if ts: ts_start(a)
    e(f"s_cmp_ge_u32 s2, 256\ns_cbranch_scc1 L_{name}_end")
    e(f"s_load_dwordx4 s[4:7], s[0:1], {KA_X}")
    e(f"s_load_dwordx4 s[8:11], s[0:1], {KA_CKV}")
    e(f"s_load_dwordx4 s[12:15], s[0:1], {KA_WUK}")
    e(f"s_load_dwordx2 s[16:17], s[0:1], {KA_GATE}\ns_load_dwordx2 s[18:19], s[0:1], {KA_WS}")
    e(f"s_load_dwordx2 s[76:77], s[0:1], {KA_WO}\ns_load_dwordx2 s[78:79], s[0:1], {KA_WO4}")
    if pf: code_prefetch(a, name, V_PF, V_PFD)
    e("v_lshrrev_b32 v1, 6, v0\nv_and_b32 v0, 63, v0\nv_readfirstlane_b32 s3, v1")
    e("s_and_b32 s20, s2, 31\ns_lshr_b32 s21, s2, 5")
    e("s_and_b32 s22, s3, 3\ns_lshr_b32 s23, s3, 2")
    e(f"v_lshlrev_b32 v{V_LANE16}, 4, v0")
    T = V_T
    e(f"v_lshrrev_b32 v{T}, 3, v0\nv_lshlrev_b32 v{T}, 10, v{T}\ns_lshl_b32 s24, s3, 15\nv_add_u32 v{T}, s24, v{T}")
    e(f"v_lshrrev_b32 v{T+1}, 4, v0\nv_and_b32 v{T+2}, 7, v0\nv_xor_b32 v{T+1}, v{T+1}, v{T+2}\nv_lshlrev_b32 v{T+1}, 4, v{T+1}")
    e(f"v_add_u32 v{V_A}, v{T}, v{T+1}\nv_xor_b32 v{V_A+1}, 64, v{V_A}\nv_add_u32 v{V_A+1}, 7168, v{V_A+1}")
    e(f"v_add_u32 v{V_A+2}, 14336, v{V_A}\nv_add_u32 v{V_A+3}, 14336, v{V_A+1}")
    e(f"v_lshrrev_b32 v{T}, 4, v0\ns_and_b32 s24, s22, 1\ns_lshl_b32 s24, s24, 2\nv_or_b32 v{T+1}, s24, v{T}\nv_lshlrev_b32 v{T+1}, 1, v{T+1}")
    e(f"v_and_b32 v{T+2}, 15, v0\nv_xor_b32 v{T+1}, v{T+1}, v{T+2}\nv_lshlrev_b32 v{T+1}, 4, v{T+1}")
    e(f"v_lshlrev_b32 v{T}, 13, v{T}\ns_lshl_b32 s24, s22, 16\nv_add3_u32 v{V_W}, v{T}, v{T+1}, s24\nv_add_u32 v{V_W+1}, {4*8192-1024}, v{V_W}")
    e(f"v_lshrrev_b32 v{T}, 1, v0\nv_lshrrev_b32 v{T+1}, 2, v0\nv_and_b32 v{T+1}, 4, v{T+1}\nv_xor_b32 v{T}, v{T}, v{T+1}\nv_mul_u32_u24 v{T}, 3072, v{T}")
    e(f"v_and_b32 v{T+1}, 1, v0\nv_lshlrev_b32 v{T+1}, 4, v{T+1}\ns_lshl_b32 s24, s22, 10\nv_add3_u32 v{V_P}, v{T}, v{T+1}, s24")
    e(f"v_and_b32 v{T}, 15, v0\nv_lshrrev_b32 v{T+1}, 1, v{T}\nv_lshrrev_b32 v{T+2}, 4, v0\nv_xor_b32 v{T+1}, v{T+1}, v{T+2}\nv_lshlrev_b32 v{T+1}, 4, v{T+1}")
    e(f"v_lshlrev_b32 v{T}, 7, v{T}\ns_lshl_b32 s24, s22, 13\ns_add_u32 s24, s24, 65536\nv_add3_u32 v{V_RA}, v{T}, v{T+1}, s24")
    e(f"v_xor_b32 v{V_RA+1}, 64, v{V_RA}\nv_add_u32 v{V_RA+2}, 0x10000, v{V_RA}\nv_add_u32 v{V_RA+3}, 0x10000, v{V_RA+1}")
    e(f"v_lshrrev_b32 v{T}, 4, v0\nv_bfe_u32 v{T+1}, v0, 2, 2\nv_lshl_add_u32 v{T+2}, v{T}, 3, v{T+1}\nv_lshlrev_b32 v{T+2}, 8, v{T+2}")
    e(f"v_and_b32 v{T+3}, 1, v{T}\nv_lshl_add_u32 v{T+3}, v{T+3}, 2, v{T+1}\nv_lshlrev_b32 v{T+3}, 5, v{T+3}")
    e(f"v_and_b32 v{T+4}, 3, v0\nv_lshlrev_b32 v{T+4}, 3, v{T+4}\nv_add3_u32 v{V_RW}, v{T+2}, v{T+3}, v{T+4}")
    for n in range(1, 8): e(f"v_xor_b32 v{V_RW+n}, {32*n}, v{V_RW}")
    e(f"v_lshlrev_b32 v{T+2}, 8, v{T}\nv_add3_u32 v{V_RP}, v{T+2}, v{T+3}, v{T+4}\nv_xor_b32 v{V_RP+1}, 128, v{V_RP}")
    e("s_waitcnt lgkmcnt(0)")
    S_X, S_CKV, S_W1, S_W2, S_WS, S_GT = 28, 32, 36, 40, 44, 48
    srd(a, S_X, 4, 2048 * 1024); srd(a, S_CKV, 8, 2048 * 1024); srd(a, S_WS, 18, WS_SIZE); srd(a, S_GT, 16, 1024)
    e("s_cmp_eq_u32 s23, 0")
    e(f"s_cselect_b32 s{S_W1}, s12, s14\ns_cselect_b32 s{S_W1+1}, s13, s15\ns_and_b32 s{S_W1+1}, s{S_W1+1}, 0xffff\ns_mov_b32 s{S_W1+2}, {512*8192}\ns_mov_b32 s{S_W1+3}, 0x20000")
    e("s_cmp_eq_u32 s23, 0")
    e(f"s_cselect_b32 s{S_W2}, s10, s6\ns_cselect_b32 s{S_W2+1}, s11, s7\ns_cselect_b32 s{S_W2+2}, {512*8192}, s{S_W1+3}\ns_and_b32 s{S_W2+1}, s{S_W2+1}, 0xffff\ns_mov_b32 s{S_W2+3}, 0x20000")
    e(f"s_cmp_eq_u32 s23, 0\ns_cselect_b32 s{S_W2+2}, s{S_W2+2}, {512*3072}")
    sA, sW, sP, sMA, sMW, sST = 52, 53, 54, 55, 56, 60
    e(f"s_lshl_b32 s{sA}, s21, 18")
    e(f"s_lshl_b32 s{sW}, s20, 8\ns_lshl_b32 s{sP}, s20, 5")
    e(f"s_lshl_b32 s{sMA}, s3, 12\ns_add_u32 s{sMA}, s{sMA}, 65536")
    e(f"s_lshl_b32 s{sMW}, s3, 11")
    e(f"s_lshl_b32 s57, s20, 19\ns_lshl_b32 s58, s21, 2\ns_add_u32 s58, s58, s22\ns_lshl_b32 s58, s58, 14\ns_add_u32 s57, s57, s58")
    e(f"s_lshl_b32 s58, s21, 8\ns_lshl_b32 s59, s20, 3\ns_add_u32 s58, s58, s59\ns_add_u32 s58, s58, s3\ns_lshl_b32 s59, s58, 10")
    e(f"s_cmp_eq_u32 s23, 0\ns_cbranch_scc0 L_{name}_ch1")
    for ch in range(2):
        if ch: a.label(f"L_{name}_ch1")
        gen_path(a, name, ch, dict(S_X=S_X, S_CKV=S_CKV, S_W1=S_W1, S_W2=S_W2, S_WS=S_WS, S_GT=S_GT, sA=sA, sW=sW, sP=sP, sMA=sMA, sMW=sMW, sST=sST), ts, store_mod, pf, pf1_at, pf2_at, spread, exp, store_mod if qstore_mod is None else qstore_mod)
    a.label(f"L_{name}_end")
    e("s_endpgm")
    lines = fixup(a.lines, [name])
    return "\n".join(lines) + "\n" + kdesc(name, 256, 100) + "\n"

def gen_path(a, name, ch, R, ts, store_mod, pf, pf1_at, pf2_at, spread, exp, qstore_mod):
    e = a.e
    vm = VmTrack()
    S_X, S_CKV, S_W1, S_W2, S_WS, S_GT = (R[k] for k in ("S_X", "S_CKV", "S_W1", "S_W2", "S_WS", "S_GT"))
    sA, sW, sP, sMA, sMW, sST = (R[k] for k in ("sA", "sW", "sP", "sMA", "sMW", "sST"))
    NH = 32
    def dmaW(u):
        if u >= NH: return []
        out = []
        slot = (u % 4) * 16384
        if u < 16 or ch == 0:
            rs = S_W1 if u < 16 else S_W2
            so = (u % 16) * 32 * 8192
            out.append(f"s_add_u32 m0, s{sMW}, {slot}\ns_add_u32 s64, s{sW}, {so}")
            for i in range(2):
                out.append((f"buffer_load_dwordx4 v{V_W+i}, s[{rs}:{rs+3}], s64 offen offset:{i*1024} lds", ('W', u)))
        else:
            so = (u % 16) * 32 * 3072
            out.append(f"s_add_u32 m0, s65, {slot}\ns_add_u32 s64, s{sP}, {so}")
            out.append((f"buffer_load_dwordx4 v{V_P}, s[{S_W2}:{S_W2+3}], s64 offen lds", ('W', u)))
        return out
    def dmaA(s, half):
        if s >= 16: return []
        rs = S_CKV if s < 8 else S_X
        out = [f"s_add_u32 m0, s{sMA}, {(s % 3) * 32768}\ns_add_u32 s66, s{sA}, {(s % 8) * 128}"]
        for i in (2 * half, 2 * half + 1):
            out.append((f"buffer_load_dwordx4 v{V_A+i}, s[{rs}:{rs+3}], s66 offen offset:{i*1024} lds", ('A', s)))
        return out
    def emit(x):
        if isinstance(x, tuple):
            e(x[0]); vm.issue(x[1])
        else: e(x)
    if ch: e("s_lshl_b32 s65, s22, 10\ns_add_u32 s65, s65, 8192")
    GX, GW = ACC2, ACC2 + 4
    for x in dmaW(0) + dmaA(0, 0) + dmaA(0, 1): emit(x)
    emit((f"buffer_load_dwordx4 {vr(GX,4)}, v{V_LANE16}, s[{S_X}:{S_X+3}], s59 offen", ('G', 0)))
    emit((f"buffer_load_dwordx4 {vr(GW,4)}, v{V_LANE16}, s[{S_GT}:{S_GT+3}], 0 offen", ('G', 0)))
    for x in dmaW(1) + dmaA(1, 0) + dmaW(2) + dmaA(1, 1): emit(x)
    def pf_batch(b):
        sel = lambda c, p, q: f"{c}\ns_cselect_b32 s72, s{p}, s{q}\ns_cselect_b32 s73, s{p+1}, s{q+1}"
        ptr, size, two = {(0, 0): (10, 0x400000, 1), (0, 1): (10, 0x400000, 1), (0, 2): (4, 0x200000, 0), (0, 3): (6, 0x180000, 0),
                          (1, 0): (78, 0x400000, 1), (1, 1): (78, 0x400000, 1), (1, 2): (76, 0x80000, 0), (1, 3): (76, 0, 0)}[(ch, b)]
        if size == 0: return []
        o = [f"s_mov_b32 s72, s{ptr}\ns_and_b32 s73, s{ptr+1}, 0xffff\ns_mov_b32 s75, 0x20000\ns_cmp_eq_u32 s22, {b}\ns_cselect_b32 s74, {size}, 0\n"
             + (f"s_lshl_b32 s68, s2, 14\ns_add_u32 s68, s68, {(b % 2) * 8192}" if two else "s_lshl_b32 s68, s2, 13")
             + f"\nv_lshlrev_b32 v{V_PF}, 7, v0\nv_add_u32 v{V_PF}, s68, v{V_PF}"]
        o.append((f"buffer_load_dword v{V_PFD}, v{V_PF}, s[72:75], 0 offen", ('PF', b)))
        return o
    base = WS_VF if ch else WS_KF
    for i in range(4): e(f"s_add_u32 s{sST+i}, s57, {base + i*4096}")
    t = TMP
    e(f"v_mov_b32 v{t}, 0")
    for j in range(4):
        e(f"v_lshlrev_b32 v{t+1}, 16, v{GX+j}\nv_lshlrev_b32 v{t+2}, 16, v{GW+j}\nv_fmac_f32 v{t}, v{t+1}, v{t+2}")
        e(f"v_and_b32 v{t+1}, 0xffff0000, v{GX+j}\nv_and_b32 v{t+2}, 0xffff0000, v{GW+j}\nv_fmac_f32 v{t}, v{t+1}, v{t+2}")
    for sh in ("row_shr:1", "row_shr:2", "row_shr:4", "row_shr:8"):
        e(f"v_add_f32_dpp v{t}, v{t}, v{t} {sh} row_mask:0xf bank_mask:0xf bound_ctrl:0")
    e(f"v_add_f32_dpp v{t}, v{t}, v{t} row_bcast:15 row_mask:0xa bank_mask:0xf")
    e(f"v_add_f32_dpp v{t}, v{t}, v{t} row_bcast:31 row_mask:0xc bank_mask:0xf")
    e(f"v_mul_f32 v{t}, {f32hex(-LOG2E)}, v{t}\nv_exp_f32 v{t}, v{t}\nv_add_f32 v{t}, 1.0, v{t}\nv_rcp_f32 v{t}, v{t}")
    e(f"v_readlane_b32 s67, v{t}, 63\ns_lshl_b32 s68, s58, 2\ns_add_u32 s68, s68, {WS_G}\nv_mov_b32 v{t+1}, s67\nv_mov_b32 v{t+2}, 0")
    emit((f"buffer_store_dword v{t+1}, v{t+2}, s[{S_WS}:{S_WS+3}], s68 offen", ('G', 1)))
    def acc1(mt, nt):
        if ch == 0: return ACC1 + (((nt // 2) * 4 + mt) * 2 + nt % 2) * 4
        return ACC1 + ((nt * 2 + mt // 2) * 2 + mt % 2) * 4
    if ch == 0:
        tiles2 = [('Q', 4), ('Q', 5), ('Q', 0), ('Q', 1), ('Q', 2), ('Q', 3)]
        def acc2(kind, idx, mt): return ACC2 + (((idx // 2) * 4 + mt) * 2 + idx % 2) * 4
    else:
        tiles2 = [('Q', 6), ('Q', 7), ('P', 0), ('P', 1), ('P', 2)]
        def acc2(kind, idx, mt):
            if kind == 'Q': return ACC2 + 64 + (mt * 2 + idx % 2) * 4
            return ACC2 + (idx * 4 + mt) * 4
    frags = []
    for u in range(NH):
        slot = (u % 4) * 16384
        ab = AF + (u % 2) * 16
        first = (u % 16 == 0)
        tl = [('W', n) for n in range(8)] if u < 16 else tiles2
        for kind, idx in tl:
            if kind == 'W':
                rd = (lambda d, idx=idx, slot=slot: [f"ds_read_b64_tr_b16 {vr(d+2*hf,2)}, v{V_RW+idx} offset:{slot+ch*8192+hf*1024}" for hf in range(2)])
                wfirst = (ch == 0)
                accf = (lambda mt, idx=idx: acc1(mt, idx))
            elif kind == 'Q':
                rd = (lambda d, idx=idx, slot=slot: [f"ds_read_b64_tr_b16 {vr(d+2*hf,2)}, v{V_RW+idx} offset:{slot+hf*1024}" for hf in range(2)])
                wfirst = True
                accf = (lambda mt, idx=idx: acc2('Q', idx, mt))
            else:
                rd = (lambda d, idx=idx, slot=slot: [f"ds_read_b64_tr_b16 {vr(d+2*hf,2)}, v{V_RP+hf} offset:{slot+8192+idx*1024}" for hf in range(2)])
                wfirst = (idx == 0)
                accf = (lambda mt, idx=idx: acc2('P', idx, mt))
            def mf(w, mt, accf=accf, wfirst=wfirst, ab=ab, first=first):
                d = vr(accf(mt), 4); A = vr(ab + mt * 4, 4); W = vr(w, 4)
                x, y = (W, A) if wfirst else (A, W)
                return f"v_mfma_f32_16x16x32_bf16 {d}, {x}, {y}, {'0' if first else d}"
            frags.append((u, rd, mf))
    def act_reads(u):
        s = u // 2; ks = u % 2; sl = s % 3
        ab = AF + (u % 2) * 16
        reg = V_RA + ks + (2 if sl == 2 else 0)
        off = 32768 if sl == 1 else 0
        return [f"ds_read_b128 {vr(ab+mt*4,4)}, v{reg} offset:{off+mt*2048}" for mt in range(4)]
    def barrier(u):
        n = vm.n_after(lambda tg: tg == ('W', u) or (tg == ('A', u // 2)))
        if ts == 2 and u in (0, 1, 2, 4, 8, 16, 24, 31):
            e(f"s_memrealtime s[84:85]\ns_memtime s[86:87]\ns_waitcnt lgkmcnt(0)\nv_writelane_b32 v{V_PF2}, s84, {2*u}\nv_writelane_b32 v{V_PF2}, s86, {2*u+1}")
        if 'nobar' in exp and u: return
        e(f"s_waitcnt vmcnt({n}) lgkmcnt(0)\ns_barrier")
    def after_barrier_dma(u):
        return dmaW(u + 3) + dmaA(u // 2 + 2, u % 2)
    def pack_list():
        return [f"v_cvt_pk_bf16_f32 v{ACC1+4*j+i}, v{ACC1+8*j+2*i}, v{ACC1+8*j+2*i+1}" for j in range(16) for i in range(4)]
    kv_mod = store_mod
    def store_kv(j):
        fi = ((j % 4) * 4 + j // 4) if ch == 0 else ((j % 2) * 8 + j // 2)
        return (f"buffer_store_dwordx4 {vr(ACC1+4*j,4)}, v{V_LANE16}, s[{S_WS}:{S_WS+3}], s{sST+fi//4} offen offset:{(fi%4)*1024} {kv_mod}", ('S', j))
    NF = len(frags)
    D = RING - 1
    def plan(u):
        G = sum(1 for f in frags if f[0] == u) if u else sum(1 for f in frags if f[0] == 0) - D + 1
        if u == NH - 1: G = D
        nsl = 4 * G
        ops = list(after_barrier_dma(u))
        if 'nodma' in exp: ops = []
        if 17 <= u < 32: ops.append(store_kv(u - 17))
        if pf:
            u0 = pf1_at if ch == 0 else pf2_at
            if u >= u0 and (u - u0) % pf == 0 and (u - u0) // pf < 4: ops += pf_batch((2, 3, 0, 1)[(u - u0) // pf])
        units = []; cur = []
        for x in ops:
            cur.append(x)
            if isinstance(x, tuple): units.append(cur); cur = []
        sch = {}
        n = len(units)
        for i, un in enumerate(units):
            p = int((i + (0.25 if ch == 0 else 0.75)) * nsl / n) if spread else 2 + i
            p = min(p, nsl - 1)
            for x in un[:-1]: sch.setdefault(max(p - 1, 0), []).append(x)
            sch.setdefault(p, []).append(un[-1])
        if u:
            for i, x in enumerate(act_reads(u)):
                sch.setdefault((2 + 3 * i) if spread else -1, []).append(x)
        return sch
    barrier(0)
    if ts: ts_mark(a)
    for x in act_reads(0): e(x)
    for q in range(D):
        for x in frags[q][1](WF + (q % RING) * 4): e(x)
    published = 0
    sch = plan(0); slot = 0
    packs = pack_list(); npacked = 0
    for q in range(NF):
        u, rd, mf = frags[q]
        w = WF + (q % RING) * 4
        nxt = q + D
        reads = []
        need_bar = False
        if nxt < NF:
            if frags[nxt][0] > published: need_bar = True
            reads = frags[nxt][1](WF + (nxt % RING) * 4)
        avail = 0
        if u == 15:
            nt = q - 15 * 8
            avail = (16 * ((nt - 1) // 2) if ch == 0 else 8 * (nt - 1)) if nt >= 1 else 0
            avail = max(avail, 0)
        elif u >= 16: avail = 64
        for mt in range(4):
            if u == 16 and q - 128 >= 2:
                while npacked < 64: e(packs[npacked]); npacked += 1
            e(mf(w, mt))
            if not need_bar and reads and mt in (0, 1): e(reads[mt])
            for x in sch.pop(slot, []): emit(x)
            slot += 1
            k = 0
            while npacked < avail and k < 3: e(packs[npacked]); npacked += 1; k += 1
        if need_bar:
            for sl in sorted(sch):
                for x in sch[sl]: emit(x)
            published += 1
            barrier(published)
            for x in reads: e(x)
            sch = plan(published); slot = 0
            for x in sch.pop(-1, []): emit(x)
    for sl in sorted(sch):
        for x in sch[sl]: emit(x)
    emit(store_kv(15))
    if ts: ts_mid(a)
    store_mod = qstore_mod
    for i in range(4): e(f"s_add_u32 s{sST+i}, s57, {WS_QF + i*4096}")
    e(f"s_mov_b32 s70, {f32hex(LOG2E / math.sqrt(128.0))}\ns_mov_b32 s71, s70")
    def q_store(src, mt, t):
        for i in range(4): e(f"v_pk_mul_f32 {vr(src+2*i,2)}, {vr(src+2*i,2)}, s[70:71]")
        for i in range(4): e(f"v_cvt_pk_bf16_f32 v{src+i}, v{src+2*i}, v{src+2*i+1}")
        e(f"buffer_store_dwordx4 {vr(src,4)}, v{V_LANE16}, s[{S_WS}:{S_WS+3}], s{sST+mt} offen offset:{t*1024} {store_mod}")
    if ch == 0:
        for t in range(3):
            for mt in range(4): q_store(acc2('Q', 2 * t, mt), mt, t)
        e("s_barrier")
    else:
        e(f"s_mov_b32 s72, {f32hex(LOG2E)}\ns_mov_b32 s73, {f32hex(1e-6)}")
        def phi(r0, n):
            tt = AF
            for i in range(n): e(f"v_min_f32 v{tt+i}, 0, v{r0+i}")
            for i in range(n): e(f"v_mul_f32 v{tt+i}, s72, v{tt+i}")
            for i in range(n): e(f"v_exp_f32 v{tt+i}, v{tt+i}")
            for i in range(n): e(f"v_max_f32 v{r0+i}, 0, v{r0+i}")
            for i in range(n): e(f"v_add_f32 v{r0+i}, s73, v{r0+i}")
            for i in range(n): e(f"v_add_f32 v{r0+i}, v{tt+i}, v{r0+i}")
        qa, ka, va = acc2('P', 0, 0), acc2('P', 1, 0), acc2('P', 2, 0)
        phi(ka, 16)
        for i in range(8): e(f"v_cvt_pk_bf16_f32 v{ka+i}, v{ka+2*i}, v{ka+2*i+1}")
        for i in range(8): e(f"v_cvt_pk_bf16_f32 v{va+i}, v{va+2*i}, v{va+2*i+1}")
        ones = WF; kv = WF + 4; z = WF + 8
        for i in range(4): e(f"v_mov_b32 v{ones+i}, 0x3f803f80")
        for uu in range(2):
            e(f"v_mfma_f32_16x16x32_bf16 {vr(kv,4)}, {vr(ka+4*uu,4)}, {vr(va+4*uu,4)}, {vr(kv,4) if uu else '0'}")
            e(f"v_mfma_f32_16x16x32_bf16 {vr(z,4)}, {vr(ka+4*uu,4)}, {vr(ones,4)}, {vr(z,4) if uu else '0'}")
        e(f"s_lshl_b32 s74, s22, 11\nv_add_u32 v{TMP}, s74, v{V_LANE16}")
        phi(qa, 16)
        e(f"ds_write_b128 v{TMP}, {vr(kv,4)}\nds_write_b128 v{TMP}, {vr(z,4)} offset:1024")
        for i in range(8): e(f"v_cvt_pk_bf16_f32 v{qa+i}, v{qa+2*i}, v{qa+2*i+1}")
        e(f"s_lshl_b32 s74, s20, 16\ns_lshl_b32 s75, s21, 13\ns_add_u32 s74, s74, s75\ns_lshl_b32 s75, s22, 11\ns_add_u32 s74, s74, s75\ns_add_u32 s74, s74, {WS_PQ}")
        for uu in range(2):
            e(f"buffer_store_dwordx4 {vr(qa+4*uu,4)}, v{V_LANE16}, s[{S_WS}:{S_WS+3}], s74 offen offset:{uu*1024} {store_mod}")
        e("s_waitcnt lgkmcnt(0)\ns_barrier")
        for mt in range(4): q_store(acc2('Q', 6, mt), mt, 3)
        e(f"s_cmp_eq_u32 s22, 0\ns_cbranch_scc0 L_{name}_ch1_done")
        for r in range(8): e(f"ds_read_b128 {vr(AF+4*r,4)}, v{V_LANE16} offset:{r*1024}")
        for r in range(1, 4):
            for i in range(8): e(f"v_add_f32 v{AF+i}, v{AF+i}, v{AF+8*r+i}")
        e(f"s_lshl_b32 s74, s20, 14\ns_lshl_b32 s75, s21, 11\ns_add_u32 s74, s74, s75\ns_add_u32 s74, s74, {WS_KVP}")
        for i in range(2):
            e(f"buffer_store_dwordx4 {vr(AF+4*i,4)}, v{V_LANE16}, s[{S_WS}:{S_WS+3}], s74 offen offset:{i*1024} {store_mod}")
        a.label(f"L_{name}_ch1_done")
    if ts == 2:
        e(f"s_lshl_b32 s68, s2, 3\ns_add_u32 s68, s68, s3\ns_lshl_b32 s68, s68, 8\ns_add_u32 s68, s68, {WS_TS + MB}\nv_lshlrev_b32 v{V_PF}, 2, v0")
        e(f"buffer_store_dword v{V_PF2}, v{V_PF}, s[{S_WS}:{S_WS+3}], s68 offen")
    if ts: ts_end(a, 0, S_WS, 3, vtmp=AF)
    e("s_endpgm")
```

```python
from common import *
from k1 import f32hex
V_L16 = 1; V_RD = 2; V_RN = 3; V_L = 4
V_G = 6
V_T = 8
QR = 16; CB = 48; OR = 64; SR = 128; PR = 160; RG = 176; NRING = 16
V_NINF = 240
LS = 244; ONES = 252
S_WS, S_DMA = 28, 32
sH, sP, sW4, sGRP, sT, sJL, sREM, sNB = 20, 21, 22, 23, 24, 25, 26, 27
sK, sV, sRD, sWOFF, sFLAG = 36, 37, 38, 39, 48
sMASK = 40
NSLOT = 5
SLOT = 32768

def Qf(qt, t): return QR + (qt * 4 + t) * 4
def Cb(kt, qt): return CB + (kt * 2 + qt) * 4
def Ob(dt, qt): return OR + (((dt // 2) * 2 + qt) * 2 + dt % 2) * 4
def Sb(b, kt, qt): return SR + b * 16 + (qt * 2 + kt) * 4
def Pb(b, qt): return PR + b * 8 + qt * 4
def ring(i): return RG + (i % NRING) * 4
MF = "v_mfma_f32_16x16x32_bf16"

def qk_mfmas(b, fr):
    out = []
    for kt in range(2):
        for qt in range(2):
            for ds in range(4):
                d = vr(Sb(b, kt, qt), 4)
                c = vr(Cb(kt, qt), 4) if ds == 0 else d
                out.append((kt * 4 + ds, f"{MF} {d}, {vr(fr(kt*4+ds),4)}, {vr(Qf(qt,ds),4)}, {c}"))
    return out
def pv_mfmas(b, fr):
    out = []
    for dt in range(8):
        for qt in range(2):
            d = vr(Ob(dt, qt), 4)
            out.append((dt, f"{MF} {d}, {vr(fr(dt),4)}, {vr(Pb(b,qt),4)}, {d}"))
    return out
def sum_mfmas(b):
    return [f"{MF} {vr(LS+4*qt,4)}, {vr(ONES,4)}, {vr(Pb(b,qt),4)}, {vr(LS+4*qt,4)}" for qt in range(2)]
def sm_ops(b):
    base = SR + b * 16
    exps = [f"v_exp_f32 v{base+e}, v{base+e}" for e in range(16)]
    adds = [f"v_add_f32 v{V_L+e//8}, v{base+e}, v{V_L+e//8}" for e in range(16)]
    cvts = [f"v_cvt_pk_bf16_f32 v{PR+b*8+i}, v{base+2*i}, v{base+2*i+1}" for i in range(8)]
    return exps, adds, cvts

def xgroup(e, op, r, t):
    e(f"v_mov_b32 v{t}, v{r}\nv_permlane16_swap_b32 v{t}, v{r}\n{op} v{r}, v{t}, v{r}")
    e(f"v_mov_b32 v{t}, v{r}\nv_permlane32_swap_b32 v{t}, v{r}\n{op} v{r}, v{t}, v{r}")

def mask_ops(e):
    for r in range(4):
        m = sr(sMASK + 2 * r, 2)
        e(f"v_cndmask_b32 v{Cb(0,0)+r}, v{Cb(0,0)+r}, v{V_NINF}, {m}")
        e(f"v_cndmask_b32 v{Cb(1,1)+r}, v{Cb(1,1)+r}, v{V_NINF}, {m}")
        e(f"v_mov_b32 v{Cb(1,0)+r}, v{V_NINF}")

def gen_k2(name="k2_kernel", ts=False, store_mod="sc1", D=8, force_fb=False, mk=3):
    a = Asm(); e = a.e
    khead(a, name)
    if ts: ts_start(a)
    e(f"s_cmp_ge_u32 s2, 256\ns_cbranch_scc1 L_{name}_end")
    e(f"s_load_dwordx2 s[18:19], s[0:1], {KA_WS}")
    code_prefetch(a, name, 242, 241)
    e("v_lshrrev_b32 v1, 6, v0\nv_and_b32 v0, 63, v0\nv_readfirstlane_b32 s3, v1")
    e(f"s_and_b32 s{sH}, s2, 31\ns_lshr_b32 s{sP}, s2, 5\ns_and_b32 s{sW4}, s3, 3\ns_lshr_b32 s{sGRP}, s3, 2")
    e(f"v_lshlrev_b32 v{V_L16}, 4, v0")
    e(f"s_lshl_b32 s4, s{sP}, 1\ns_sub_u32 s{sJL}, 32, s4\ns_lshl_b32 s4, s{sP}, 2")
    e(f"s_add_u32 s5, s4, 3\ns_sub_u32 s5, s5, s{sW4}\ns_sub_u32 s6, 60, s4\ns_add_u32 s6, s6, s{sW4}")
    e(f"s_cmp_eq_u32 s{sGRP}, 0\ns_cselect_b32 s{sT}, s6, s5\ns_mov_b32 s49, s6")
    e(f"s_lshl_b32 s7, s{sH}, 19")
    e(f"s_lshl_b32 s8, s{sT}, 13\ns_add_u32 s8, s8, s7\ns_add_u32 s9, s8, 4096")
    e(f"s_lshl_b32 s12, s{sT}, 7\ns_add_u32 s12, s12, {WS_G}")
    e(f"v_and_b32 v{V_T+1}, 15, v0\nv_lshlrev_b32 v{V_T+2}, 2, v{V_T+1}")
    e("s_waitcnt lgkmcnt(0)")
    srd(a, S_WS, 18, WS_SIZE); srd(a, S_DMA, 18, WS_SIZE)
    e(f"s_cmp_eq_u32 s{sGRP}, 0\ns_cbranch_scc0 L_{name}_g2")
    for grp in range(2):
        if grp: a.label(f"L_{name}_g2")
        gen_path(a, f"{name}_g{grp+1}", grp, ts, store_mod, D, force_fb, mk)
    a.label(f"L_{name}_end")
    e("s_endpgm")
    lines = fixup(a.lines, [name])
    return "\n".join(lines) + "\n" + kdesc(name, 256, 100) + "\n"

def gen_path(a, nm, grp, ts, store_mod, D, force_fb, mk):
    e = a.e
    WSR = f"s[{S_WS}:{S_WS+3}]"; DMR = f"s[{S_DMA}:{S_DMA+3}]"
    sDW = 50
    def dma_ops(m0src, sv=None):
        sv = sv or f"s{sV}"
        o = [f"s_mov_b32 m0, {m0src}"]
        o += [f"buffer_load_dwordx4 v{V_L16}, {DMR}, s{sK} offen offset:{i*1024} lds" for i in range(4)]
        o += [f"s_add_u32 m0, {m0src}, 16384"]
        o += [f"buffer_load_dwordx4 v{V_L16}, {DMR}, {sv} offen offset:{i*1024} lds" for i in range(4)]
        o += [f"s_add_u32 s{sK}, s{sK}, 16384\ns_add_u32 s{sV}, s{sV}, 16384"]
        return o
    K0 = (NSLOT - 1) * SLOT
    def q_loads():
        for i in range(8):
            e(f"buffer_load_dwordx4 {vr(QR+4*i,4)}, v{V_L16}, {WSR}, s{8+i//4} offen offset:{(i%4)*1024}")
    def g_loads():
        for qt in range(2):
            e(f"buffer_load_dword v{V_G+qt}, v{V_T+2}, {WSR}, s12 offen offset:{qt*64}")
    if grp:
        e(f"s_lshl_b32 s13, s{sW4}, 11\ns_add_u32 m0, s13, {K0}\ns_add_u32 s13, s13, s7\ns_add_u32 s13, s13, {WS_KF}")
        for i in range(2): e(f"buffer_load_dwordx4 v{V_L16}, {DMR}, s13 offen offset:{i*1024} lds")
        q_loads()
        e(f"s_lshl_b32 s{sWOFF}, s{sW4}, 12")
        e(f"s_add_u32 s{sK}, s7, {WS_KF + 8192}\ns_add_u32 s{sK}, s{sK}, s{sWOFF}")
        e(f"s_add_u32 s{sV}, s7, {WS_VF - 8192}\ns_add_u32 s{sV}, s{sV}, s{sWOFF}")
        e(f"s_cmp_lt_u32 s{sW4}, 2\ns_cselect_b32 s13, 8192, 0\ns_add_u32 s13, s13, s{sV}")
        for x in dma_ops(f"s{sWOFF}", "s13"): e(x)
        g_loads()
        e(f"s_add_u32 s{sDW}, s{sWOFF}, {K0}")
    else:
        q_loads(); g_loads()
    if ts and mk == 0: ts_mark(a)
    e(f"s_mov_b32 s{sRD}, 0\ns_mov_b32 s{sNB}, 1\ns_mov_b32 s{sREM}, s{sT}\ns_mov_b32 s{sFLAG}, 0")
    e(f"v_mov_b32 v{V_RD}, v{V_L16}\nv_add_u32 v{V_RN}, {K0}, v{V_L16}\nv_mov_b32 v{V_NINF}, 0xff800000")
    e(f"v_lshrrev_b32 v{V_T}, 4, v0\nv_lshlrev_b32 v{V_T}, 2, v{V_T}")
    for r in range(4):
        e(f"v_cmp_gt_u32 {sr(sMASK+2*r,2)}, v{V_T}, v{V_T+1}")
        if r < 3: e(f"v_add_u32 v{V_T}, 1, v{V_T}")
    nextaddr = [f"s_add_u32 s{sRD}, s{sRD}, {SLOT}", f"s_cmp_eq_u32 s{sRD}, {NSLOT*SLOT}\ns_cselect_b32 s{sRD}, 0, s{sRD}", f"v_add_u32 v{V_RN}, s{sRD}, v{V_L16}"]
    bar = (f"s_waitcnt vmcnt({8*(NSLOT-3)})\n" if grp else "") + "s_barrier"
    def bar_post():
        o = [f"v_mov_b32 v{V_RD}, v{V_RN}"]
        if grp:
            o.append(f"s_add_u32 s15, s{sNB}, {NSLOT-2}\ns_cmp_gt_u32 s15, s{sJL}\ns_cselect_b32 s{S_DMA+2}, 0, s{S_DMA+2}")
            o += dma_ops(f"s{sDW}")
            o.append(f"s_add_u32 s{sDW}, s{sDW}, {SLOT}\ns_cmp_ge_u32 s{sDW}, {NSLOT*SLOT}\ns_cselect_b32 s{sDW}, s{sWOFF}, s{sDW}")
        o.append(f"s_add_u32 s{sNB}, s{sNB}, 1")
        return o
    for r in range(16): e(f"v_mov_b32 v{CB+r}, 0")
    e(f"s_cmp_eq_u32 s{sT}, 0\ns_cbranch_scc0 L_{nm}_nomask0")
    mask_ops(e)
    a.label(f"L_{nm}_nomask0")
    for r in range(64): e(f"v_mov_b32 v{OR+r}, 0")
    for r in range(8): e(f"v_mov_b32 v{PR+8+r}, 0\nv_mov_b32 v{LS+r}, 0")
    for r in range(4): e(f"v_mov_b32 v{ONES+r}, 0x3f803f80")
    if ts and mk == 1: ts_mark(a)
    e((f"s_waitcnt vmcnt(2)\n" if grp else "") + "s_barrier")
    if ts and mk == 2: ts_mark(a)
    def foff(i):
        st, k = divmod(i, 16)
        return (st * 8192 + k * 1024) if k < 8 else (16384 + st * 8192 + (k - 8) * 1024)
    def rd(i): return f"ds_read_b128 {vr(ring(i),4)}, v{V_RN if i >= 32 else V_RD} offset:{foff(i % 32)}"
    assert D <= 8
    for i in range(8): e(f"ds_read_b128 {vr(ring(8+i),4)}, v{V_RN} offset:{i*1024}")
    for i in range(D): e(rd(i))
    def late_dma(j):
        if grp:
            e(f"s_add_u32 s14, s{sWOFF}, {j*SLOT}")
            for x in dma_ops("s14"): e(x)
    late_dma(1)
    for _, x in qk_mfmas(0, lambda i: ring(8 + i)): e(x)
    late_dma(2)
    def rowmax(dst, b, qt, acc=False):
        s = SR + b * 16 + qt * 8
        e(f"v_max3_f32 v{dst}, v{s}, v{s+1}, " + (f"v{dst}" if acc else f"v{s+1}"))
        for i in range(1, 4): e(f"v_max3_f32 v{dst}, v{s+2*i}, v{s+2*i+1}, v{dst}")
    def set_c():
        for qt in range(2):
            for kt in range(2):
                for r in range(4): e(f"v_sub_f32 v{Cb(kt,qt)+r}, 0, v{V_T+4+qt}")
    for qt in range(2): rowmax(V_T + 4 + qt, 0, qt)
    for qt in range(2): xgroup(e, "v_max_f32", V_T + 4 + qt, V_T + 6 + qt)
    set_c()
    for i in range(16): e(f"v_sub_f32 v{SR+i}, v{SR+i}, v{V_T+4+i//8}")
    late_dma(3)
    if ts and mk == 3: ts_mark(a)
    def step(st, tailops=()):
        mf = qk_mfmas(1 - st, lambda i: ring(st * 16 + i)) + [(8 + f, x) for f, x in pv_mfmas(1 - st, lambda i: ring(st * 16 + 8 + i))]
        main = []
        for m, (f, x) in enumerate(mf):
            if m % 8 == 0: x += " ; also " + ",".join(vr(ring(st*16+f+j), 4) for j in range(1, 4))
            main.append(x)
        main += sum_mfmas(1 - st)
        exps, _, cvts = sm_ops(st)
        fill = [(2 * i, exps[i]) for i in range(16)] + [(4 * i + 3, cvts[i]) for i in range(8)]
        if st == 0:
            for i, x in enumerate(nextaddr): fill.append((3 + 8 * i, x))
        for k in range(16):
            tgt = st * 16 + k + D
            pos = 4 * (k // 2) + 1
            if tgt == 32:
                fill.append((pos - 2, bar))
                for i, x in enumerate(bar_post()): fill.append((pos + 2 + i, x))
            fill.append((pos, rd(tgt)))
        for i, x in enumerate(tailops): fill.append((32 + i, x))
        fill = [(min(p, 33), x) for p, x in fill]
        fill.sort(key=lambda t: t[0])
        for x in interleave(main, fill): e(x)
    e(f"s_cmp_lt_u32 s{sREM}, 3\ns_cbranch_scc1 L_{nm}_chk")
    e(".p2align 6")
    a.label(f"L_{nm}_loop")
    step(0, [f"s_sub_u32 s{sREM}, s{sREM}, 2"])
    step(1, ["s_nop 0", f"s_cmp_ge_u32 s{sREM}, 3"])
    e(f"s_cbranch_scc1 L_{nm}_loop")
    a.label(f"L_{nm}_chk")
    e(f"s_cmp_eq_u32 s{sREM}, 0\ns_cbranch_scc1 L_{nm}_tail0")
    e(f"s_cmp_eq_u32 s{sREM}, 1\ns_cbranch_scc0 L_{nm}_chk1")
    mask_ops(e)
    a.label(f"L_{nm}_chk1")
    step(0)
    e(f"s_cmp_eq_u32 s{sREM}, 1\ns_cbranch_scc1 L_{nm}_tail1")
    mask_ops(e)
    step(1)
    def sm_pv(b, fr):
        main = [x for _, x in pv_mfmas(1 - b, fr)] + sum_mfmas(1 - b)
        exps, _, cvts = sm_ops(b)
        fill = [(i, exps[i]) for i in range(16)] + [(2 * i + 3, cvts[i]) for i in range(8)]
        fill.sort(key=lambda t: t[0])
        for x in interleave(main, fill): e(x)
    a.label(f"L_{nm}_tail0")
    for k in range(16): e(f"ds_read_b128 {vr(ring(k),4)}, v{V_RD} offset:{16384 + k*1024}")
    sm_pv(0, lambda i: ring(i))
    for x in nextaddr + [bar] + bar_post(): e(x)
    for x in [x for _, x in pv_mfmas(0, lambda i: ring(8 + i))] + sum_mfmas(0): e(x)
    e(f"s_branch L_{nm}_epi")
    a.label(f"L_{nm}_tail1")
    for k in range(8): e(f"ds_read_b128 {vr(ring(k),4)}, v{V_RD} offset:{24576 + k*1024}")
    sm_pv(1, lambda i: ring(i))
    e(bar)
    for k in range(8): e(f"ds_read_b128 {vr(ring(8+k),4)}, v{V_RN} offset:{16384 + k*1024}")
    for x in bar_post(): e(x)
    for x in [x for _, x in pv_mfmas(1, lambda i: ring(8 + i))] + sum_mfmas(1): e(x)
    def epilogue(check):
        if check:
            e(f"v_add_f32 v{V_T+7}, v{LS}, v{LS+4}")
            e(f"v_cmp_nle_f32 vcc, v{V_T+7}, v{V_T+3}")
            e(f"s_cmp_lg_u64 vcc, 0")
            if force_fb: e("s_cmp_eq_u32 s2, s2")
            e(f"s_cselect_b32 s{sFLAG}, 1, 0\ns_cbranch_scc1 L_{nm}_post")
        for qt in range(2):
            e(f"v_rcp_f32 v{V_T+4+qt}, v{LS+4*qt}\nv_sub_f32 v{V_T+6}, 1.0, v{V_G+qt}\nv_mul_f32 v{V_T+4+qt}, v{V_T+4+qt}, v{V_T+6}")
        e(f"s_lshr_b32 s4, s{sT}, 1\ns_mul_i32 s4, s4, {144*4096}\ns_lshl_b32 s5, s{sH}, 14\ns_add_u32 s4, s4, s5\ns_and_b32 s5, s{sT}, 1\ns_lshl_b32 s5, s5, 11\ns_add_u32 s4, s4, s5\ns_add_u32 s4, s4, {WS_CTX}")
        for t in range(4):
            for qt in range(2):
                o = Ob(2 * t, qt)
                for i in range(8): e(f"v_mul_f32 v{o+i}, v{V_T+4+qt}, v{o+i}")
                for i in range(4): e(f"v_cvt_pk_bf16_f32 v{o+i}, v{o+2*i}, v{o+2*i+1}")
                e(f"buffer_store_dwordx4 {vr(o,4)}, v{V_L16}, {WSR}, s4 offen offset:{qt*1024} {store_mod}")
            if t < 3: e("s_add_u32 s4, s4, 4096")
    a.label(f"L_{nm}_epi")
    if ts: ts_mid(a)
    e(f"v_mov_b32 v{V_T+3}, {f32hex(2.0**30)}")
    epilogue(True)
    a.label(f"L_{nm}_post")
    e(f"s_cmp_gt_u32 s{sNB}, s{sJL}\ns_cbranch_scc1 L_{nm}_postdone")
    for x in [bar] + bar_post()[1:]: e(x)
    e(f"s_branch L_{nm}_post")
    a.label(f"L_{nm}_postdone")
    e(f"s_cmp_eq_u32 s{sFLAG}, 0\ns_cbranch_scc1 L_{nm}_nofb")
    def ld8(base, so0, so1):
        for i in range(8): e(f"buffer_load_dwordx4 {vr(ring(base+i),4)}, v{V_L16}, {WSR}, {so0 if i < 4 else so1} offen offset:{(i%4)*1024}")
    for r in range(16): e(f"v_mov_b32 v{CB+r}, 0")
    e(f"v_mov_b32 v{V_T+4}, v{V_NINF}\nv_mov_b32 v{V_T+5}, v{V_NINF}")
    e(f"s_add_u32 s10, s7, {WS_KF}\ns_mov_b32 s{sREM}, s{sT}")
    a.label(f"L_{nm}_fb1")
    e("s_add_u32 s11, s10, 4096")
    ld8(0, "s10", "s11")
    e(f"s_cmp_eq_u32 s{sREM}, 0\ns_cbranch_scc0 L_{nm}_fb1n")
    mask_ops(e)
    a.label(f"L_{nm}_fb1n")
    for _, x in qk_mfmas(0, ring): e(x)
    for qt in range(2): rowmax(V_T + 4 + qt, 0, qt, acc=True)
    e(f"s_add_u32 s10, s10, 8192\ns_cmp_eq_u32 s{sREM}, 0\ns_cbranch_scc1 L_{nm}_fb1d\ns_sub_u32 s{sREM}, s{sREM}, 1\ns_branch L_{nm}_fb1")
    a.label(f"L_{nm}_fb1d")
    for qt in range(2): xgroup(e, "v_max_f32", V_T + 4 + qt, V_T + 6)
    set_c()
    for r in range(64): e(f"v_mov_b32 v{OR+r}, 0")
    for r in range(8): e(f"v_mov_b32 v{LS+r}, 0")
    e(f"s_add_u32 s10, s7, {WS_KF}\ns_add_u32 s12, s7, {WS_VF}\ns_mov_b32 s{sREM}, s{sT}")
    a.label(f"L_{nm}_fb2")
    e("s_add_u32 s11, s10, 4096\ns_add_u32 s13, s12, 4096")
    ld8(0, "s10", "s11"); ld8(8, "s12", "s13")
    e(f"s_cmp_eq_u32 s{sREM}, 0\ns_cbranch_scc0 L_{nm}_fb2n")
    mask_ops(e)
    a.label(f"L_{nm}_fb2n")
    for _, x in qk_mfmas(0, ring): e(x)
    exps, adds, cvts = sm_ops(0)
    for x in exps + cvts: e(x)
    for x in [x for _, x in pv_mfmas(0, lambda i: ring(8 + i))] + sum_mfmas(0): e(x)
    e(f"s_add_u32 s10, s10, 8192\ns_add_u32 s12, s12, 8192\ns_cmp_eq_u32 s{sREM}, 0\ns_cbranch_scc1 L_{nm}_fb2d\ns_sub_u32 s{sREM}, s{sREM}, 1\ns_branch L_{nm}_fb2")
    a.label(f"L_{nm}_fb2d")
    epilogue(False)
    a.label(f"L_{nm}_nofb")
    if grp:
        KV = OR
        e(f"s_lshl_b32 s4, s{sH}, 14\ns_add_u32 s4, s4, {WS_KVP}")
        for i in range(16):
            e(f"buffer_load_dwordx4 {vr(KV+4*i,4)}, v{V_L16}, {WSR}, s4 offen offset:{(i%4)*1024}")
            if i % 4 == 3 and i < 15: e("s_add_u32 s4, s4, 4096")
        PQr = SR; GG = SR + 8
        for b, st_ in enumerate((sT, 49)):
            e(f"s_lshl_b32 s5, s{sH}, 16\ns_lshl_b32 s6, s{st_}, 10\ns_add_u32 s5, s5, s6\ns_add_u32 s5, s5, {WS_PQ}")
            e(f"buffer_load_dwordx4 {vr(PQr+4*b,4)}, v{V_L16}, {WSR}, s5 offen")
            e(f"s_lshl_b32 s12, s{st_}, 7\ns_add_u32 s12, s12, {WS_G}")
            for qt in range(2): e(f"buffer_load_dword v{GG+2*b+qt}, v{V_T+2}, {WSR}, s12 offen offset:{qt*64}")
        for r in range(1, 8):
            for i in range(8): e(f"v_add_f32 v{KV+i}, v{KV+i}, v{KV+8*r+i}")
        for i in range(4): e(f"v_cvt_pk_bf16_f32 v{KV+8+i}, v{KV+2*i}, v{KV+2*i+1}")
        NUM = KV + 16
        for j in range(4):
            e(f"v_mfma_f32_16x16x16_bf16 {vr(NUM+8*j,4)}, {vr(KV+8,2)}, {vr(PQr+2*j,2)}, 0")
            e(f"v_mfma_f32_16x16x16_bf16 {vr(NUM+8*j+4,4)}, {vr(KV+10,2)}, {vr(PQr+2*j,2)}, 0")
        e(f"s_and_b32 s6, s{sH}, 1\ns_lshl_b32 s6, s6, 3\ns_lshr_b32 s5, s{sH}, 1\ns_lshl_b32 s5, s5, 12\ns_add_u32 s6, s6, s5\ns_add_u32 s6, s6, {WS_CTX + 128*4096}")
        for b, st_ in enumerate((sT, 49)):
            e(f"s_lshr_b32 s4, s{st_}, 1\ns_mul_i32 s4, s4, {144*4096}\ns_and_b32 s5, s{st_}, 1\ns_lshl_b32 s5, s5, 11\ns_add_u32 s4, s4, s5\ns_add_u32 s4, s4, s6")
            for qt in range(2):
                j = b * 2 + qt; n = NUM + 8 * j
                e(f"v_add_f32 v{n+4}, {f32hex(1e-6)}, v{n+4}\nv_rcp_f32 v{n+4}, v{n+4}\nv_mul_f32 v{n+4}, v{GG+j}, v{n+4}")
                for i in range(4): e(f"v_mul_f32 v{n+i}, v{n+4}, v{n+i}")
                e(f"v_cvt_pk_bf16_f32 v{n}, v{n}, v{n+1}\nv_cvt_pk_bf16_f32 v{n+1}, v{n+2}, v{n+3}")
                e(f"buffer_store_dwordx2 {vr(n,2)}, v{V_L16}, {WSR}, s4 offen offset:{qt*1024} {store_mod}")
    if ts: ts_end(a, 1, S_WS, 3, vtmp=176)
    e("s_endpgm")
```

```python
from common import *
def gen_k3(name="k3_kernel", PD=4, ts=False, xmap='8x4', korder='blk', rot=2, exp=(), wt=0):
    a = Asm(); e = a.e
    khead(a, name)
    if ts: ts_start(a)
    e(f"s_cmp_ge_u32 s2, 256\ns_cbranch_scc1 L_{name}_end")
    e(f"s_load_dwordx2 s[4:5], s[0:1], {KA_WO}\ns_load_dwordx2 s[6:7], s[0:1], {KA_WO4}")
    e(f"s_load_dwordx2 s[8:9], s[0:1], {KA_OUT}\ns_load_dwordx2 s[10:11], s[0:1], {KA_WS}")
    code_prefetch(a, name, 242, 241)
    e("v_lshrrev_b32 v1, 6, v0\nv_and_b32 v0, 63, v0\nv_readfirstlane_b32 s3, v1")
    if xmap == '4x8':
        e("s_and_b32 s30, s2, 7\ns_lshr_b32 s31, s2, 3\ns_and_b32 s32, s31, 3\ns_lshl_b32 s30, s30, 2\ns_add_u32 s30, s30, s32\ns_lshr_b32 s31, s31, 2")
        e("s_mov_b32 s45, s31")
    else:
        e("s_and_b32 s30, s2, 6\ns_lshl_b32 s30, s30, 2\ns_lshr_b32 s31, s2, 3\ns_and_b32 s32, s31, 7\ns_add_u32 s30, s30, s32\ns_lshr_b32 s31, s31, 3\ns_and_b32 s33, s2, 1\ns_lshl_b32 s33, s33, 2\ns_add_u32 s31, s31, s33")
        e("s_mov_b32 s45, s32")
    e("s_mov_b32 s46, s30\ns_mov_b32 s47, s31")
    if 'same' in exp: e("s_and_b32 s46, s30, 1\ns_and_b32 s47, s31, 1")
    e("v_lshlrev_b32 v2, 4, v0")
    e("v_lshrrev_b32 v3, 3, v0\nv_lshlrev_b32 v3, 10, v3")
    e("v_lshrrev_b32 v4, 4, v0\nv_lshlrev_b32 v4, 1, v4\nv_and_b32 v5, 7, v0\nv_xor_b32 v4, v4, v5\nv_lshlrev_b32 v4, 4, v4")
    e("v_add_u32 v4, v3, v4\nv_add_u32 v5, 7168, v4\nv_add_u32 v6, 14336, v4\nv_add_u32 v7, 21504, v4")
    e("v_lshrrev_b32 v8, 2, v0\nv_lshlrev_b32 v8, 7, v8")
    e("v_lshrrev_b32 v9, 3, v0\nv_and_b32 v9, 3, v9\nv_lshlrev_b32 v9, 5, v9")
    e("v_and_b32 v10, 3, v0\nv_lshlrev_b32 v10, 3, v10\nv_add3_u32 v8, v8, v9, v10")
    e("s_mul_i32 s33, s3, 20480\nv_add_u32 v8, s33, v8")
    e("v_xor_b32 v9, 32, v8\nv_xor_b32 v10, 64, v8\nv_xor_b32 v11, 96, v8")
    e("s_waitcnt lgkmcnt(0)")
    srd(a, 12, 4, 512 * 512 * 2)
    srd(a, 16, 6, 4096 * 512 * 2)
    srd(a, 20, 8, 2048 * 512 * 2)
    srd(a, 24, 10, WS_SIZE)
    wsh, ks = (4, 1) if korder == 'blk' else (0, 8)
    e("s_lshl_b32 s36, s47, 7")
    e(f"s_lshl_b32 s34, s3, {15+wsh}\ns_add_u32 s34, s34, s36")
    e("s_lshl_b32 s35, s3, 16\ns_add_u32 s35, s35, s36")
    e(f"s_mul_i32 s37, s46, {144*4096}\ns_add_u32 s37, s37, {WS_CTX}\ns_lshl_b32 s39, s3, 13\ns_add_u32 s38, s37, s39\ns_add_u32 s38, s38, {128*4096}\ns_lshl_b32 s39, s3, {12+wsh}\ns_add_u32 s37, s37, s39")
    if wt:
        e(f"s_mul_i32 s34, s47, {144*4096}\ns_add_u32 s34, s34, {WS_WT}\ns_lshl_b32 s39, s3, 13\ns_add_u32 s35, s34, s39\ns_add_u32 s35, s35, {128*4096}\ns_lshl_b32 s39, s3, {12+wsh}\ns_add_u32 s34, s34, s39")
    e(f"s_mul_i32 s48, s45, {rot}\ns_and_b32 s48, s48, 15")
    ACC = 64; CF = 128; WF = 208
    NS = 18; NSLOT = 5
    vm = VmTrack()
    def loads(idx):
        slot = idx % NSLOT
        e(f"s_add_u32 m0, s33, {slot*4096}")
        if idx < 16:
            e(f"s_mul_i32 s49, s48, {ks*(4096 if wt else 32768)}\ns_add_u32 s49, s49, s34\ns_mul_i32 s50, s48, {ks*4096}\ns_add_u32 s50, s50, s37\ns_add_u32 s48, s48, 1\ns_and_b32 s48, s48, 15")
            rs, so, cs = "s[16:19]", "s49", "s50"
        else:
            rs, so, cs = "s[12:15]", "s35", "s38"
        for i in range(4):
            if wt: e(f"buffer_load_dwordx4 v2, s[24:27], {so} offen offset:{i*1024} lds")
            else: e(f"buffer_load_dwordx4 v{4+i}, {rs}, {so} offen offset:{i*1024} lds")
            vm.issue(('W', idx))
        for i in range(4):
            b = CF + slot * 16 + i * 4
            e(f"buffer_load_dwordx4 {vr(b,4)}, v2, s[24:27], {cs} offen offset:{i*1024}"); vm.issue(('C', idx))
        if idx >= 16: e(f"s_add_u32 s35, s35, {4096 if wt else 32768}\ns_add_u32 s38, s38, 4096")
    for idx in range(PD): loads(idx)
    for idx in range(NS):
        slot = idx % NSLOT
        e(f"s_waitcnt vmcnt({vm.n_after(lambda t: t == ('W', idx))})")
        wb = WF + (idx % 2) * 16
        for n in range(4):
            for hf in range(2):
                e(f"ds_read_b64_tr_b16 {vr(wb+n*4+hf*2,2)}, v{8+n} offset:{slot*4096+hf*2048}")
        if idx + PD < NS: loads(idx + PD)
        for n in range(4):
            for i in range(4):
                d = ACC + (n * 4 + i) * 4
                c = vr(d, 4) if idx else "0"
                e(f"v_mfma_f32_16x16x32_bf16 {vr(d,4)}, {vr(wb+n*4,4)}, {vr(CF+slot*16+i*4,4)}, {c}")
    if ts: ts_mid(a)
    e("v_add_u32 v12, s33, v2")
    for t in range(16):
        e(f"ds_write_b128 v12, {vr(ACC+t*4,4)} offset:{t*1024}")
    e("s_lshr_b32 s41, s3, 1\ns_and_b32 s42, s3, 1")
    e("v_lshrrev_b32 v13, 5, v0\nv_lshlrev_b32 v13, 12, v13")
    e("v_and_b32 v14, 15, v0\nv_lshlrev_b32 v14, 4, v14")
    e("v_and_b32 v15, 16, v0\nv_lshlrev_b32 v15, 5, v15\nv_add3_u32 v13, v13, v14, v15")
    e(f"s_lshl_b32 s43, s42, 13\ns_lshl_b32 s44, s41, 10\ns_add_u32 s43, s43, s44\nv_add_u32 v13, s43, v13\nv_add_u32 v14, {3*20480}, v13\nv_add_u32 v15, {6*20480}, v13")
    e("v_and_b32 v20, 15, v0\nv_lshlrev_b32 v20, 10, v20\nv_lshrrev_b32 v21, 4, v0\nv_lshlrev_b32 v21, 4, v21\nv_add_u32 v20, v20, v21")
    e("s_lshl_b32 s43, s30, 16\ns_lshl_b32 s44, s41, 14\ns_add_u32 s43, s43, s44\ns_lshl_b32 s44, s31, 7\ns_add_u32 s43, s43, s44\ns_lshl_b32 s44, s42, 6\ns_add_u32 s43, s43, s44")
    e("s_waitcnt lgkmcnt(0)\ns_barrier")
    for u in range(8):
        for ee in range(2):
            e(f"ds_read_b128 {vr(128+(u*2+ee)*4,4)}, v{13+u//3} offset:{(u%3)*20480+ee*256}")
    for u in range(1, 8):
        for j in range(8):
            e(f"v_add_f32 v{128+j}, v{128+j}, v{128+u*8+j}")
    for j in range(4):
        e(f"v_cvt_pk_bf16_f32 v{16+j}, v{128+2*j}, v{129+2*j}")
    e("buffer_store_dwordx4 v[16:19], v20, s[20:23], s43 offen")
    if ts: ts_end(a, 2, 24, 3)
    a.label(f"L_{name}_end")
    e("s_endpgm")
    lines = fixup(a.lines, [name])
    return "\n".join(lines) + "\n" + kdesc(name, 256, 100) + "\n"
```

```python
from gen import *
K1 = ("k1_kernel", 256, 512, 163840, k1.gen_k1()); K2 = ("k2_kernel", 256, 512, 163840, k2.gen_k2()); K3 = ("k3_kernel", 256, 512, 163840, k3.gen_k3())
build([K1, K2, K3], "e0.s")
build([K1, K2, K3, K1, K2, K3], "e1.s")
build([K1, K2, K3, K3], "e_k3x2.s")
build([K1, K1, K2, K3], "e_k1x2.s")
build([K1, K2, K2, K3], "e_k2x2.s")
```

```python
import sys
from common import *
import k1, k2, k3, k12, k3b
HEADER = open("gated_mix__linear_attn_block__compressed_kv_cla__prompt.s.ref").read().split("; Override")[0]
def build(parts, path):
    out = HEADER
    for name, grid, block, lds, _ in parts:
        out += f"; @launch kernel={name} grid=({grid},1,1) block=({block},1,1) lds={lds}\n"
    out += '.amdgcn_target "amdgcn-amd-amdhsa--gfx950"\n.text\n'
    seen = set()
    for name, _, _, _, txt in parts:
        if name in seen: continue
        seen.add(name); out += txt
    out += "L_code_end:\n"
    open(path, "w").write(out)
def full(path, ts=False, o1={}, o2={}, o3={}):
    build([("k1_kernel", 256, 512, 163840, k1.gen_k1(ts=ts, **o1)),
           ("k2_kernel", 256, 512, 163840, k2.gen_k2(ts=ts, **o2)),
           ("k3_kernel", 256, 512, 163840, k3.gen_k3(ts=ts, **o3))], path)
def fused(path, ts=False, o12={}, o3={}):
    build([("k12_kernel", 256, 512, 163840, k12.gen_k12(ts=ts, **o12)),
           ("k3_kernel", 256, 512, 163840, k3b.gen_k3(ts=ts, tsidx=1, **o3))], path)
if __name__ == "__main__":
    fused("fu_ts.s", ts=True)
    fused("fu_fb.s", o12=dict(force_fb=True))
    fused("fu.s")
    full("full_ts.s", ts=True)
    full("full_ts2.s", ts=2)
    full("full_fb.s", ts=False, o2=dict(force_fb=True))
    full("gated_mix__linear_attn_block__compressed_kv_cla__prompt.s")
```

```python
from common import *
import math
import k1 as K1
import k2 as K2
from k1 import f32hex, LOG2E, V_LANE16, V_A, V_W, V_P, V_RA, V_RW, V_RP, AF, WF, RING, TMP, ACC1, ACC2, V_PF, V_PFD, V_PF2
from k2 import (V_L16, V_RD, V_RN, V_G, QR, CB, OR, SR, PR, RG, V_NINF, LS, ONES, NSLOT, SLOT, MF, Cb, Ob, Pb, ring,
                qk_mfmas, pv_mfmas, sum_mfmas, sm_ops, xgroup)
WS_KVA = 84 * MB
FLO = 16384
WS_PQ2 = 80 * MB
S_X, S_CKV, S_W1, S_W2, S_WS, S_GT, S_DBG, S_DMA = 28, 32, 36, 40, 44, 48, 16, 32
sA, sW, sP, sMA, sMW, sST, sAX = 52, 53, 54, 55, 56, 60, 25
sH, sJ, sRQ, sCH = 20, 21, 22, 23
sT, sJL, sREM, sNB = 24, 25, 26, 27
sK, sV, sRD, sWOFF, sFLAG, sDW = 36, 37, 38, 39, 48, 50
sMASK = 52
V_T = 8
V_FO = 9
V_FL = 30
V_ONE = 31; V_DO = 29; V_DV = 93
sPST = 67; sFB = 51
SP0 = 3

def mask_ops(e):
    for r in range(4):
        m = sr(sMASK + 2 * r, 2)
        e(f"v_cndmask_b32 v{Cb(0,0)+r}, v{Cb(0,0)+r}, v{V_NINF}, {m}")
        e(f"v_cndmask_b32 v{Cb(1,1)+r}, v{Cb(1,1)+r}, v{V_NINF}, {m}")
        e(f"v_mov_b32 v{Cb(1,0)+r}, v{V_NINF}")

def gen_k12(name="k12_kernel", ts=False, **o):
    a = Asm(); e = a.e
    khead(a, name)
    if ts: ts_start(a)
    e(f"s_cmp_ge_u32 s2, 256\ns_cbranch_scc1 L_{name}_end")
    e(f"s_load_dwordx4 s[4:7], s[0:1], {KA_X}")
    e(f"s_load_dwordx4 s[8:11], s[0:1], {KA_CKV}")
    e(f"s_load_dwordx4 s[12:15], s[0:1], {KA_WUK}")
    e(f"s_load_dwordx4 s[68:71], s[0:1], {KA_DBG}")
    e(f"s_load_dwordx2 s[72:73], s[0:1], {KA_GATE}")
    e(f"s_load_dwordx2 s[76:77], s[0:1], {KA_WO}\ns_load_dwordx2 s[78:79], s[0:1], {KA_WO4}")
    code_prefetch(a, name, V_PF, V_PFD)
    e("v_lshrrev_b32 v1, 6, v0\nv_and_b32 v0, 63, v0\nv_readfirstlane_b32 s3, v1")
    e(f"s_and_b32 s{sH}, s2, 31\ns_lshr_b32 s{sJ}, s2, 5\ns_and_b32 s{sRQ}, s3, 3\ns_lshr_b32 s{sCH}, s3, 2")
    e(f"v_lshlrev_b32 v{V_LANE16}, 4, v0")
    T = K1.V_T
    e(f"v_lshrrev_b32 v{T}, 3, v0\nv_lshlrev_b32 v{T}, 10, v{T}")
    e(f"v_lshrrev_b32 v{T+1}, 4, v0\nv_and_b32 v{T+2}, 7, v0\nv_xor_b32 v{T+1}, v{T+1}, v{T+2}\nv_lshlrev_b32 v{T+1}, 4, v{T+1}")
    e(f"v_add_u32 v{V_A}, v{T}, v{T+1}\nv_xor_b32 v{V_A+1}, 64, v{V_A}\nv_add_u32 v{V_A+1}, 7168, v{V_A+1}")
    e(f"v_add_u32 v{V_A+2}, 14336, v{V_A}\nv_add_u32 v{V_A+3}, 14336, v{V_A+1}")
    e(f"v_lshrrev_b32 v{T}, 4, v0\ns_and_b32 s24, s22, 1\ns_lshl_b32 s24, s24, 2\nv_or_b32 v{T+1}, s24, v{T}\nv_lshlrev_b32 v{T+1}, 1, v{T+1}")
    e(f"v_and_b32 v{T+2}, 15, v0\nv_xor_b32 v{T+1}, v{T+1}, v{T+2}\nv_lshlrev_b32 v{T+1}, 4, v{T+1}")
    e(f"v_lshlrev_b32 v{T}, 13, v{T}\ns_lshl_b32 s24, s22, 16\nv_add3_u32 v{V_W}, v{T}, v{T+1}, s24\nv_add_u32 v{V_W+1}, {4*8192-1024}, v{V_W}")
    e(f"s_lshl_b32 s{sA}, s{sJ}, 18\ns_lshl_b32 s24, s3, 15\ns_add_u32 s{sA}, s{sA}, s24")
    e(f"s_lshl_b32 s{sW}, s20, 8\ns_lshl_b32 s{sP}, s20, 5")
    e(f"s_lshl_b32 s{sMA}, s3, 12\ns_add_u32 s{sMA}, s{sMA}, 65536\ns_lshl_b32 s{sMW}, s3, 11")
    e("s_waitcnt lgkmcnt(0)")
    srd(a, S_CKV, 8, 2048 * 1024)
    e("s_cmp_eq_u32 s23, 0")
    e(f"s_cselect_b32 s{S_W1}, s12, s14\ns_cselect_b32 s{S_W1+1}, s13, s15\ns_and_b32 s{S_W1+1}, s{S_W1+1}, 0xffff\ns_mov_b32 s{S_W1+2}, {512*8192}\ns_mov_b32 s{S_W1+3}, 0x20000")
    e(f"s_cmp_eq_u32 s23, 0\ns_cbranch_scc0 L_{name}_ch1")
    for ch in range(2):
        if ch: a.label(f"L_{name}_ch1")
        phase1(a, f"{name}_c{ch}", ch, ts, o)
        phase2(a, f"{name}_c{ch}", ch, ts, o)
    a.label(f"L_{name}_end")
    e("s_endpgm")
    lines = fixup(a.lines, [name])
    return "\n".join(lines) + "\n" + kdesc(name, 256, 100) + "\n"

def kv_dma(m0src, sv=None, mod="sc1"):
    DMR = f"s[{S_DMA}:{S_DMA+3}]"
    sv = sv or f"s{sV}"
    o = [f"s_mov_b32 m0, {m0src}"]
    o += [(f"buffer_load_dwordx4 v{V_L16}, {DMR}, s{sK} offen offset:{i*1024} {mod} lds", 'KV') for i in range(4)]
    o += [f"s_add_u32 m0, {m0src}, 16384"]
    o += [(f"buffer_load_dwordx4 v{V_L16}, {DMR}, {sv} offen offset:{i*1024} {mod} lds", 'KV') for i in range(4)]
    o += [f"s_add_u32 s{sK}, s{sK}, 16384\ns_add_u32 s{sV}, s{sV}, 16384"]
    return o

def phi(e, r0, n, tt=96):
    for i in range(n): e(f"v_min_f32 v{tt+i}, 0, v{r0+i}")
    for i in range(n): e(f"v_mul_f32 v{tt+i}, s72, v{tt+i}")
    for i in range(n): e(f"v_exp_f32 v{tt+i}, v{tt+i}")
    for i in range(n): e(f"v_max_f32 v{r0+i}, 0, v{r0+i}")
    for i in range(n): e(f"v_add_f32 v{r0+i}, s73, v{r0+i}")
    for i in range(n): e(f"v_add_f32 v{r0+i}, v{tt+i}, v{r0+i}")

def phase1(a, nm, ch, ts, o):
    e = a.e
    vm = VmTrack()
    pf, pf1_at, pf2_at = o.get('pf', 2), o.get('pf1_at', 1), o.get('pf2_at', 8)
    st0, stn = o.get('st0', 16), o.get('stn', 2)
    PUB, POLL, CHK = o.get('pub', 26), o.get('poll', 29), o.get('chk', 31)
    GPUB = 3; DPOLL = 11; DCHK = 15
    ldmod = o.get('ldmod', 'sc1')
    WSR = f"s[{S_WS}:{S_WS+3}]"; DBR = f"s[{S_DBG}:{S_DBG+3}]"
    NH = 32
    T = K1.V_T
    def dmaW(u):
        if u >= NH: return []
        out = []
        slot = (u % 4) * 16384
        if u < 16 or ch == 0:
            rs = S_W1 if u < 16 else S_W2
            so = (u % 16) * 32 * 8192
            out.append(f"s_add_u32 m0, s{sMW}, {slot}\ns_add_u32 s64, s{sW}, {so}")
            for i in range(2):
                out.append((f"buffer_load_dwordx4 v{V_W+i}, s[{rs}:{rs+3}], s64 offen offset:{i*1024} lds", ('W', u)))
        else:
            out.append(f"s_add_u32 m0, s65, {slot}\ns_mov_b32 s64, s{sP}\ns_add_u32 s{sP}, s{sP}, s{sPST}")
            out.append((f"buffer_load_dwordx4 v{V_P}, s[{S_W2}:{S_W2+3}], s64 offen lds", ('W', u)))
        return out
    def dmaA(s, half):
        if s >= 16: return []
        rs, so = (S_CKV, sA) if s < 8 else (S_X, sAX)
        out = [f"s_add_u32 m0, s{sMA}, {(s % 3) * 32768}\ns_add_u32 s66, s{so}, {(s % 8) * 128}"]
        for i in (2 * half, 2 * half + 1):
            out.append((f"buffer_load_dwordx4 v{V_A+i}, s[{rs}:{rs+3}], s66 offen offset:{i*1024} lds", ('A', s)))
        return out
    def emit(x):
        if isinstance(x, tuple):
            if x[1][0] == 'S': assert any(l.startswith(f"v_cvt_pk_bf16_f32 v{ACC1+4*x[1][1]+3},") for l in a.lines[line0:]), x
            e(x[0]); vm.issue(x[1])
        else: e(x)
    line0 = len(a.lines)
    for x in dmaW(0) + dmaA(0, 0) + dmaA(0, 1): emit(x)
    for x in dmaW(1) + dmaA(1, 0) + dmaW(2) + dmaA(1, 1): emit(x)
    srd(a, S_X, 4, 2048 * 1024); srd(a, S_WS, 70, WS_SIZE); srd(a, S_DBG, 68, 256)
    if ch == 0: srd(a, S_W2, 10, 512 * 8192)
    else:
        e(f"s_cmp_eq_u32 s{sRQ}, 3\ns_cselect_b32 s{S_W2}, s72, s6\ns_cselect_b32 s{S_W2+1}, s73, s7\ns_mov_b32 s{S_W2+2}, {512*3072}\ns_cselect_b32 s{S_W2+2}, 1024, s{S_W2+2}")
        e(f"s_cselect_b32 s{sP}, 0, s{sP}\ns_cselect_b32 s{sPST}, 64, {32*3072}\ns_cselect_b64 vcc, -1, 0\ns_and_b32 s{S_W2+1}, s{S_W2+1}, 0xffff\ns_mov_b32 s{S_W2+3}, 0x20000")
        e("s_lshl_b32 s65, s22, 10\ns_add_u32 s65, s65, 8192")
        e(f"v_lshrrev_b32 v{T}, 1, v0\nv_lshrrev_b32 v{T+1}, 2, v0\nv_and_b32 v{T+1}, 4, v{T+1}\nv_xor_b32 v{T}, v{T}, v{T+1}\nv_mul_u32_u24 v{T}, 3072, v{T}")
        e(f"v_and_b32 v{T+1}, 1, v0\nv_lshlrev_b32 v{T+1}, 4, v{T+1}\ns_lshl_b32 s24, s22, 10\nv_add3_u32 v{V_P}, v{T}, v{T+1}, s24")
        e(f"v_and_b32 v{T}, 48, v0\nv_cndmask_b32 v{V_P}, v{V_P}, v{T}, vcc")
    e(f"s_sub_u32 s26, 15, s{sJ}")
    e(f"s_lshl_b32 s{sAX}, s{26 if ch == 0 else sJ}, 17\ns_lshl_b32 s24, s{sRQ}, 15\ns_add_u32 s{sAX}, s{sAX}, s24")
    e(f"v_and_b32 v{T}, 15, v0\nv_lshrrev_b32 v{T+1}, 1, v{T}\nv_lshrrev_b32 v{T+2}, 4, v0\nv_xor_b32 v{T+1}, v{T+1}, v{T+2}\nv_lshlrev_b32 v{T+1}, 4, v{T+1}")
    e(f"v_lshlrev_b32 v{T}, 7, v{T}\ns_lshl_b32 s24, s22, 13\ns_add_u32 s24, s24, 65536\nv_add3_u32 v{V_RA}, v{T}, v{T+1}, s24")
    e(f"v_xor_b32 v{V_RA+1}, 64, v{V_RA}\nv_add_u32 v{V_RA+2}, 0x10000, v{V_RA}\nv_add_u32 v{V_RA+3}, 0x10000, v{V_RA+1}")
    e(f"v_lshrrev_b32 v{T}, 4, v0\nv_bfe_u32 v{T+1}, v0, 2, 2\nv_lshl_add_u32 v{T+2}, v{T}, 3, v{T+1}\nv_lshlrev_b32 v{T+2}, 8, v{T+2}")
    e(f"v_and_b32 v{T+3}, 1, v{T}\nv_lshl_add_u32 v{T+3}, v{T+3}, 2, v{T+1}\nv_lshlrev_b32 v{T+3}, 5, v{T+3}")
    e(f"v_and_b32 v{T+4}, 3, v0\nv_lshlrev_b32 v{T+4}, 3, v{T+4}\nv_add3_u32 v{V_RW}, v{T+2}, v{T+3}, v{T+4}")
    for n in range(1, 8): e(f"v_xor_b32 v{V_RW+n}, {32*n}, v{V_RW}")
    e(f"v_lshlrev_b32 v{T+2}, 8, v{T}\nv_add3_u32 v{V_RP}, v{T+2}, v{T+3}, v{T+4}\nv_xor_b32 v{V_RP+1}, 128, v{V_RP}")
    e(f"s_lshl_b32 s57, s20, 19\ns_lshl_b32 s24, s21, 2\ns_add_u32 s24, s24, s22\ns_lshl_b32 s24, s24, 14\ns_add_u32 s57, s57, s24")
    base = WS_VF if ch else WS_KF
    for i in range(4): e(f"s_add_u32 s{sST+i}, s57, {base + i*4096}")
    e(f"s_lshl_b32 s{sFB}, s{sH}, 15\ns_add_u32 s{sFB}, s{sFB}, {WS_KVA + FLO}")
    e(f"v_mov_b32 v{V_ONE}, 1\ns_lshl_b32 s24, s{sH}, 2\nv_mov_b32 v{V_DO}, s24")
    if ch == 0:
        t = TMP
        e(f"v_mov_b32 v{t}, 0")
        e(f"s_lshl_b32 s27, s{sJ}, 2\ns_add_u32 s27, s27, s{sRQ}\ns_cmp_eq_u32 s27, 0\ns_cselect_b32 s24, s{sFB}, {WS_SIZE}\nv_lshl_add_u32 v{T}, v0, 2, s24")
        emit((f"buffer_store_dword v{t}, v{T}, {WSR}, 0 offen sc1", ('G', 2)))
        e(f"s_lshl_b32 s24, s{sH}, 2\ns_cmp_eq_u32 s27, 0\ns_cselect_b32 s24, s24, 0x1000\nv_mov_b32 v{V_FO}, s24")
        e(f"s_lshl_b32 s24, s{sJ}, 2\ns_add_u32 s24, s24, s{sFB}\ns_cmp_eq_u32 s{sRQ}, 0\ns_cselect_b32 s24, s24, {WS_SIZE}\nv_mov_b32 v{V_FL}, s24")
    else:
        e(f"v_lshlrev_b32 v{V_FO}, 2, v0")
    def pf_batch(b):
        ptr, size, two = {(0, 0): (10, 0x400000, 1), (0, 1): (10, 0x400000, 1), (0, 2): (4, 0x200000, 0), (0, 3): (6, 0x180000, 0),
                          (1, 0): (78, 0x400000, 1), (1, 1): (78, 0x400000, 1), (1, 2): (76, 0x80000, 0), (1, 3): (76, 0, 0)}[(ch, b)]
        if size == 0: return []
        oo = [f"s_mov_b32 s72, s{ptr}\ns_and_b32 s73, s{ptr+1}, 0xffff\ns_mov_b32 s75, 0x20000\ns_cmp_eq_u32 s22, {b}\ns_cselect_b32 s74, {size}, 0\n"
              + (f"s_lshl_b32 s68, s2, 14\ns_add_u32 s68, s68, {(b % 2) * 8192}" if two else "s_lshl_b32 s68, s2, 13")
              + f"\nv_lshlrev_b32 v{V_PF}, 7, v0\nv_add_u32 v{V_PF}, s68, v{V_PF}"]
        oo.append((f"buffer_load_dword v{V_PFD}, v{V_PF}, s[72:75], 0 offen", ('PF', b)))
        return oo
    def pf_any(tbl):
        for rq in range(4):
            ptr, size, sh, add = tbl[rq]
            if rq == 0: e(f"s_mov_b32 s72, s{ptr}\ns_mov_b32 s73, s{ptr+1}\ns_mov_b32 s74, {size}\ns_lshl_b32 s68, s2, {sh}\ns_add_u32 s68, s68, {add}")
            else: e(f"s_lshl_b32 s69, s2, {sh}\ns_add_u32 s69, s69, {add}\ns_cmp_eq_u32 s{sRQ}, {rq}\ns_cselect_b32 s72, s{ptr}, s72\ns_cselect_b32 s73, s{ptr+1}, s73\ns_cselect_b32 s74, {size}, s74\ns_cselect_b32 s68, s69, s68")
        e(f"s_and_b32 s73, s73, 0xffff\ns_mov_b32 s75, 0x20000\nv_lshlrev_b32 v{V_PF}, 7, v0\nv_add_u32 v{V_PF}, s68, v{V_PF}")
        emit((f"buffer_load_dword v{V_PFD}, v{V_PF}, s[72:75], 0 offen", ('PF', 0)))
    o['_pf_any'] = pf_any
    if o.get('pfmode', 3) == 2 or (o.get('pfmode', 3) == 3 and ch == 1): pf = 0
    if o.get('pfmode', 3) == 1:
        pf = 0
        if ch == 0: pf_any({0: (10, 0x400000, 14, 0), 1: (10, 0x400000, 14, 8192), 2: (4, 0x200000, 13, 0), 3: (6, 0x180000, 13, 0)})
    def acc1(mt, nt):
        if ch == 0: return ACC1 + (((nt // 2) * 4 + mt) * 2 + nt % 2) * 4
        return ACC1 + ((nt * 2 + mt // 2) * 2 + mt % 2) * 4
    if ch == 0:
        tiles2 = [('Q', 4), ('Q', 5), ('Q', 0), ('Q', 1), ('Q', 2), ('Q', 3)]
        def acc2(kind, idx, mt): return ACC2 + (((idx // 2) * 4 + mt) * 2 + idx % 2) * 4
    else:
        tiles2 = [('Q', 6), ('Q', 7), ('G', 3), ('P', 0), ('P', 1), ('P', 2)]
        def acc2(kind, idx, mt):
            if kind == 'Q': return ACC2 + 64 + (mt * 2 + idx % 2) * 4
            return ACC2 + (idx * 4 + mt) * 4
    frags = []
    for u in range(NH):
        slot = (u % 4) * 16384
        ab = AF + (u % 2) * 16
        first = (u % 16 == 0)
        tl = [('W', n) for n in range(8)] if u < 16 else tiles2
        for kind, idx in tl:
            if kind == 'W':
                rd = (lambda d, idx=idx, slot=slot: [f"ds_read_b64_tr_b16 {vr(d+2*hf,2)}, v{V_RW+idx} offset:{slot+ch*8192+hf*1024}" for hf in range(2)])
                wfirst = (ch == 0); accf = (lambda mt, idx=idx: acc1(mt, idx))
            elif kind == 'Q':
                rd = (lambda d, idx=idx, slot=slot: [f"ds_read_b64_tr_b16 {vr(d+2*hf,2)}, v{V_RW+idx} offset:{slot+hf*1024}" for hf in range(2)])
                wfirst = True; accf = (lambda mt, idx=idx: acc2('Q', idx, mt))
            elif kind == 'G':
                rd = (lambda d, idx=idx, slot=slot: [f"ds_read_b128 {vr(d,4)}, v{V_LANE16} offset:{slot+8192+3*1024}", ""])
                wfirst = True; accf = (lambda mt, idx=idx: acc2('G', idx, mt))
            else:
                rd = (lambda d, idx=idx, slot=slot: [f"ds_read_b64_tr_b16 {vr(d+2*hf,2)}, v{V_RP+hf} offset:{slot+8192+idx*1024}" for hf in range(2)])
                wfirst = (idx == 0); accf = (lambda mt, idx=idx: acc2('P', idx, mt))
            def mf(w, mt, accf=accf, wfirst=wfirst, ab=ab, first=first):
                d = vr(accf(mt), 4); A = vr(ab + mt * 4, 4); W = vr(w, 4)
                x, y = (W, A) if wfirst else (A, W)
                return f"{MF} {d}, {x}, {y}, {'0' if first else d}"
            frags.append((u, rd, mf))
    def act_reads(u):
        if u >= NH: return []
        s = u // 2; ks = u % 2; sl = s % 3
        ab = AF + (u % 2) * 16
        reg = V_RA + ks + (2 if sl == 2 else 0)
        off = 32768 if sl == 1 else 0
        return [f"ds_read_b128 {vr(ab+mt*4,4)}, v{reg} offset:{off+mt*2048}" for mt in range(4)]
    def barrier(u):
        pred = lambda tg: tg == ('W', u) or tg == ('A', u // 2) or (u == PUB and tg[0] in ('S', 'G')) or (u == GPUB and tg[0] == 'G')
        if u < NH: e(f"s_waitcnt vmcnt({vm.n_after(pred)}) lgkmcnt(0)\ns_barrier")
        else: e("s_waitcnt lgkmcnt(0)\ns_barrier")
        if o.get('trace'): stamp(u)
    def stamp(i):
        e(f"s_memrealtime s[84:85]\ns_waitcnt lgkmcnt(0)\nv_writelane_b32 v{V_PF2}, s84, {i}")
    def store_kv(j):
        fi = ((j % 4) * 4 + j // 4) if ch == 0 else ((j % 2) * 8 + j // 2)
        return (f"buffer_store_dwordx4 {vr(ACC1+4*j,4)}, v{V_LANE16}, {WSR}, s{sST+fi//4} offen offset:{(fi%4)*1024} {o.get('kvst', 'sc1')}", ('S', j))
    poll = (f"buffer_load_dword v{V_FL}, v{V_FO}, {WSR}, s{sFB} offen sc1", ('F', 0))
    dpoll = (f"buffer_load_dword v{V_DV}, v{V_DO}, {DBR}, 0 offen sc1", ('F', 2))
    def spin(tag, chk, ld):
        e(chk + f"\ns_cbranch_scc1 L_{nm}_{tag}ok")
        e("s_mov_b32 s66, 0x20000")
        a.label(f"L_{nm}_{tag}spin")
        e(f"s_sleep {o.get('sleep', 8)}")
        e(ld)
        e(chk + f"\ns_cbranch_scc1 L_{nm}_{tag}ok")
        e(f"s_sub_u32 s66, s66, 1\ns_cmp_lg_u32 s66, 0\ns_cbranch_scc1 L_{nm}_{tag}spin")
        a.label(f"L_{nm}_{tag}ok")
    def check_clear():
        spin("c", f"v_readfirstlane_b32 s64, v{V_DV}\ns_cmp_lg_u32 s64, 0", dpoll[0])
    def check_flags():
        spin("f", f"v_cmp_eq_u32 vcc, 1, v{V_FL}\ns_and_b32 s64, vcc_lo, 0xff\ns_cmp_eq_u32 s64, 0xff", poll[0])
    NF = len(frags)
    D = RING - 1
    def plan(u):
        G = sum(1 for f in frags if f[0] == u) if u else sum(1 for f in frags if f[0] == 0) - D + 1
        if u == NH: G = D - 1
        nsl = 4 * G
        ops = dmaW(u + 3) + dmaA(u // 2 + 2, u % 2)
        for j in range(16):
            if st0 + j // stn == u: ops.append(store_kv(j))
        if pf:
            u0 = pf1_at if ch == 0 else pf2_at
            if u >= u0 and (u - u0) % pf == 0 and (u - u0) // pf < 4: ops += pf_batch((2, 3, 0, 1)[(u - u0) // pf])
        if u == GPUB and ch == 0: ops = [(f"buffer_store_dword v{V_ONE}, v{V_FO}, {DBR}, 0 offen sc1", ('F', 1))] + ops
        if u == PUB and ch == 0: ops = [(f"buffer_store_dword v{V_ONE}, v{V_FL}, {WSR}, 0 offen sc1", ('F', 1))] + ops
        if u == DPOLL: ops = [dpoll] + ops
        if ch == 1:
            if u == 16:
                ops = ops + [f"s_mov_b32 s{S_DMA}, s{S_WS}\ns_mov_b32 s{S_DMA+1}, s{S_WS+1}\ns_mov_b32 s{S_DMA+2}, {WS_SIZE}\ns_mov_b32 s{S_DMA+3}, 0x20000\n"
                             f"s_lshl_b32 s{sWOFF}, s{sRQ}, 12\ns_lshl_b32 s7, s{sH}, 19\ns_add_u32 s{sK}, s7, s{sWOFF}\ns_add_u32 s{sV}, s{sK}, {WS_VF - 8192}\n"
                             f"s_add_u32 s13, s{sK}, {WS_KF}\ns_cmp_lt_u32 s{sRQ}, 2\ns_cselect_b32 s13, s13, s{sV}\ns_add_u32 s{sK}, s{sK}, {WS_KF + 8192}\n"
                             f"s_add_u32 s14, s{sWOFF}, {SP0*SLOT}\ns_add_u32 s15, s{sWOFF}, {((SP0+1)%NSLOT)*SLOT}"]
            if u == POLL: ops = ops + [poll]
            if u == CHK: ops = ops + [(x[0], ('KV', 0)) if isinstance(x, tuple) else x for x in kv_dma("s14", "s13", ldmod)]
            if u == min(CHK + o.get('kv1', 0), NH): ops = ops + [(x[0], ('KV', 1)) if isinstance(x, tuple) else x for x in kv_dma("s15", None, ldmod)]
        units = []; cur = []
        for x in ops:
            cur.append(x)
            if isinstance(x, tuple): units.append(cur); cur = []
        sch = {}
        n = len(units)
        for i, un in enumerate(units):
            p = min(int((i + (0.25 if ch == 0 else 0.75)) * nsl / n), nsl - 1)
            for x in un[:-1]: sch.setdefault(max(p - 1, 0), []).append(x)
            sch.setdefault(p, []).append(un[-1])
        if cur: sch.setdefault(nsl - 1, []).extend(cur)
        if u:
            for i, x in enumerate(act_reads(u)): sch.setdefault(2 + 3 * i, []).append(x)
        return sch
    barrier(0)
    for x in act_reads(0): e(x)
    for q in range(D):
        for x in frags[q][1](WF + (q % RING) * 4): e(x)
    published = 0
    sch = plan(0); slot = 0
    packs = [f"v_cvt_pk_bf16_f32 v{ACC1+4*j+i}, v{ACC1+8*j+2*i}, v{ACC1+8*j+2*i+1}" for j in range(16) for i in range(4)]
    npacked = 0
    for q in range(NF):
        u, rd, mf = frags[q]
        w = WF + (q % RING) * 4
        nxt = q + D
        reads = []
        need_bar = False
        if nxt < NF:
            if frags[nxt][0] > published: need_bar = True
            reads = frags[nxt][1](WF + (nxt % RING) * 4)
        elif nxt == NF: need_bar = True
        avail = 0
        if u == 15:
            nt = q - 15 * 8
            avail = max((16 * ((nt - 1) // 2) if ch == 0 else 8 * (nt - 1)) if nt >= 1 else 0, 0)
        elif u >= 16: avail = 64
        for mt in range(4):
            if u == 16 and q - 128 >= 2:
                while npacked < 64: e(packs[npacked]); npacked += 1
            e(mf(w, mt))
            if not need_bar and reads and mt in (0, 1): e(reads[mt])
            for x in sch.pop(slot, []): emit(x)
            slot += 1
            k = 0
            while npacked < avail and k < 3: e(packs[npacked]); npacked += 1; k += 1
        if need_bar:
            for sl in sorted(sch):
                for x in sch[sl]: emit(x)
            published += 1
            barrier(published)
            for x in reads: e(x)
            if published == DCHK: check_clear()
            if ch == 1 and published == CHK:
                check_flags()
                if o.get('trace'): stamp(40)
            sch = plan(published); slot = 0
    for sl in sorted(sch):
        for x in sch[sl]: emit(x)
    e(f"s_mov_b32 s70, {f32hex(LOG2E / math.sqrt(128.0))}\ns_mov_b32 s71, s70")
    e(f"s_lshl_b32 s64, s{sRQ}, 14\ns_add_u32 s64, s64, 32768\nv_add_u32 v{T}, s64, v{V_LANE16}")
    def q_out(src, mt, t):
        for i in range(4): e(f"v_pk_mul_f32 {vr(src+2*i,2)}, {vr(src+2*i,2)}, s[70:71]")
        for i in range(4): e(f"v_cvt_pk_bf16_f32 v{src+i}, v{src+2*i}, v{src+2*i+1}")
        e(f"ds_write_b128 v{T}, {vr(src,4)} offset:{mt*4096+t*1024}")
    if ch == 0:
        for t in (2, 0, 1):
            for mt in range(4): q_out(acc2('Q', 2 * t, mt), mt, t)
        e("s_waitcnt lgkmcnt(0)\ns_barrier")
    else:
        for mt in range(4): q_out(acc2('Q', 6, mt), mt, 3)
        GQ = acc2('G', 3, 0)
        for mt in range(4): e(f"v_mul_f32 v{GQ+mt}, {f32hex(-LOG2E)}, v{GQ+4*mt}")
        for mt in range(4): e(f"v_exp_f32 v{GQ+mt}, v{GQ+mt}")
        for mt in range(4): e(f"v_add_f32 v{GQ+mt}, 1.0, v{GQ+mt}")
        for mt in range(4): e(f"v_rcp_f32 v{GQ+mt}, v{GQ+mt}")
        e(f"v_and_b32 v{T+1}, 15, v0\ns_lshl_b32 s64, s{sRQ}, 8\nv_lshl_add_u32 v{T+1}, v{T+1}, 2, s64")
        for mt in range(4): e(f"ds_write_b32 v{T+1}, v{GQ+mt} offset:{mt*64}")
        e(f"s_mov_b32 s72, {f32hex(LOG2E)}\ns_mov_b32 s73, {f32hex(1e-6)}")
        ka, va = acc2('P', 1, 0), acc2('P', 2, 0)
        phi(e, ka, 16)
        for i in range(8): e(f"v_cvt_pk_bf16_f32 v{ka+i}, v{ka+2*i}, v{ka+2*i+1}")
        for i in range(8): e(f"v_cvt_pk_bf16_f32 v{va+i}, v{va+2*i}, v{va+2*i+1}")
        for r in range(4): e(f"v_mov_b32 v{ONES+r}, 0x3f803f80")
        kv = 112; z = 116
        for uu in range(2):
            e(f"{MF} {vr(kv,4)}, {vr(ka+4*uu,4)}, {vr(va+4*uu,4)}, {vr(kv,4) if uu else '0'}")
            e(f"{MF} {vr(z,4)}, {vr(ka+4*uu,4)}, {vr(ONES,4)}, {vr(z,4) if uu else '0'}")
        e(f"s_lshl_b32 s64, s{sRQ}, 11\nv_add_u32 v{T+1}, s64, v{V_LANE16}")
        e(f"ds_write_b128 v{T+1}, {vr(kv,4)} offset:1024\nds_write_b128 v{T+1}, {vr(z,4)} offset:2048")
        e(f"s_waitcnt vmcnt({vm.n_after(lambda tg: tg == ('KV', 0))}) lgkmcnt(0)\ns_barrier")
    o['_acc2'] = acc2
    o['_nkv1'] = vm.n_after(lambda tg: tg == ('KV', 1))
    if o.get('trace'):
        stamp(33)
        e(f"s_lshl_b32 s68, s2, 3\ns_add_u32 s68, s68, s3\ns_lshl_b32 s68, s68, 8\ns_add_u32 s68, s68, {WS_TS + MB}\nv_lshlrev_b32 v{V_PF}, 2, v0")
        e(f"buffer_store_dword v{V_PF2}, v{V_PF}, {WSR}, s68 offen")

def phase2(a, nm, grp, ts, o):
    e = a.e
    D = 8
    force_fb = o.get('force_fb', False)
    ldmod = o.get('ldmod', 'sc1')
    WSR = f"s[{S_WS}:{S_WS+3}]"; DBR = f"s[{S_DBG}:{S_DBG+3}]"
    def dma_ops(m0src): return [x[0] if isinstance(x, tuple) else x for x in kv_dma(m0src, None, ldmod)]
    if ts and o.get('mk', 0) == 0: ts_mark(a)
    if grp == 0: e(f"s_lshl_b32 s64, s{sRQ}, 13\ns_add_u32 s64, s64, 32768")
    else: e(f"s_lshl_b32 s64, s{sRQ}, 13\ns_sub_u32 s64, {32768+32768+3*8192}, s64")
    e(f"v_add_u32 v{V_RN}, s64, v{V_L16}")
    for i in range(8): e(f"ds_read_b128 {vr(QR+4*i,4)}, v{V_RN} offset:{i*1024}")
    e(f"s_lshl_b32 s4, s{sJ}, 1\ns_sub_u32 s{sJL}, 32, s4\ns_lshl_b32 s4, s{sJ}, 2")
    if grp: e(f"s_add_u32 s5, s4, 3\ns_sub_u32 s{sT}, s5, s{sRQ}")
    else: e(f"s_sub_u32 s6, 60, s4\ns_add_u32 s{sT}, s6, s{sRQ}")
    e(f"s_lshl_b32 s7, s{sH}, 19\ns_sub_u32 s12, s64, 32768\ns_lshr_b32 s12, s12, 6")
    e(f"v_and_b32 v{V_T+1}, 15, v0\nv_lshl_add_u32 v{V_T+2}, v{V_T+1}, 2, s12")
    for qt in range(2): e(f"ds_read_b32 v{V_G+qt}, v{V_T+2} offset:{qt*64}")
    e(f"s_mov_b32 s{sRD}, {SP0*SLOT}\ns_mov_b32 s{sNB}, 1\ns_mov_b32 s{sREM}, s{sT}\ns_mov_b32 s{sFLAG}, 0")
    e(f"v_add_u32 v{V_RD}, {SP0*SLOT}, v{V_L16}")
    if grp:
        for r in range(8): e(f"ds_read_b128 {vr(64+4*r,4)}, v{V_L16} offset:{1024+r*1024}")
        e(f"s_waitcnt vmcnt({o['_nkv1']}) lgkmcnt(0)\ns_barrier")
    else:
        e("s_waitcnt lgkmcnt(0)\ns_barrier")
    if grp:
        acc2 = o['_acc2']
        for r in range(1, 4):
            for i in range(8): e(f"v_add_f32 v{64+i}, v{64+i}, v{64+8*r+i}")
        e(f"s_lshl_b32 s64, s{sJ}, 11\ns_add_u32 s64, s64, s{sFB}\ns_sub_u32 s64, s64, {FLO}\ns_cmp_eq_u32 s{sRQ}, 0\ns_cselect_b32 s64, s64, {WS_SIZE}\nv_add_u32 v{V_T}, s64, v{V_L16}")
        for i in range(2): e(f"buffer_store_dwordx4 {vr(64+4*i,4)}, v{V_T}, {WSR}, 0 offen offset:{i*1024} sc1")
        for j in (2, 3, 4):
            e(f"s_add_u32 s14, s{sWOFF}, {((SP0+j)%NSLOT)*SLOT}")
            for x in dma_ops("s14"): e(x)
            if j == 2:
                qa = acc2('P', 0, 0)
                phi(e, qa, 16)
                for i in range(8): e(f"v_cvt_pk_bf16_f32 v{qa+i}, v{qa+2*i}, v{qa+2*i+1}")
                e(f"s_lshl_b32 s49, s2, 14\ns_lshl_b32 s75, s{sRQ}, 12\ns_add_u32 s49, s49, s75\ns_add_u32 s49, s49, {WS_PQ2}")
                for uu in range(2): e(f"buffer_store_dwordx4 {vr(qa+4*uu,4)}, v{V_L16}, {WSR}, s49 offen offset:{uu*1024} sc1")
                e(f"buffer_store_dwordx4 {vr(acc2('G', 3, 0),4)}, v{V_L16}, {WSR}, s49 offen offset:2048 sc1")
        e(f"s_add_u32 s{sDW}, s{sWOFF}, {SP0*SLOT}")
        e(f"s_mov_b32 s{S_DBG}, s{S_WS}\ns_mov_b32 s{S_DBG+1}, s{S_WS+1}\ns_mov_b32 s{S_DBG+2}, 0\ns_mov_b32 s{S_DBG+3}, 0x20000")
        e(f"s_lshl_b32 s64, s{sJ}, 2\ns_add_u32 s64, s64, 32\ns_add_u32 s64, s64, s{sFB}\ns_cmp_eq_u32 s{sRQ}, 0\ns_cselect_b32 s64, s64, {WS_SIZE}\nv_mov_b32 v4, s64\nv_mov_b32 v5, 1")
    else:
        for r in range(4): e(f"v_mov_b32 v{ONES+r}, 0x3f803f80")
        if o.get('pfmode', 3) >= 1:
            e(f"s_cmp_lt_u32 s{sRQ}, 2\ns_cselect_b32 s72, s78, s76\ns_cselect_b32 s73, s79, s77\ns_mov_b32 s74, 0x80000\ns_cselect_b32 s74, 0x400000, s74\ns_lshl_b32 s68, s2, 1\ns_and_b32 s69, s{sRQ}, 1\ns_add_u32 s68, s68, s69\ns_lshl_b32 s68, s68, 13")
            e(f"s_and_b32 s73, s73, 0xffff\ns_mov_b32 s75, 0x20000\nv_lshlrev_b32 v242, 7, v0\nv_add_u32 v242, s68, v242")
            e(f"buffer_load_dword v241, v242, s[72:75], 0 offen")
    def foff(i):
        st, k = divmod(i, 16)
        return (st * 8192 + k * 1024) if k < 8 else (16384 + st * 8192 + (k - 8) * 1024)
    def rd(i): return f"ds_read_b128 {vr(ring(i),4)}, v{V_RN if i >= 32 else V_RD} offset:{foff(i % 32)}"
    for i in range(8): e(rd(8 + i))
    for i in range(D): e(rd(i))
    e(f"v_mov_b32 v{V_NINF}, 0xff800000")
    e(f"v_lshrrev_b32 v{V_T}, 4, v0\nv_lshlrev_b32 v{V_T}, 2, v{V_T}")
    for r in range(4):
        e(f"v_cmp_gt_u32 {sr(sMASK+2*r,2)}, v{V_T}, v{V_T+1}")
        if r < 3: e(f"v_add_u32 v{V_T}, 1, v{V_T}")
    nextaddr = [f"s_add_u32 s{sRD}, s{sRD}, {SLOT}", f"s_cmp_eq_u32 s{sRD}, {NSLOT*SLOT}\ns_cselect_b32 s{sRD}, 0, s{sRD}", f"v_add_u32 v{V_RN}, s{sRD}, v{V_L16}"]
    bar = (f"s_waitcnt vmcnt({8*(NSLOT-3)})\n" if grp else "") + "s_barrier"
    def bar_post():
        oo = [f"v_mov_b32 v{V_RD}, v{V_RN}"]
        if grp:
            oo.append(f"s_cmp_eq_u32 s{sNB}, 2\ns_cselect_b32 s{S_DBG+2}, {WS_SIZE}, 0\ns_add_u32 s15, s{sNB}, {NSLOT-2}\ns_cmp_gt_u32 s15, s{sJL}\ns_cselect_b32 s{S_DMA+2}, 0, s{S_DMA+2}")
            oo.append(f"buffer_store_dword v5, v4, {DBR}, 0 offen sc1")
            oo += dma_ops(f"s{sDW}")
            oo.append(f"s_add_u32 s{sDW}, s{sDW}, {SLOT}\ns_cmp_ge_u32 s{sDW}, {NSLOT*SLOT}\ns_cselect_b32 s{sDW}, s{sWOFF}, s{sDW}")
        oo.append(f"s_add_u32 s{sNB}, s{sNB}, 1")
        return oo
    for r in range(16): e(f"v_mov_b32 v{CB+r}, 0")
    if grp:
        e(f"s_cmp_eq_u32 s{sT}, 0\ns_cbranch_scc0 L_{nm}_nomask0")
        mask_ops(e)
        a.label(f"L_{nm}_nomask0")
    init = [f"v_mov_b32 v{OR+r}, 0" for r in range(64)] + [f"v_mov_b32 v{PR+8+r}, 0" for r in range(8)] + [f"v_mov_b32 v{LS+r}, 0" for r in range(8)]
    for x in interleave([x for _, x in qk_mfmas(0, lambda i: ring(8 + i))], [(i // 5, x) for i, x in enumerate(init)]): e(x)
    def rowmax(dst, b, qt, acc=False):
        s = SR + b * 16 + qt * 8
        e(f"v_max3_f32 v{dst}, v{s}, v{s+1}, " + (f"v{dst}" if acc else f"v{s+1}"))
        for i in range(1, 4): e(f"v_max3_f32 v{dst}, v{s+2*i}, v{s+2*i+1}, v{dst}")
    def set_c():
        for qt in range(2):
            for kt in range(2):
                for r in range(4): e(f"v_sub_f32 v{Cb(kt,qt)+r}, 0, v{V_T+4+qt}")
    for qt in range(2): rowmax(V_T + 4 + qt, 0, qt)
    for qt in range(2): xgroup(e, "v_max_f32", V_T + 4 + qt, V_T + 6 + qt)
    set_c()
    for i in range(16): e(f"v_sub_f32 v{SR+i}, v{SR+i}, v{V_T+4+i//8}")
    ncb = [0]
    def cond_bar(between=()):
        ncb[0] += 1
        L = f"L_{nm}_cb{ncb[0]}"
        oo = [f"s_cmp_ge_u32 s{sNB}, s{sJL}\ns_cbranch_scc1 {L}"]
        if grp:
            oo.append(f"s_cmp_eq_u32 s{sNB}, 1\ns_cbranch_scc1 {L}")
            oo.append(f"s_add_u32 s15, s{sNB}, 1\ns_cmp_lg_u32 s15, s{sJL}\ns_cbranch_scc1 {L}n\ns_waitcnt vmcnt(0)\n{L}n:")
        oo.append(bar)
        oo += bar_post()[1:-1]
        oo.append(f"{L}:")
        oo += list(between)
        oo += [bar_post()[0], bar_post()[-1]]
        return "\n".join(oo)
    def step(st, tailops=(), mode='loop'):
        mf = qk_mfmas(1 - st, lambda i: ring(st * 16 + i)) + [(8 + f, x) for f, x in pv_mfmas(1 - st, lambda i: ring(st * 16 + 8 + i))]
        main = []
        for m, (f, x) in enumerate(mf):
            if m % 8 == 0: x += " ; also " + ",".join(vr(ring(st*16+f+j), 4) for j in range(1, 4))
            main.append(x)
        main += sum_mfmas(1 - st)
        exps, _, cvts = sm_ops(st)
        fill = [(2 * i, exps[i]) for i in range(16)] + [(4 * i + 3, cvts[i]) for i in range(8)]
        if st == 0:
            for i, x in enumerate(nextaddr): fill.append((3 + 8 * i, x))
        for k in range(16):
            tgt = st * 16 + k + D
            pos = 4 * (k // 2) + 1
            if tgt == 32:
                if mode == 'loop':
                    fill.append((pos - 2, bar))
                    for i, x in enumerate(bar_post()): fill.append((pos + 1 + i, x))
                elif mode == 'cond': fill.append((pos - 2, cond_bar()))
                else: fill.append((pos + 2, bar_post()[0])); fill.append((pos + 3, bar_post()[-1]))
            fill.append((pos, rd(tgt)))
        for i, x in enumerate(tailops): fill.append((33, x))
        fill = [(min(p, 33), x) for p, x in fill]
        fill.sort(key=lambda t: t[0])
        for x in interleave(main, fill): e(x)
    def step0_first():
        main = [x for _, x in qk_mfmas(1, ring)]
        exps, _, cvts = sm_ops(0)
        fill = [(i, exps[i]) for i in range(16)] + [(2 * i + 2, cvts[i]) for i in range(8)]
        for i, x in enumerate(nextaddr): fill.append((3 + 4 * i, x))
        for k in range(8): fill.append((2 * k + 1, rd(16 + k)))
        fill.sort(key=lambda t: t[0])
        for x in interleave(main, fill): e(x)
    if ts and o.get('mk', 0) == 1: ts_mark(a)
    if grp: e(f"s_cmp_lt_u32 s{sREM}, 3\ns_cbranch_scc1 L_{nm}_chk")
    step0_first()
    step(1, [f"s_sub_u32 s{sREM}, s{sREM}, 2", f"s_cmp_lt_u32 s{sREM}, 3"], mode='nobar')
    if grp: e(f"s_cbranch_scc1 L_{nm}_chk")
    e(".p2align 6")
    a.label(f"L_{nm}_loop")
    step(0, [f"s_sub_u32 s{sREM}, s{sREM}, 2"])
    step(1, [f"s_cmp_ge_u32 s{sREM}, 3"])
    e(f"s_cbranch_scc1 L_{nm}_loop")
    a.label(f"L_{nm}_chk")
    e(f"s_cmp_eq_u32 s{sREM}, 0\ns_cbranch_scc1 L_{nm}_tail0")
    e(f"s_cmp_eq_u32 s{sREM}, 1\ns_cbranch_scc0 L_{nm}_chk1")
    mask_ops(e)
    a.label(f"L_{nm}_chk1")
    step(0)
    e(f"s_cmp_eq_u32 s{sREM}, 1\ns_cbranch_scc1 L_{nm}_tail1")
    mask_ops(e)
    step(1, mode='cond')
    def sm_pv(b, fr):
        main = [x for _, x in pv_mfmas(1 - b, fr)] + sum_mfmas(1 - b)
        exps, _, cvts = sm_ops(b)
        fill = [(i, exps[i]) for i in range(16)] + [(2 * i + 3, cvts[i]) for i in range(8)]
        fill.sort(key=lambda t: t[0])
        for x in interleave(main, fill): e(x)
    a.label(f"L_{nm}_tail0")
    for k in range(16): e(f"ds_read_b128 {vr(ring(k),4)}, v{V_RD} offset:{16384 + k*1024}")
    sm_pv(0, lambda i: ring(i))
    e(cond_bar())
    for x in [x for _, x in pv_mfmas(0, lambda i: ring(8 + i))] + sum_mfmas(0): e(x)
    e(f"s_branch L_{nm}_epi")
    a.label(f"L_{nm}_tail1")
    for k in range(8): e(f"ds_read_b128 {vr(ring(k),4)}, v{V_RD} offset:{24576 + k*1024}")
    sm_pv(1, lambda i: ring(i))
    e(cond_bar([f"ds_read_b128 {vr(ring(8+k),4)}, v{V_RN} offset:{16384 + k*1024}" for k in range(8)]))
    for x in [x for _, x in pv_mfmas(1, lambda i: ring(8 + i))] + sum_mfmas(1): e(x)
    def epilogue(check):
        if check:
            e(f"v_add_f32 v{V_T+7}, v{LS}, v{LS+4}")
            e(f"v_cmp_nle_f32 vcc, v{V_T+7}, v{V_T+3}")
            e(f"s_cmp_lg_u64 vcc, 0")
            if force_fb: e("s_cmp_eq_u32 s2, s2")
            e(f"s_cselect_b32 s{sFLAG}, 1, 0\ns_cbranch_scc1 L_{nm}_post")
        for qt in range(2):
            e(f"v_rcp_f32 v{V_T+4+qt}, v{LS+4*qt}\nv_sub_f32 v{V_T+6}, 1.0, v{V_G+qt}\nv_mul_f32 v{V_T+4+qt}, v{V_T+4+qt}, v{V_T+6}")
        e(f"s_lshr_b32 s4, s{sT}, 1\ns_mul_i32 s4, s4, {144*4096}\ns_lshl_b32 s5, s{sH}, 14\ns_add_u32 s4, s4, s5\ns_and_b32 s5, s{sT}, 1\ns_lshl_b32 s5, s5, 11\ns_add_u32 s4, s4, s5\ns_add_u32 s4, s4, {WS_CTX}")
        for t in range(4):
            for qt in range(2):
                oo = Ob(2 * t, qt)
                for i in range(8): e(f"v_mul_f32 v{oo+i}, v{V_T+4+qt}, v{oo+i}")
                for i in range(4): e(f"v_cvt_pk_bf16_f32 v{oo+i}, v{oo+2*i}, v{oo+2*i+1}")
                e(f"buffer_store_dwordx4 {vr(oo,4)}, v{V_L16}, {WSR}, s4 offen offset:{qt*1024} sc1")
            if t < 3: e("s_add_u32 s4, s4, 4096")
    a.label(f"L_{nm}_epi")
    if ts: ts_mid(a)
    e(f"v_mov_b32 v{V_T+3}, {f32hex(2.0**30)}\nv_mov_b32 v{V_RN}, 0")
    epilogue(True)
    a.label(f"L_{nm}_post")
    e(f"s_cmp_ge_u32 s{sNB}, s{sJL}\ns_cbranch_scc1 L_{nm}_postdone")
    if grp: e(f"v_lshlrev_b32 v{V_T}, 2, v0\nbuffer_load_dword v{V_RN}, v{V_T}, {WSR}, s{sFB} offen sc1")
    e(cond_bar().replace(f"v_mov_b32 v{V_RD}, v{V_RN}\n", ""))
    e(f"s_branch L_{nm}_post")
    a.label(f"L_{nm}_postdone")
    e(f"s_cmp_eq_u32 s{sFLAG}, 0\ns_cbranch_scc1 L_{nm}_nofb")
    def ld8(base, so0, so1):
        for i in range(8): e(f"buffer_load_dwordx4 {vr(ring(base+i),4)}, v{V_L16}, {WSR}, {so0 if i < 4 else so1} offen offset:{(i%4)*1024} sc1")
    for r in range(16): e(f"v_mov_b32 v{CB+r}, 0")
    e(f"v_mov_b32 v{V_T+4}, v{V_NINF}\nv_mov_b32 v{V_T+5}, v{V_NINF}")
    e(f"s_add_u32 s10, s7, {WS_KF}\ns_mov_b32 s{sREM}, s{sT}")
    a.label(f"L_{nm}_fb1")
    e("s_add_u32 s11, s10, 4096")
    ld8(0, "s10", "s11")
    e(f"s_cmp_eq_u32 s{sREM}, 0\ns_cbranch_scc0 L_{nm}_fb1n")
    mask_ops(e)
    a.label(f"L_{nm}_fb1n")
    for _, x in qk_mfmas(0, ring): e(x)
    for qt in range(2): rowmax(V_T + 4 + qt, 0, qt, acc=True)
    e(f"s_add_u32 s10, s10, 8192\ns_cmp_eq_u32 s{sREM}, 0\ns_cbranch_scc1 L_{nm}_fb1d\ns_sub_u32 s{sREM}, s{sREM}, 1\ns_branch L_{nm}_fb1")
    a.label(f"L_{nm}_fb1d")
    for qt in range(2): xgroup(e, "v_max_f32", V_T + 4 + qt, V_T + 6)
    set_c()
    for r in range(64): e(f"v_mov_b32 v{OR+r}, 0")
    for r in range(8): e(f"v_mov_b32 v{LS+r}, 0")
    e(f"s_add_u32 s10, s7, {WS_KF}\ns_add_u32 s12, s7, {WS_VF}\ns_mov_b32 s{sREM}, s{sT}")
    a.label(f"L_{nm}_fb2")
    e("s_add_u32 s11, s10, 4096\ns_add_u32 s13, s12, 4096")
    ld8(0, "s10", "s11"); ld8(8, "s12", "s13")
    e(f"s_cmp_eq_u32 s{sREM}, 0\ns_cbranch_scc0 L_{nm}_fb2n")
    mask_ops(e)
    a.label(f"L_{nm}_fb2n")
    for _, x in qk_mfmas(0, ring): e(x)
    exps, _, cvts = sm_ops(0)
    for x in exps + cvts: e(x)
    for x in [x for _, x in pv_mfmas(0, lambda i: ring(8 + i))] + sum_mfmas(0): e(x)
    e(f"s_add_u32 s10, s10, 8192\ns_add_u32 s12, s12, 8192\ns_cmp_eq_u32 s{sREM}, 0\ns_cbranch_scc1 L_{nm}_fb2d\ns_sub_u32 s{sREM}, s{sREM}, 1\ns_branch L_{nm}_fb2")
    a.label(f"L_{nm}_fb2d")
    epilogue(False)
    a.label(f"L_{nm}_nofb")
    if grp:
        KV = OR; PQr = SR; GG = SR + 8
        e(f"s_lshl_b32 s4, s{sJ}, 2\ns_sub_u32 s5, 60, s4\ns_sub_u32 s6, s4, 4\ns_cmp_lt_u32 s{sRQ}, 2\ns_cselect_b32 s5, s5, s6\ns_lshl_b32 s6, s{sRQ}, 1\ns_add_u32 s8, s5, s6")
        for b in range(3): e(f"buffer_load_dwordx4 {vr(PQr+4*b,4)}, v{V_L16}, {WSR}, s49 offen offset:{b*1024} sc1")
        e(f"v_lshlrev_b32 v{V_T}, 2, v0\ns_mov_b32 s67, 0x20000")
        a.label(f"L_{nm}_spin2")
        e(f"v_cmp_eq_u32 vcc, 1, v{V_RN}\ns_and_b32 s64, vcc_lo, 0xff00\ns_cmp_eq_u32 s64, 0xff00\ns_cbranch_scc1 L_{nm}_ok2\ns_sleep 8")
        e(f"buffer_load_dword v{V_RN}, v{V_T}, {WSR}, s{sFB} offen sc1")
        e(f"s_sub_u32 s67, s67, 1\ns_cmp_lg_u32 s67, 0\ns_cbranch_scc1 L_{nm}_spin2")
        a.label(f"L_{nm}_ok2")
        e(f"s_sub_u32 s4, s{sFB}, {FLO}")
        for i in range(16):
            e(f"buffer_load_dwordx4 {vr(KV+4*i,4)}, v{V_L16}, {WSR}, s4 offen offset:{(i%4)*1024} sc1")
            if i % 4 == 3 and i < 15: e("s_add_u32 s4, s4, 4096")
        for r in range(1, 8):
            for i in range(8): e(f"v_add_f32 v{KV+i}, v{KV+i}, v{KV+8*r+i}")
        for i in range(4): e(f"v_cvt_pk_bf16_f32 v{KV+8+i}, v{KV+2*i}, v{KV+2*i+1}")
        NUM = KV + 16
        for j in range(4):
            e(f"v_mfma_f32_16x16x16_bf16 {vr(NUM+8*j,4)}, {vr(KV+8,2)}, {vr(PQr+2*j,2)}, 0")
            e(f"v_mfma_f32_16x16x16_bf16 {vr(NUM+8*j+4,4)}, {vr(KV+10,2)}, {vr(PQr+2*j,2)}, 0")
        e(f"s_and_b32 s6, s{sH}, 1\ns_lshl_b32 s6, s6, 3\ns_lshr_b32 s5, s{sH}, 1\ns_lshl_b32 s5, s5, 12\ns_add_u32 s6, s6, s5\ns_add_u32 s6, s6, {WS_CTX + 128*4096}")
        e(f"s_lshr_b32 s4, s8, 1\ns_mul_i32 s4, s4, {144*4096}\ns_add_u32 s4, s4, s6")
        for j in range(4):
            n = NUM + 8 * j
            e(f"v_add_f32 v{n+4}, {f32hex(1e-6)}, v{n+4}\nv_rcp_f32 v{n+4}, v{n+4}\nv_mul_f32 v{n+4}, v{GG+j}, v{n+4}")
            for i in range(4): e(f"v_mul_f32 v{n+i}, v{n+4}, v{n+i}")
            e(f"v_cvt_pk_bf16_f32 v{n}, v{n}, v{n+1}\nv_cvt_pk_bf16_f32 v{n+1}, v{n+2}, v{n+3}")
            e(f"buffer_store_dwordx2 {vr(n,2)}, v{V_L16}, {WSR}, s4 offen offset:{j*1024} sc1")
    if ts: ts_end(a, 0, S_WS, 3, vtmp=176)
    e("s_endpgm")
```

```python
from common import *
def gen_k3(name="k3_kernel", PD=4, ts=False, xmap='8x4', korder='blk', rot=2, exp=(), wt=0, prio=0, order=0, tsidx=2):
    a = Asm(); e = a.e
    khead(a, name)
    if ts: ts_start(a)
    e(f"s_cmp_ge_u32 s2, 256\ns_cbranch_scc1 L_{name}_end")
    e(f"s_load_dwordx2 s[4:5], s[0:1], {KA_WO}\ns_load_dwordx2 s[6:7], s[0:1], {KA_WO4}")
    e(f"s_load_dwordx2 s[8:9], s[0:1], {KA_OUT}\ns_load_dwordx2 s[10:11], s[0:1], {KA_WS}")
    code_prefetch(a, name, 242, 241)
    e("v_lshrrev_b32 v1, 6, v0\nv_and_b32 v0, 63, v0\nv_readfirstlane_b32 s3, v1")
    if xmap == '4x8':
        e("s_and_b32 s30, s2, 7\ns_lshr_b32 s31, s2, 3\ns_and_b32 s32, s31, 3\ns_lshl_b32 s30, s30, 2\ns_add_u32 s30, s30, s32\ns_lshr_b32 s31, s31, 2")
        e("s_mov_b32 s45, s31")
    else:
        e("s_and_b32 s30, s2, 6\ns_lshl_b32 s30, s30, 2\ns_lshr_b32 s31, s2, 3\ns_and_b32 s32, s31, 7\ns_add_u32 s30, s30, s32\ns_lshr_b32 s31, s31, 3\ns_and_b32 s33, s2, 1\ns_lshl_b32 s33, s33, 2\ns_add_u32 s31, s31, s33")
        e("s_mov_b32 s45, s32")
    e("s_mov_b32 s46, s30\ns_mov_b32 s47, s31")
    if 'same' in exp: e("s_and_b32 s46, s30, 1\ns_and_b32 s47, s31, 1")
    e("v_lshlrev_b32 v2, 4, v0")
    e("v_lshrrev_b32 v3, 3, v0\nv_lshlrev_b32 v3, 10, v3")
    e("v_lshrrev_b32 v4, 4, v0\nv_lshlrev_b32 v4, 1, v4\nv_and_b32 v5, 7, v0\nv_xor_b32 v4, v4, v5\nv_lshlrev_b32 v4, 4, v4")
    e("v_add_u32 v4, v3, v4\nv_add_u32 v5, 7168, v4\nv_add_u32 v6, 14336, v4\nv_add_u32 v7, 21504, v4")
    e("v_lshrrev_b32 v8, 2, v0\nv_lshlrev_b32 v8, 7, v8")
    e("v_lshrrev_b32 v9, 3, v0\nv_and_b32 v9, 3, v9\nv_lshlrev_b32 v9, 5, v9")
    e("v_and_b32 v10, 3, v0\nv_lshlrev_b32 v10, 3, v10\nv_add3_u32 v8, v8, v9, v10")
    e("s_mul_i32 s33, s3, 20480\nv_add_u32 v8, s33, v8")
    e("v_xor_b32 v9, 32, v8\nv_xor_b32 v10, 64, v8\nv_xor_b32 v11, 96, v8")
    e("s_waitcnt lgkmcnt(0)")
    srd(a, 12, 4, 512 * 512 * 2)
    srd(a, 16, 6, 4096 * 512 * 2)
    srd(a, 20, 8, 2048 * 512 * 2)
    srd(a, 24, 10, WS_SIZE)
    wsh, ks = (4, 1) if korder == 'blk' else (0, 8)
    e("s_lshl_b32 s36, s47, 7")
    e(f"s_lshl_b32 s34, s3, {15+wsh}\ns_add_u32 s34, s34, s36")
    e("s_lshl_b32 s35, s3, 16\ns_add_u32 s35, s35, s36")
    e(f"s_mul_i32 s37, s46, {144*4096}\ns_add_u32 s37, s37, {WS_CTX}\ns_lshl_b32 s39, s3, 13\ns_add_u32 s38, s37, s39\ns_add_u32 s38, s38, {128*4096}\ns_lshl_b32 s39, s3, {12+wsh}\ns_add_u32 s37, s37, s39")
    if wt:
        e(f"s_mul_i32 s34, s47, {144*4096}\ns_add_u32 s34, s34, {WS_WT}\ns_lshl_b32 s39, s3, 13\ns_add_u32 s35, s34, s39\ns_add_u32 s35, s35, {128*4096}\ns_lshl_b32 s39, s3, {12+wsh}\ns_add_u32 s34, s34, s39")
    e(f"s_mul_i32 s48, s45, {rot}\ns_and_b32 s48, s48, 15")
    if prio:
        e(f"s_cmp_ge_u32 s3, 4\ns_cbranch_scc0 L_{name}_np\ns_setprio {prio}")
        a.label(f"L_{name}_np")
    ACC = 64; CF = 128; WF = 208
    NS = 18; NSLOT = 5
    vm = VmTrack()
    def loads(idx):
        slot = idx % NSLOT
        e(f"s_add_u32 m0, s33, {slot*4096}")
        if idx < 16:
            e(f"s_mul_i32 s49, s48, {ks*(4096 if wt else 32768)}\ns_add_u32 s49, s49, s34\ns_mul_i32 s50, s48, {ks*4096}\ns_add_u32 s50, s50, s37\ns_add_u32 s48, s48, 1\ns_and_b32 s48, s48, 15")
            rs, so, cs = "s[16:19]", "s49", "s50"
        else:
            rs, so, cs = "s[12:15]", "s35", "s38"
        for i in range(4):
            if 'direct' in exp: e(f"buffer_load_dwordx4 {vr(16 + (idx % 3) * 16 + i * 4, 4)}, v2, s[24:27], {so} offen offset:{i*1024}")
            elif wt: e(f"buffer_load_dwordx4 v2, s[24:27], {so} offen offset:{i*1024} lds")
            else: e(f"buffer_load_dwordx4 v{4+i}, {rs}, {so} offen offset:{i*1024} lds")
            vm.issue(('W', idx))
        for i in range(4):
            b = CF + slot * 16 + i * 4
            e(f"buffer_load_dwordx4 {vr(b,4)}, v2, s[24:27], {cs} offen offset:{i*1024}"); vm.issue(('C', idx))
        if idx >= 16: e(f"s_add_u32 s35, s35, {4096 if wt else 32768}\ns_add_u32 s38, s38, 4096")
    for idx in range(PD): loads(idx)
    for idx in range(NS):
        slot = idx % NSLOT
        e(f"s_waitcnt vmcnt({vm.n_after(lambda t: t == ('W', idx))})")
        wb = WF + (idx % 2) * 16
        if 'direct' in exp: wb = 16 + (idx % 3) * 16
        for n in range(4):
            for hf in range(2):
                if 'direct' in exp or 'noread' in exp: continue
                e(f"ds_read_b64_tr_b16 {vr(wb+n*4+hf*2,2)}, v{8+n} offset:{slot*4096+hf*2048}")
        if idx + PD < NS and order == 0: loads(idx + PD)
        for n in range(4):
            if idx + PD < NS and order == 1 and n == 2: loads(idx + PD)
            for i in range(4):
                d = ACC + (n * 4 + i) * 4
                c = vr(d, 4) if idx else "0"
                if 'nomfma' in exp and (n or i < 3): continue
                e(f"v_mfma_f32_16x16x32_bf16 {vr(d,4)}, {vr(wb+n*4,4)}, {vr(CF+slot*16+i*4,4)}, {c}")
    if ts: ts_mid(a)
    e("v_add_u32 v12, s33, v2")
    for t in range(16):
        e(f"ds_write_b128 v12, {vr(ACC+t*4,4)} offset:{t*1024}")
    e("s_lshr_b32 s41, s3, 1\ns_and_b32 s42, s3, 1")
    e("v_lshrrev_b32 v13, 5, v0\nv_lshlrev_b32 v13, 12, v13")
    e("v_and_b32 v14, 15, v0\nv_lshlrev_b32 v14, 4, v14")
    e("v_and_b32 v15, 16, v0\nv_lshlrev_b32 v15, 5, v15\nv_add3_u32 v13, v13, v14, v15")
    e(f"s_lshl_b32 s43, s42, 13\ns_lshl_b32 s44, s41, 10\ns_add_u32 s43, s43, s44\nv_add_u32 v13, s43, v13\nv_add_u32 v14, {3*20480}, v13\nv_add_u32 v15, {6*20480}, v13")
    e("v_and_b32 v20, 15, v0\nv_lshlrev_b32 v20, 10, v20\nv_lshrrev_b32 v21, 4, v0\nv_lshlrev_b32 v21, 4, v21\nv_add_u32 v20, v20, v21")
    e("s_lshl_b32 s43, s30, 16\ns_lshl_b32 s44, s41, 14\ns_add_u32 s43, s43, s44\ns_lshl_b32 s44, s31, 7\ns_add_u32 s43, s43, s44\ns_lshl_b32 s44, s42, 6\ns_add_u32 s43, s43, s44")
    e("s_waitcnt lgkmcnt(0)\ns_barrier")
    for u in range(8):
        for ee in range(2):
            e(f"ds_read_b128 {vr(128+(u*2+ee)*4,4)}, v{13+u//3} offset:{(u%3)*20480+ee*256}")
    for u in range(1, 8):
        for j in range(8):
            e(f"v_add_f32 v{128+j}, v{128+j}, v{128+u*8+j}")
    for j in range(4):
        e(f"v_cvt_pk_bf16_f32 v{16+j}, v{128+2*j}, v{129+2*j}")
    e("buffer_store_dwordx4 v[16:19], v20, s[20:23], s43 offen")
    if ts: ts_end(a, tsidx, 24, 3)
    a.label(f"L_{name}_end")
    e("s_endpgm")
    lines = fixup(a.lines, [name])
    return "\n".join(lines) + "\n" + kdesc(name, 256, 100) + "\n"
```

```python
from gen import *
import json, sys
def make(variants):
    for i, v in enumerate(variants):
        if 'o12' in v: fused(f"v{i}_ts.s", ts=True, o12=v['o12'], o3=v.get('o3', {}))
        else: full(f"v{i}_ts.s", ts=True, o1=v.get('o1', {}), o2=v.get('o2', {}), o3=v.get('o3', {}))
    json.dump(variants, open("vlab.json", "w"))
if __name__ == "__main__":
    make(eval(sys.argv[1]))
```

```python
from common import *
def gen_k3(name="k3_kernel", PD=4, ts=False, xmap='8x4', korder='blk', rot=2, exp=(), wt=0, prio=0, order=0, tsidx=2, dbgts=0):
    a = Asm(); e = a.e
    khead(a, name)
    if ts: ts_start(a)
    e(f"s_cmp_ge_u32 s2, 256\ns_cbranch_scc1 L_{name}_end")
    e(f"s_load_dwordx2 s[4:5], s[0:1], {KA_WO}\ns_load_dwordx2 s[6:7], s[0:1], {KA_WO4}")
    e(f"s_load_dwordx2 s[8:9], s[0:1], {KA_OUT}\ns_load_dwordx2 s[10:11], s[0:1], {KA_WS}")
    code_prefetch(a, name, 242, 241)
    e("v_lshrrev_b32 v1, 6, v0\nv_and_b32 v0, 63, v0\nv_readfirstlane_b32 s3, v1")
    if xmap == '4x8':
        e("s_and_b32 s30, s2, 7\ns_lshr_b32 s31, s2, 3\ns_and_b32 s32, s31, 3\ns_lshl_b32 s30, s30, 2\ns_add_u32 s30, s30, s32\ns_lshr_b32 s31, s31, 2")
        e("s_mov_b32 s45, s31")
    else:
        e("s_and_b32 s30, s2, 6\ns_lshl_b32 s30, s30, 2\ns_lshr_b32 s31, s2, 3\ns_and_b32 s32, s31, 7\ns_add_u32 s30, s30, s32\ns_lshr_b32 s31, s31, 3\ns_and_b32 s33, s2, 1\ns_lshl_b32 s33, s33, 2\ns_add_u32 s31, s31, s33")
        e("s_mov_b32 s45, s32")
    e("s_mov_b32 s46, s30\ns_mov_b32 s47, s31")
    if 'same' in exp: e("s_and_b32 s46, s30, 1\ns_and_b32 s47, s31, 1")
    e("v_lshlrev_b32 v2, 4, v0")
    e("v_lshrrev_b32 v3, 3, v0\nv_lshlrev_b32 v3, 10, v3")
    e("v_lshrrev_b32 v4, 4, v0\nv_lshlrev_b32 v4, 1, v4\nv_and_b32 v5, 7, v0\nv_xor_b32 v4, v4, v5\nv_lshlrev_b32 v4, 4, v4")
    e("v_add_u32 v4, v3, v4\nv_add_u32 v5, 7168, v4\nv_add_u32 v6, 14336, v4\nv_add_u32 v7, 21504, v4")
    e("v_lshrrev_b32 v8, 2, v0\nv_lshlrev_b32 v8, 7, v8")
    e("v_lshrrev_b32 v9, 3, v0\nv_and_b32 v9, 3, v9\nv_lshlrev_b32 v9, 5, v9")
    e("v_and_b32 v10, 3, v0\nv_lshlrev_b32 v10, 3, v10\nv_add3_u32 v8, v8, v9, v10")
    e("s_mul_i32 s33, s3, 20480\nv_add_u32 v8, s33, v8")
    e("v_xor_b32 v9, 32, v8\nv_xor_b32 v10, 64, v8\nv_xor_b32 v11, 96, v8")
    e("s_waitcnt lgkmcnt(0)")
    srd(a, 12, 4, 512 * 512 * 2)
    srd(a, 16, 6, 4096 * 512 * 2)
    srd(a, 20, 8, 2048 * 512 * 2)
    srd(a, 24, 10, WS_SIZE)
    wsh, ks = (4, 1) if korder == 'blk' else (0, 8)
    e("s_lshl_b32 s36, s47, 7")
    e(f"s_lshl_b32 s34, s3, {15+wsh}\ns_add_u32 s34, s34, s36")
    e("s_lshl_b32 s35, s3, 16\ns_add_u32 s35, s35, s36")
    e(f"s_mul_i32 s37, s46, {144*4096}\ns_add_u32 s37, s37, {WS_CTX}\ns_lshl_b32 s39, s3, 13\ns_add_u32 s38, s37, s39\ns_add_u32 s38, s38, {128*4096}\ns_lshl_b32 s39, s3, {12+wsh}\ns_add_u32 s37, s37, s39")
    if wt:
        e(f"s_mul_i32 s34, s47, {144*4096}\ns_add_u32 s34, s34, {WS_WT}\ns_lshl_b32 s39, s3, 13\ns_add_u32 s35, s34, s39\ns_add_u32 s35, s35, {128*4096}\ns_lshl_b32 s39, s3, {12+wsh}\ns_add_u32 s34, s34, s39")
    e(f"s_mul_i32 s48, s45, {rot}\ns_and_b32 s48, s48, 15")
    if prio:
        e(f"s_cmp_ge_u32 s3, 4\ns_cbranch_scc0 L_{name}_np\ns_setprio {prio}")
        a.label(f"L_{name}_np")
    ACC = 64; CF = 128; WF = 208
    NS = 18; NSLOT = 5
    vm = VmTrack()
    def loads(idx):
        slot = idx % NSLOT
        e(f"s_add_u32 m0, s33, {slot*4096}")
        if idx < 16:
            e(f"s_mul_i32 s49, s48, {ks*(4096 if wt else 32768)}\ns_add_u32 s49, s49, s34\ns_mul_i32 s50, s48, {ks*4096}\ns_add_u32 s50, s50, s37\ns_add_u32 s48, s48, 1\ns_and_b32 s48, s48, 15")
            rs, so, cs = "s[16:19]", "s49", "s50"
        else:
            rs, so, cs = "s[12:15]", "s35", "s38"
        for i in range(4):
            if 'direct' in exp: e(f"buffer_load_dwordx4 {vr(16 + (idx % 3) * 16 + i * 4, 4)}, v2, s[24:27], {so} offen offset:{i*1024}")
            elif wt: e(f"buffer_load_dwordx4 v2, s[24:27], {so} offen offset:{i*1024} lds")
            else: e(f"buffer_load_dwordx4 v{4+i}, {rs}, {so} offen offset:{i*1024} lds")
            vm.issue(('W', idx))
        for i in range(4):
            b = CF + slot * 16 + i * 4
            e(f"buffer_load_dwordx4 {vr(b,4)}, v2, s[24:27], {cs} offen offset:{i*1024}"); vm.issue(('C', idx))
        if idx >= 16: e(f"s_add_u32 s35, s35, {4096 if wt else 32768}\ns_add_u32 s38, s38, 4096")
    for idx in range(PD): loads(idx)
    for idx in range(NS):
        slot = idx % NSLOT
        e(f"s_waitcnt vmcnt({vm.n_after(lambda t: t == ('W', idx))})")
        wb = WF + (idx % 2) * 16
        if 'direct' in exp: wb = 16 + (idx % 3) * 16
        for n in range(4):
            for hf in range(2):
                if 'direct' in exp or 'noread' in exp: continue
                e(f"ds_read_b64_tr_b16 {vr(wb+n*4+hf*2,2)}, v{8+n} offset:{slot*4096+hf*2048}")
        if idx + PD < NS and order == 0: loads(idx + PD)
        for n in range(4):
            if idx + PD < NS and order == 1 and n == 2: loads(idx + PD)
            for i in range(4):
                d = ACC + (n * 4 + i) * 4
                c = vr(d, 4) if idx else "0"
                if 'nomfma' in exp and (n or i < 3): continue
                e(f"v_mfma_f32_16x16x32_bf16 {vr(d,4)}, {vr(wb+n*4,4)}, {vr(CF+slot*16+i*4,4)}, {c}")
    if ts: ts_mid(a)
    e("v_add_u32 v12, s33, v2")
    for t in range(16):
        e(f"ds_write_b128 v12, {vr(ACC+t*4,4)} offset:{t*1024}")
    e("s_lshr_b32 s41, s3, 1\ns_and_b32 s42, s3, 1")
    e("v_lshrrev_b32 v13, 5, v0\nv_lshlrev_b32 v13, 12, v13")
    e("v_and_b32 v14, 15, v0\nv_lshlrev_b32 v14, 4, v14")
    e("v_and_b32 v15, 16, v0\nv_lshlrev_b32 v15, 5, v15\nv_add3_u32 v13, v13, v14, v15")
    e(f"s_lshl_b32 s43, s42, 13\ns_lshl_b32 s44, s41, 10\ns_add_u32 s43, s43, s44\nv_add_u32 v13, s43, v13\nv_add_u32 v14, {3*20480}, v13\nv_add_u32 v15, {6*20480}, v13")
    e("v_and_b32 v20, 15, v0\nv_lshlrev_b32 v20, 10, v20\nv_lshrrev_b32 v21, 4, v0\nv_lshlrev_b32 v21, 4, v21\nv_add_u32 v20, v20, v21")
    e("s_lshl_b32 s43, s30, 16\ns_lshl_b32 s44, s41, 14\ns_add_u32 s43, s43, s44\ns_lshl_b32 s44, s31, 7\ns_add_u32 s43, s43, s44\ns_lshl_b32 s44, s42, 6\ns_add_u32 s43, s43, s44")
    e("s_waitcnt lgkmcnt(0)\ns_barrier")
    for u in range(8):
        for ee in range(2):
            e(f"ds_read_b128 {vr(128+(u*2+ee)*4,4)}, v{13+u//3} offset:{(u%3)*20480+ee*256}")
    for u in range(1, 8):
        for j in range(8):
            e(f"v_add_f32 v{128+j}, v{128+j}, v{128+u*8+j}")
    for j in range(4):
        e(f"v_cvt_pk_bf16_f32 v{16+j}, v{128+2*j}, v{129+2*j}")
    e("buffer_store_dwordx4 v[16:19], v20, s[20:23], s43 offen")
    if dbgts:
        e(f"s_cmp_lg_u32 s2, 0\ns_cbranch_scc1 L_{name}_nd\ns_cmp_lg_u32 s3, 0\ns_cbranch_scc1 L_{name}_nd")
        e(f"s_load_dwordx2 s[60:61], s[0:1], {KA_DBG}\ns_memrealtime s[88:89]\ns_waitcnt lgkmcnt(0)")
        srd(a, 64, 60, 256)
        e("v_mul_u32_u24 v30, 43, v0\nv_lshrrev_b32 v30, 7, v30\nv_mul_u32_u24 v31, 3, v30\nv_sub_u32 v31, v0, v31")
        e(f"v_mul_u32_u24 v30, {dbgts*256}, v30\nv_sub_u32 v32, 4, v31\nv_and_b32 v32, 3, v32\nv_lshl_add_u32 v30, v32, 2, v30\nv_add_u32 v30, {WS_TS + 3*32}, v30")
        e("buffer_load_dword v33, v30, s[24:27], 0 offen\ns_waitcnt vmcnt(0)")
        e("v_writelane_b32 v33, s80, 14\nv_writelane_b32 v33, s88, 15\nv_lshlrev_b32 v34, 2, v0")
        e("buffer_store_dword v33, v34, s[64:67], 0 offen")
        a.label(f"L_{name}_nd")
    if ts: ts_end(a, tsidx, 24, 3)
    a.label(f"L_{name}_end")
    e("s_endpgm")
    lines = fixup(a.lines, [name])
    return "\n".join(lines) + "\n" + kdesc(name, 256, 100) + "\n"
```

```python
from common import *
import math
import k1 as K1
import k2 as K2
from k1 import f32hex, LOG2E, V_LANE16, V_A, V_W, V_P, V_RA, V_RW, V_RP, AF, WF, RING, TMP, ACC1, ACC2, V_PF, V_PFD, V_PF2
from k3b import WS_PQ3, WS_G3, WS_KVF
from k2 import (V_L16, V_RD, V_RN, V_G, QR, CB, OR, SR, PR, RG, V_NINF, LS, ONES, NSLOT, SLOT, MF, Cb, Ob, Pb, ring,
                qk_mfmas, pv_mfmas, sum_mfmas, sm_ops, xgroup)
WS_KVA = 84 * MB
FLO = 16384
WS_PQ2 = 80 * MB
S_X, S_CKV, S_W1, S_W2, S_WS, S_GT, S_DBG, S_DMA = 28, 32, 36, 40, 44, 48, 16, 32
sA, sW, sP, sMA, sMW, sST, sAX = 52, 53, 54, 55, 56, 60, 25
sH, sJ, sRQ, sCH = 20, 21, 22, 23
sT, sJL, sREM, sNB = 24, 25, 26, 27
sK, sV, sRD, sWOFF, sFLAG, sDW = 36, 37, 38, 39, 48, 50
sMASK = 52
V_T = 8
V_FO = 9
V_FL = 30
V_ONE = 31; V_DO = 29; V_DV = 93
sPST = 67; sFB = 51
SP0 = 3

def mask_ops(e):
    for r in range(4):
        m = sr(sMASK + 2 * r, 2)
        e(f"v_cndmask_b32 v{Cb(0,0)+r}, v{Cb(0,0)+r}, v{V_NINF}, {m}")
        e(f"v_cndmask_b32 v{Cb(1,1)+r}, v{Cb(1,1)+r}, v{V_NINF}, {m}")
        e(f"v_mov_b32 v{Cb(1,0)+r}, v{V_NINF}")

def gen_k12(name="k12_kernel", ts=False, **o):
    a = Asm(); e = a.e
    khead(a, name)
    if ts: ts_start(a)
    e(f"s_cmp_ge_u32 s2, 256\ns_cbranch_scc1 L_{name}_end")
    e(f"s_load_dwordx4 s[4:7], s[0:1], {KA_X}")
    e(f"s_load_dwordx4 s[8:11], s[0:1], {KA_CKV}")
    e(f"s_load_dwordx4 s[12:15], s[0:1], {KA_WUK}")
    e(f"s_load_dwordx4 s[68:71], s[0:1], {KA_DBG}")
    e(f"s_load_dwordx2 s[72:73], s[0:1], {KA_GATE}")
    e(f"s_load_dwordx2 s[76:77], s[0:1], {KA_WO}\ns_load_dwordx2 s[78:79], s[0:1], {KA_WO4}")
    code_prefetch(a, name, V_PF, V_PFD)
    e("v_lshrrev_b32 v1, 6, v0\nv_and_b32 v0, 63, v0\nv_readfirstlane_b32 s3, v1")
    e(f"s_and_b32 s{sH}, s2, 31\ns_lshr_b32 s{sJ}, s2, 5\ns_and_b32 s{sRQ}, s3, 3\ns_lshr_b32 s{sCH}, s3, 2")
    e(f"v_lshlrev_b32 v{V_LANE16}, 4, v0")
    T = K1.V_T
    e(f"v_lshrrev_b32 v{T}, 3, v0\nv_lshlrev_b32 v{T}, 10, v{T}")
    e(f"v_lshrrev_b32 v{T+1}, 4, v0\nv_and_b32 v{T+2}, 7, v0\nv_xor_b32 v{T+1}, v{T+1}, v{T+2}\nv_lshlrev_b32 v{T+1}, 4, v{T+1}")
    e(f"v_add_u32 v{V_A}, v{T}, v{T+1}\nv_xor_b32 v{V_A+1}, 64, v{V_A}\nv_add_u32 v{V_A+1}, 7168, v{V_A+1}")
    e(f"v_add_u32 v{V_A+2}, 14336, v{V_A}\nv_add_u32 v{V_A+3}, 14336, v{V_A+1}")
    e(f"v_lshrrev_b32 v{T}, 4, v0\ns_and_b32 s24, s22, 1\ns_lshl_b32 s24, s24, 2\nv_or_b32 v{T+1}, s24, v{T}\nv_lshlrev_b32 v{T+1}, 1, v{T+1}")
    e(f"v_and_b32 v{T+2}, 15, v0\nv_xor_b32 v{T+1}, v{T+1}, v{T+2}\nv_lshlrev_b32 v{T+1}, 4, v{T+1}")
    e(f"v_lshlrev_b32 v{T}, 13, v{T}\ns_lshl_b32 s24, s22, 16\nv_add3_u32 v{V_W}, v{T}, v{T+1}, s24\nv_add_u32 v{V_W+1}, {4*8192-1024}, v{V_W}")
    e(f"s_lshl_b32 s{sA}, s{sJ}, 18\ns_lshl_b32 s24, s3, 15\ns_add_u32 s{sA}, s{sA}, s24")
    e(f"s_lshl_b32 s{sW}, s20, 8\ns_lshl_b32 s{sP}, s20, 5")
    e(f"s_lshl_b32 s{sMA}, s3, 12\ns_add_u32 s{sMA}, s{sMA}, 65536\ns_lshl_b32 s{sMW}, s3, 11")
    e("s_waitcnt lgkmcnt(0)")
    srd(a, S_CKV, 8, 2048 * 1024)
    e("s_cmp_eq_u32 s23, 0")
    e(f"s_cselect_b32 s{S_W1}, s12, s14\ns_cselect_b32 s{S_W1+1}, s13, s15\ns_and_b32 s{S_W1+1}, s{S_W1+1}, 0xffff\ns_mov_b32 s{S_W1+2}, {512*8192}\ns_mov_b32 s{S_W1+3}, 0x20000")
    e(f"s_cmp_eq_u32 s23, 0\ns_cbranch_scc0 L_{name}_ch1")
    for ch in range(2):
        if ch: a.label(f"L_{name}_ch1")
        phase1(a, f"{name}_c{ch}", ch, ts, o)
        phase2(a, f"{name}_c{ch}", ch, ts, o)
    a.label(f"L_{name}_end")
    e("s_endpgm")
    lines = fixup(a.lines, [name])
    return "\n".join(lines) + "\n" + kdesc(name, 256, 100) + "\n"

def kv_dma(m0src, sv=None, mod="sc1"):
    DMR = f"s[{S_DMA}:{S_DMA+3}]"
    sv = sv or f"s{sV}"
    o = [f"s_mov_b32 m0, {m0src}"]
    o += [(f"buffer_load_dwordx4 v{V_L16}, {DMR}, s{sK} offen offset:{i*1024} {mod} lds", 'KV') for i in range(4)]
    o += [f"s_add_u32 m0, {m0src}, 16384"]
    o += [(f"buffer_load_dwordx4 v{V_L16}, {DMR}, {sv} offen offset:{i*1024} {mod} lds", 'KV') for i in range(4)]
    o += [f"s_add_u32 s{sK}, s{sK}, 16384\ns_add_u32 s{sV}, s{sV}, 16384"]
    return o

def phi(e, r0, n, tt=96):
    for i in range(0, n, 2): e(f"v_pk_mul_f32 {vr(tt+i,2)}, {vr(r0+i,2)}, s[72:73]")
    for i in range(n): e(f"v_exp_f32 v{tt+i}, v{tt+i}")
    for i in range(0, n, 2): e(f"v_pk_add_f32 {vr(r0+i,2)}, {vr(r0+i,2)}, 1.0 op_sel_hi:[1,0]")
    for i in range(n): e(f"v_med3_f32 v{r0+i}, v{tt+i}, v{r0+i}, 1.0")
    for i in range(0, n, 2): e(f"v_pk_add_f32 {vr(r0+i,2)}, {vr(r0+i,2)}, s[74:75]")

def phase1(a, nm, ch, ts, o):
    e = a.e
    vm = VmTrack()
    pf, pf1_at, pf2_at = o.get('pf', 2), o.get('pf1_at', 1), o.get('pf2_at', 8)
    st0, stn = o.get('st0', 16), o.get('stn', 2)
    PUB, POLL, CHK = o.get('pub', 30), o.get('poll', 31), o.get('chk', 32)
    GPUB = 3; DPOLL = 11; DCHK = 15
    ldmod = o.get('ldmod', 'sc1')
    WSR = f"s[{S_WS}:{S_WS+3}]"; DBR = f"s[{S_DBG}:{S_DBG+3}]"
    NH = 32
    T = K1.V_T
    def dmaW(u):
        if u >= NH: return []
        out = []
        slot = (u % 4) * 16384
        if u < 16 or ch == 0:
            rs = S_W1 if u < 16 else S_W2
            so = (u % 16) * 32 * 8192
            out.append(f"s_add_u32 m0, s{sMW}, {slot}\ns_add_u32 s64, s{sW}, {so}")
            for i in range(2):
                out.append((f"buffer_load_dwordx4 v{V_W+i}, s[{rs}:{rs+3}], s64 offen offset:{i*1024} lds", ('W', u)))
        else:
            out.append(f"s_add_u32 m0, s65, {slot}\ns_mov_b32 s64, s{sP}\ns_add_u32 s{sP}, s{sP}, s{sPST}")
            out.append((f"buffer_load_dwordx4 v{V_P}, s[{S_W2}:{S_W2+3}], s64 offen lds", ('W', u)))
        return out
    def dmaA(s, half):
        if s >= 16: return []
        rs, so = (S_CKV, sA) if s < 8 else (S_X, sAX)
        out = [f"s_add_u32 m0, s{sMA}, {(s % 3) * 32768}\ns_add_u32 s66, s{so}, {(s % 8) * 128}"]
        for i in (2 * half, 2 * half + 1):
            out.append((f"buffer_load_dwordx4 v{V_A+i}, s[{rs}:{rs+3}], s66 offen offset:{i*1024} lds", ('A', s)))
        return out
    def emit(x):
        if isinstance(x, tuple):
            if x[1][0] == 'S': assert any(l.startswith(f"v_cvt_pk_bf16_f32 v{ACC1+4*x[1][1]+3},") for l in a.lines[line0:]), x
            e(x[0]); vm.issue(x[1])
        else: e(x)
    line0 = len(a.lines)
    for x in dmaW(0) + dmaA(0, 0) + dmaA(0, 1): emit(x)
    for x in dmaW(1) + dmaA(1, 0) + dmaW(2) + dmaA(1, 1): emit(x)
    srd(a, S_X, 4, 2048 * 1024); srd(a, S_WS, 70, WS_SIZE); srd(a, S_DBG, 68, 256)
    if ch == 0: srd(a, S_W2, 10, 512 * 8192)
    else:
        e(f"s_cmp_eq_u32 s{sRQ}, 3\ns_cselect_b32 s{S_W2}, s72, s6\ns_cselect_b32 s{S_W2+1}, s73, s7\ns_mov_b32 s{S_W2+2}, {512*3072}\ns_cselect_b32 s{S_W2+2}, 1024, s{S_W2+2}")
        e(f"s_cselect_b32 s{sP}, 0, s{sP}\ns_cselect_b32 s{sPST}, 64, {32*3072}\ns_cselect_b64 vcc, -1, 0\ns_and_b32 s{S_W2+1}, s{S_W2+1}, 0xffff\ns_mov_b32 s{S_W2+3}, 0x20000")
        e("s_lshl_b32 s65, s22, 10\ns_add_u32 s65, s65, 8192")
        e(f"v_lshrrev_b32 v{T}, 1, v0\nv_lshrrev_b32 v{T+1}, 2, v0\nv_and_b32 v{T+1}, 4, v{T+1}\nv_xor_b32 v{T}, v{T}, v{T+1}\nv_mul_u32_u24 v{T}, 3072, v{T}")
        e(f"v_and_b32 v{T+1}, 1, v0\nv_lshlrev_b32 v{T+1}, 4, v{T+1}\ns_lshl_b32 s24, s22, 10\nv_add3_u32 v{V_P}, v{T}, v{T+1}, s24")
        e(f"v_and_b32 v{T}, 48, v0\nv_cndmask_b32 v{V_P}, v{V_P}, v{T}, vcc")
    e(f"s_sub_u32 s26, 15, s{sJ}")
    e(f"s_lshl_b32 s{sAX}, s{26 if ch == 0 else sJ}, 17\ns_lshl_b32 s24, s{sRQ}, 15\ns_add_u32 s{sAX}, s{sAX}, s24")
    e(f"v_and_b32 v{T}, 15, v0\nv_lshrrev_b32 v{T+1}, 1, v{T}\nv_lshrrev_b32 v{T+2}, 4, v0\nv_xor_b32 v{T+1}, v{T+1}, v{T+2}\nv_lshlrev_b32 v{T+1}, 4, v{T+1}")
    e(f"v_lshlrev_b32 v{T}, 7, v{T}\ns_lshl_b32 s24, s22, 13\ns_add_u32 s24, s24, 65536\nv_add3_u32 v{V_RA}, v{T}, v{T+1}, s24")
    e(f"v_xor_b32 v{V_RA+1}, 64, v{V_RA}\nv_add_u32 v{V_RA+2}, 0x10000, v{V_RA}\nv_add_u32 v{V_RA+3}, 0x10000, v{V_RA+1}")
    e(f"v_lshrrev_b32 v{T}, 4, v0\nv_bfe_u32 v{T+1}, v0, 2, 2\nv_lshl_add_u32 v{T+2}, v{T}, 3, v{T+1}\nv_lshlrev_b32 v{T+2}, 8, v{T+2}")
    e(f"v_and_b32 v{T+3}, 1, v{T}\nv_lshl_add_u32 v{T+3}, v{T+3}, 2, v{T+1}\nv_lshlrev_b32 v{T+3}, 5, v{T+3}")
    e(f"v_and_b32 v{T+4}, 3, v0\nv_lshlrev_b32 v{T+4}, 3, v{T+4}\nv_add3_u32 v{V_RW}, v{T+2}, v{T+3}, v{T+4}")
    for n in range(1, 8): e(f"v_xor_b32 v{V_RW+n}, {32*n}, v{V_RW}")
    e(f"v_lshlrev_b32 v{T+2}, 8, v{T}\nv_add3_u32 v{V_RP}, v{T+2}, v{T+3}, v{T+4}\nv_xor_b32 v{V_RP+1}, 128, v{V_RP}")
    e(f"s_lshl_b32 s57, s20, 19\ns_lshl_b32 s24, s21, 2\ns_add_u32 s24, s24, s22\ns_lshl_b32 s24, s24, 14\ns_add_u32 s57, s57, s24")
    base = WS_VF if ch else WS_KF
    for i in range(4): e(f"s_add_u32 s{sST+i}, s57, {base + i*4096}")
    e(f"s_lshl_b32 s{sFB}, s{sH}, 15\ns_add_u32 s{sFB}, s{sFB}, {WS_KVA + FLO}")
    e(f"v_mov_b32 v{V_ONE}, 1\ns_lshl_b32 s24, s{sH}, 2\nv_mov_b32 v{V_DO}, s24")
    if ch == 0:
        t = TMP
        e(f"v_mov_b32 v{t}, 0")
        e(f"s_lshl_b32 s27, s{sJ}, 2\ns_add_u32 s27, s27, s{sRQ}\ns_cmp_eq_u32 s27, 0\ns_cselect_b32 s24, s{sFB}, {WS_SIZE}\nv_lshl_add_u32 v{T}, v0, 2, s24")
        emit((f"buffer_store_dword v{t}, v{T}, {WSR}, 0 offen sc1", ('G', 2)))
        e(f"s_lshl_b32 s24, s{sH}, 2\ns_cmp_eq_u32 s27, 0\ns_cselect_b32 s24, s24, 0x1000\nv_mov_b32 v{V_FO}, s24")
        e(f"s_lshl_b32 s24, s{sJ}, 2\ns_add_u32 s24, s24, s{sFB}\ns_cmp_eq_u32 s{sRQ}, 0\ns_cselect_b32 s24, s24, {WS_SIZE}\nv_mov_b32 v{V_FL}, s24")
    else:
        e(f"v_lshlrev_b32 v{V_FO}, 2, v0")
    def pf_batch(b):
        ptr, size, two = {(0, 0): (10, 0x400000, 1), (0, 1): (10, 0x400000, 1), (0, 2): (4, 0x200000, 0), (0, 3): (6, 0x180000, 0),
                          (1, 0): (78, 0x400000, 1), (1, 1): (78, 0x400000, 1), (1, 2): (76, 0x80000, 0), (1, 3): (76, 0, 0)}[(ch, b)]
        if size == 0: return []
        oo = [f"s_mov_b32 s72, s{ptr}\ns_and_b32 s73, s{ptr+1}, 0xffff\ns_mov_b32 s75, 0x20000\ns_cmp_eq_u32 s22, {b}\ns_cselect_b32 s74, {size}, 0\n"
              + (f"s_lshl_b32 s68, s2, 14\ns_add_u32 s68, s68, {(b % 2) * 8192}" if two else "s_lshl_b32 s68, s2, 13")
              + f"\nv_lshlrev_b32 v{V_PF}, 7, v0\nv_add_u32 v{V_PF}, s68, v{V_PF}"]
        oo.append((f"buffer_load_dword v{V_PFD}, v{V_PF}, s[72:75], 0 offen", ('PF', b)))
        return oo
    def pf_any(tbl):
        for rq in range(4):
            ptr, size, sh, add = tbl[rq]
            if rq == 0: e(f"s_mov_b32 s72, s{ptr}\ns_mov_b32 s73, s{ptr+1}\ns_mov_b32 s74, {size}\ns_lshl_b32 s68, s2, {sh}\ns_add_u32 s68, s68, {add}")
            else: e(f"s_lshl_b32 s69, s2, {sh}\ns_add_u32 s69, s69, {add}\ns_cmp_eq_u32 s{sRQ}, {rq}\ns_cselect_b32 s72, s{ptr}, s72\ns_cselect_b32 s73, s{ptr+1}, s73\ns_cselect_b32 s74, {size}, s74\ns_cselect_b32 s68, s69, s68")
        e(f"s_and_b32 s73, s73, 0xffff\ns_mov_b32 s75, 0x20000\nv_lshlrev_b32 v{V_PF}, 7, v0\nv_add_u32 v{V_PF}, s68, v{V_PF}")
        emit((f"buffer_load_dword v{V_PFD}, v{V_PF}, s[72:75], 0 offen", ('PF', 0)))
    o['_pf_any'] = pf_any
    if o.get('pfmode', 3) == 2 or (o.get('pfmode', 3) == 3 and ch == 1): pf = 0
    if o.get('pfmode', 3) == 1:
        pf = 0
        if ch == 0: pf_any({0: (10, 0x400000, 14, 0), 1: (10, 0x400000, 14, 8192), 2: (4, 0x200000, 13, 0), 3: (6, 0x180000, 13, 0)})
    def acc1(mt, nt):
        if ch == 0: return ACC1 + (((nt // 2) * 4 + mt) * 2 + nt % 2) * 4
        return ACC1 + ((nt * 2 + mt // 2) * 2 + mt % 2) * 4
    if ch == 0:
        tiles2 = [('Q', 4), ('Q', 5), ('Q', 0), ('Q', 1), ('Q', 2), ('Q', 3)]
        def acc2(kind, idx, mt): return ACC2 + (((idx // 2) * 4 + mt) * 2 + idx % 2) * 4
    else:
        tiles2 = [('Q', 6), ('Q', 7), ('G', 3), ('P', 0), ('P', 1), ('P', 2)]
        def acc2(kind, idx, mt):
            if kind == 'Q': return ACC2 + 64 + (mt * 2 + idx % 2) * 4
            return ACC2 + (idx * 4 + mt) * 4
    frags = []
    for u in range(NH):
        slot = (u % 4) * 16384
        ab = AF + (u % 2) * 16
        first = (u % 16 == 0)
        tl = [('W', n) for n in range(8)] if u < 16 else tiles2
        for kind, idx in tl:
            if kind == 'W':
                rd = (lambda d, idx=idx, slot=slot: [f"ds_read_b64_tr_b16 {vr(d+2*hf,2)}, v{V_RW+idx} offset:{slot+ch*8192+hf*1024}" for hf in range(2)])
                wfirst = (ch == 0); accf = (lambda mt, idx=idx: acc1(mt, idx))
            elif kind == 'Q':
                rd = (lambda d, idx=idx, slot=slot: [f"ds_read_b64_tr_b16 {vr(d+2*hf,2)}, v{V_RW+idx} offset:{slot+hf*1024}" for hf in range(2)])
                wfirst = True; accf = (lambda mt, idx=idx: acc2('Q', idx, mt))
            elif kind == 'G':
                rd = (lambda d, idx=idx, slot=slot: [f"ds_read_b128 {vr(d,4)}, v{V_LANE16} offset:{slot+8192+3*1024}", ""])
                wfirst = True; accf = (lambda mt, idx=idx: acc2('G', idx, mt))
            else:
                rd = (lambda d, idx=idx, slot=slot: [f"ds_read_b64_tr_b16 {vr(d+2*hf,2)}, v{V_RP+hf} offset:{slot+8192+idx*1024}" for hf in range(2)])
                wfirst = (idx == 0); accf = (lambda mt, idx=idx: acc2('P', idx, mt))
            def mf(w, mt, accf=accf, wfirst=wfirst, ab=ab, first=first):
                d = vr(accf(mt), 4); A = vr(ab + mt * 4, 4); W = vr(w, 4)
                x, y = (W, A) if wfirst else (A, W)
                return f"{MF} {d}, {x}, {y}, {'0' if first else d}"
            frags.append((u, rd, mf))
    def act_reads(u):
        if u >= NH: return []
        s = u // 2; ks = u % 2; sl = s % 3
        ab = AF + (u % 2) * 16
        reg = V_RA + ks + (2 if sl == 2 else 0)
        off = 32768 if sl == 1 else 0
        return [f"ds_read_b128 {vr(ab+mt*4,4)}, v{reg} offset:{off+mt*2048}" for mt in range(4)]
    def barrier(u):
        pred = lambda tg: tg == ('W', u) or tg == ('A', u // 2) or (u == PUB and tg[0] in ('S', 'G')) or (u == GPUB and tg[0] == 'G')
        if u < NH: e(f"s_waitcnt vmcnt({vm.n_after(pred)}) lgkmcnt(0)\ns_barrier")
        else: e("s_waitcnt lgkmcnt(0)\ns_barrier")
        if o.get('trace'): stamp(u)
    def stamp(i):
        e(f"s_memrealtime s[84:85]\ns_waitcnt lgkmcnt(0)\nv_writelane_b32 v{V_PF2}, s84, {i}")
    def store_kv(j):
        fi = ((j % 4) * 4 + j // 4) if ch == 0 else ((j % 2) * 8 + j // 2)
        return (f"buffer_store_dwordx4 {vr(ACC1+4*j,4)}, v{V_LANE16}, {WSR}, s{sST+fi//4} offen offset:{(fi%4)*1024} {o.get('kvst', 'sc1')}", ('S', j))
    poll = (f"buffer_load_dword v{V_FL}, v{V_FO}, {WSR}, s{sFB} offen sc1", ('F', 0))
    dpoll = (f"buffer_load_dword v{V_DV}, v{V_DO}, {DBR}, 0 offen sc1", ('F', 2))
    def spin(tag, chk, ld):
        e(chk + f"\ns_cbranch_scc1 L_{nm}_{tag}ok")
        e("s_mov_b32 s66, 0x20000")
        a.label(f"L_{nm}_{tag}spin")
        e(f"s_sleep {o.get('sleep', 8)}")
        e(ld)
        e(chk + f"\ns_cbranch_scc1 L_{nm}_{tag}ok")
        e(f"s_sub_u32 s66, s66, 1\ns_cmp_lg_u32 s66, 0\ns_cbranch_scc1 L_{nm}_{tag}spin")
        a.label(f"L_{nm}_{tag}ok")
    def check_clear():
        spin("c", f"v_readfirstlane_b32 s64, v{V_DV}\ns_cmp_lg_u32 s64, 0", dpoll[0])
    def check_flags():
        spin("f", f"v_cmp_eq_u32 vcc, 1, v{V_FL}\ns_and_b32 s64, vcc_lo, 0xff\ns_cmp_eq_u32 s64, 0xff", poll[0])
    NF = len(frags)
    D = RING - 1
    def plan(u):
        G = sum(1 for f in frags if f[0] == u) if u else sum(1 for f in frags if f[0] == 0) - D + 1
        if u == NH: G = D - 1
        nsl = 4 * G
        ops = dmaW(u + 3) + dmaA(u // 2 + 2, u % 2)
        for j in range(16):
            if st0 + (j * o.get('stspan', 12)) // 16 == u: ops.append(store_kv(j))
        if pf:
            u0 = pf1_at if ch == 0 else pf2_at
            if u >= u0 and (u - u0) % pf == 0 and (u - u0) // pf < 4: ops += pf_batch((2, 3, 0, 1)[(u - u0) // pf])
        if u == GPUB and ch == 0: ops = [(f"buffer_store_dword v{V_ONE}, v{V_FO}, {DBR}, 0 offen sc1", ('F', 1))] + ops
        if u == PUB and ch == 0: ops = [(f"buffer_store_dword v{V_ONE}, v{V_FL}, {WSR}, 0 offen sc1", ('F', 1))] + ops
        if u == DPOLL: ops = [dpoll] + ops
        if ch == 1:
            if u == 16:
                ops = ops + [f"s_mov_b32 s{S_DMA}, s{S_WS}\ns_mov_b32 s{S_DMA+1}, s{S_WS+1}\ns_mov_b32 s{S_DMA+2}, {WS_SIZE}\ns_mov_b32 s{S_DMA+3}, 0x20000\n"
                             f"s_lshl_b32 s{sWOFF}, s{sRQ}, 12\ns_lshl_b32 s7, s{sH}, 19\ns_add_u32 s{sK}, s7, s{sWOFF}\ns_add_u32 s{sV}, s{sK}, {WS_VF - 8192}\n"
                             f"s_add_u32 s13, s{sK}, {WS_KF}\ns_cmp_lt_u32 s{sRQ}, 2\ns_cselect_b32 s13, s13, s{sV}\ns_add_u32 s{sK}, s{sK}, {WS_KF + 8192}\n"
                             f"s_add_u32 s14, s{sWOFF}, {SP0*SLOT}\ns_add_u32 s15, s{sWOFF}, {((SP0+1)%NSLOT)*SLOT}"]
            if u == POLL: ops = ops + [poll]
            if u == CHK: ops = ops + [(x[0], ('KV', 0)) if isinstance(x, tuple) else x for x in kv_dma("s14", "s13", ldmod)]
            if u == min(CHK + o.get('kv1', 0), NH): ops = ops + [(x[0], ('KV', 1)) if isinstance(x, tuple) else x for x in kv_dma("s15", None, ldmod)]
        units = []; cur = []
        for x in ops:
            cur.append(x)
            if isinstance(x, tuple): units.append(cur); cur = []
        sch = {}
        if u == 30:
            su = [f"s_lshl_b32 s4, s{sJ}, 1\ns_sub_u32 s{sJL}, 32, s4", f"s_lshl_b32 s4, s{sJ}, 2",
                  (f"s_add_u32 s5, s4, 3\ns_sub_u32 s{sT}, s5, s{sRQ}" if ch else f"s_sub_u32 s6, 60, s4\ns_add_u32 s{sT}, s6, s{sRQ}"),
                  f"s_lshl_b32 s7, s{sH}, 19\ns_mov_b32 s{sRD}, {SP0*SLOT}", f"s_mov_b32 s{sNB}, 1\ns_mov_b32 s{sREM}, s{sT}", f"s_mov_b32 s{sFLAG}, 0\ns_lshl_b32 s12, s{sRQ}, 13",
                  (f"s_sub_u32 s12, {32768+3*8192}, s12" if ch else "s_nop 0"),
                  f"v_lshrrev_b32 v{T+3}, 4, v0\nv_lshlrev_b32 v{T+3}, 2, v{T+3}", f"v_and_b32 v{T+4}, 15, v0"]
            for r in range(4): su += [f"v_cmp_gt_u32 {sr(sMASK+2*r,2)}, v{T+3}, v{T+4}", f"v_add_u32 v{T+3}, 1, v{T+3}"]
            su += [f"s_mov_b32 s70, {f32hex(LOG2E / math.sqrt(128.0))}\ns_mov_b32 s71, s70", f"s_lshl_b32 s64, s{sRQ}, 14\ns_add_u32 s64, s64, 32768", f"v_add_u32 v{T}, s64, v{V_LANE16}"]
            if ch: su += [f"s_mov_b32 s72, {f32hex(LOG2E)}\ns_mov_b32 s73, s72",
                          f"s_lshl_b32 s74, s{sJ}, 1\ns_sub_u32 s75, 30, s74\ns_sub_u32 s74, s74, 2\ns_cmp_lt_u32 s{sRQ}, 2\ns_cselect_b32 s74, s75, s74\ns_add_u32 s74, s74, s{sRQ}",
                          f"s_lshl_b32 s49, s74, 16\ns_lshl_b32 s75, s{sH}, 11\ns_add_u32 s49, s49, s75\ns_add_u32 s49, s49, {WS_PQ3}",
                          f"s_lshl_b32 s75, s74, 10\ns_add_u32 s75, s75, {WS_G3}\ns_cmp_eq_u32 s{sH}, 0\ns_cselect_b32 s75, s75, {WS_SIZE}\nv_add_u32 v{T+2}, s75, v{V_LANE16}",
                          f"s_mov_b32 s74, {f32hex(1e-6)}\ns_mov_b32 s75, s74"]
            for i, x in enumerate(su): sch.setdefault(min(i, nsl - 1), []).append(x)
        n = len(units)
        for i, un in enumerate(units):
            p = min(int((i + (0.25 if ch == 0 else 0.75)) * nsl / n), nsl - 1)
            for x in un[:-1]: sch.setdefault(max(p - 1, 0), []).append(x)
            sch.setdefault(p, []).append(un[-1])
        if cur: sch.setdefault(nsl - 1, []).extend(cur)
        if u:
            for i, x in enumerate(act_reads(u)): sch.setdefault(2 + 3 * i, []).append(x)
        return sch
    barrier(0)
    for x in act_reads(0): e(x)
    for q in range(D):
        for x in frags[q][1](WF + (q % RING) * 4): e(x)
    published = 0
    sch = plan(0); slot = 0
    packs = [f"v_cvt_pk_bf16_f32 v{ACC1+4*j+i}, v{ACC1+8*j+2*i}, v{ACC1+8*j+2*i+1}" for j in range(16) for i in range(4)]
    npacked = 0
    for q in range(NF):
        u, rd, mf = frags[q]
        w = WF + (q % RING) * 4
        nxt = q + D
        reads = []
        need_bar = False
        if nxt < NF:
            if frags[nxt][0] > published: need_bar = True
            reads = frags[nxt][1](WF + (nxt % RING) * 4)
        elif nxt == NF: need_bar = True
        avail = 0
        if u == 15:
            nt = q - 15 * 8
            avail = max((16 * ((nt - 1) // 2) if ch == 0 else 8 * (nt - 1)) if nt >= 1 else 0, 0)
        elif u >= 16: avail = 64
        for mt in range(4):
            if u == 16 and q - 128 >= 2:
                while npacked < 64: e(packs[npacked]); npacked += 1
            e(mf(w, mt))
            if not need_bar and reads and mt in (0, 1): e(reads[mt])
            for x in sch.pop(slot, []): emit(x)
            slot += 1
            k = 0
            while npacked < avail and k < 3: e(packs[npacked]); npacked += 1; k += 1
        if need_bar:
            for sl in sorted(sch):
                for x in sch[sl]: emit(x)
            published += 1
            barrier(published)
            for x in reads: e(x)
            if published == DCHK: check_clear()
            if ch == 1 and published == CHK:
                check_flags()
                if o.get('trace'): stamp(40)
            sch = plan(published); slot = 0
    for sl in sorted(sch):
        for x in sch[sl]: emit(x)
    def q_out(src, mt, t):
        for i in range(4): e(f"v_pk_mul_f32 {vr(src+2*i,2)}, {vr(src+2*i,2)}, s[70:71]")
        for i in range(4): e(f"v_cvt_pk_bf16_f32 v{src+i}, v{src+2*i}, v{src+2*i+1}")
        e(f"ds_write_b128 v{T}, {vr(src,4)} offset:{mt*4096+t*1024}")
    if ch == 0:
        for t in (2, 0, 1):
            for mt in range(4): q_out(acc2('Q', 2 * t, mt), mt, t)
        e("s_waitcnt lgkmcnt(0)\ns_barrier")
    else:
        for mt in range(4): q_out(acc2('Q', 6, mt), mt, 3)
        GQ = acc2('G', 3, 0)
        for mt in range(4): e(f"v_mul_f32 v{GQ+mt}, {f32hex(-LOG2E)}, v{GQ+4*mt}")
        for mt in range(4): e(f"v_exp_f32 v{GQ+mt}, v{GQ+mt}")
        for mt in range(4): e(f"v_add_f32 v{GQ+mt}, 1.0, v{GQ+mt}")
        for mt in range(4): e(f"v_rcp_f32 v{GQ+mt}, v{GQ+mt}")
        e(f"v_and_b32 v{T+1}, 15, v0\ns_lshl_b32 s64, s{sRQ}, 8\nv_lshl_add_u32 v{T+1}, v{T+1}, 2, s64")
        for mt in range(4): e(f"ds_write_b32 v{T+1}, v{GQ+mt} offset:{mt*64}")
        qa, ka, va = acc2('P', 0, 0), acc2('P', 1, 0), acc2('P', 2, 0)
        emit((f"buffer_store_dwordx4 {vr(GQ,4)}, v{T+2}, {WSR}, 0 offen sc1", ('Q', 0)))
        phi(e, ka, 16)
        for i in range(8): e(f"v_cvt_pk_bf16_f32 v{ka+i}, v{ka+2*i}, v{ka+2*i+1}")
        for i in range(8): e(f"v_cvt_pk_bf16_f32 v{va+i}, v{va+2*i}, v{va+2*i+1}")
        for r in range(4): e(f"v_mov_b32 v{ONES+r}, 0x3f803f80")
        kv = 112; z = 116
        for uu in range(2):
            e(f"{MF} {vr(kv,4)}, {vr(ka+4*uu,4)}, {vr(va+4*uu,4)}, {vr(kv,4) if uu else '0'}")
            e(f"{MF} {vr(z,4)}, {vr(ka+4*uu,4)}, {vr(ONES,4)}, {vr(z,4) if uu else '0'}")
        e(f"s_lshl_b32 s64, s{sRQ}, 11\nv_add_u32 v{T+1}, s64, v{V_LANE16}")
        e(f"ds_write_b128 v{T+1}, {vr(kv,4)} offset:1024\nds_write_b128 v{T+1}, {vr(z,4)} offset:2048")
        e(f"s_waitcnt vmcnt({vm.n_after(lambda tg: tg == ('KV', 0))}) lgkmcnt(0)\ns_barrier")
    o['_acc2'] = acc2
    o['_nkv1'] = vm.n_after(lambda tg: tg == ('KV', 1))
    if o.get('trace'):
        stamp(33)
        e(f"s_lshl_b32 s68, s2, 3\ns_add_u32 s68, s68, s3\ns_lshl_b32 s68, s68, 8\ns_add_u32 s68, s68, {WS_TS + MB}\nv_lshlrev_b32 v{V_PF}, 2, v0")
        e(f"buffer_store_dword v{V_PF2}, v{V_PF}, {WSR}, s68 offen")

def phase2(a, nm, grp, ts, o):
    e = a.e
    D = 8
    force_fb = o.get('force_fb', False)
    ldmod = o.get('ldmod', 'sc1')
    WSR = f"s[{S_WS}:{S_WS+3}]"; DBR = f"s[{S_DBG}:{S_DBG+3}]"
    def dma_ops(m0src): return [x[0] if isinstance(x, tuple) else x for x in kv_dma(m0src, None, ldmod)]
    if ts and o.get('mk', 0) == 0: ts_mark(a)
    def foff(i):
        st, k = divmod(i, 16)
        return (st * 8192 + k * 1024) if k < 8 else (16384 + st * 8192 + (k - 8) * 1024)
    def rd(i): return f"ds_read_b128 {vr(ring(i),4)}, v{V_RN if i >= 32 else V_RD} offset:{foff(i % 32)}"
    if grp and o.get('prio', 1): e("s_setprio 1")
    e(f"v_add_u32 v{V_RN}, s12, v{V_L16}\nv_add_u32 v{V_RD}, {SP0*SLOT}, v{V_L16}")
    for i in range(4):
        e(f"ds_read_b128 {vr(QR+4*i,4)}, v{V_RN} offset:{32768+i*1024}\nds_read_b128 {vr(QR+16+4*i,4)}, v{V_RN} offset:{32768+4096+i*1024}")
        e(rd(8 + i))
    for i in range(4, 8): e(rd(8 + i))
    e(f"s_lshr_b32 s12, s12, 6\nv_and_b32 v{V_T+1}, 15, v0\nv_lshl_add_u32 v{V_T+2}, v{V_T+1}, 2, s12")
    for qt in range(2): e(f"ds_read_b32 v{V_G+qt}, v{V_T+2} offset:{qt*64}")
    if grp:
        for r in range(8): e(f"ds_read_b128 {vr(64+4*r,4)}, v{V_L16} offset:{1024+r*1024}")
    e(f"v_mov_b32 v{V_NINF}, 0xff800000")
    if not grp:
        for r in range(4): e(f"v_mov_b32 v{ONES+r}, 0x3f803f80")
    nextaddr = [f"s_add_u32 s{sRD}, s{sRD}, {SLOT}", f"s_cmp_eq_u32 s{sRD}, {NSLOT*SLOT}\ns_cselect_b32 s{sRD}, 0, s{sRD}", f"v_add_u32 v{V_RN}, s{sRD}, v{V_L16}"]
    bar = (f"s_waitcnt vmcnt({8*(NSLOT-3)})\n" if grp else "") + "s_barrier"
    def bar_post():
        oo = [f"v_mov_b32 v{V_RD}, v{V_RN}"]
        if grp:
            oo.append(f"s_cmp_eq_u32 s{sNB}, 2\ns_cselect_b32 s{S_DBG+2}, {WS_SIZE}, 0\ns_add_u32 s15, s{sNB}, {NSLOT-2}\ns_cmp_gt_u32 s15, s{sJL}\ns_cselect_b32 s{S_DMA+2}, 0, s{S_DMA+2}")
            oo.append(f"buffer_store_dword v5, v4, {DBR}, 0 offen sc1")
            oo += dma_ops(f"s{sDW}")
            oo.append(f"s_add_u32 s{sDW}, s{sDW}, {SLOT}\ns_cmp_ge_u32 s{sDW}, {NSLOT*SLOT}\ns_cselect_b32 s{sDW}, s{sWOFF}, s{sDW}")
        oo.append(f"s_add_u32 s{sNB}, s{sNB}, 1")
        return oo
    def late_dma(j):
        if grp:
            e(f"s_add_u32 s14, s{sWOFF}, {((SP0+j)%NSLOT)*SLOT}")
            for x in dma_ops("s14"): e(x)
    qk0 = [x for _, x in qk_mfmas(0, lambda i: ring(8 + i))]
    for kt in range(2):
        for qt in range(2): qk0 = [x.replace(", " + vr(Cb(kt, qt), 4), ", 0") for x in qk0]
    for x in interleave(qk0, [(8 + i, rd(i)) for i in range(D)]): e(x)
    if grp:
        e(f"s_waitcnt vmcnt({o['_nkv1']}) lgkmcnt(8)\ns_barrier")
        late_dma(2)
        for r in range(1, 4):
            for i in range(8): e(f"v_add_f32 v{64+i}, v{64+i}, v{64+8*r+i}")
        e(f"s_lshl_b32 s64, s{sJ}, 11\ns_add_u32 s64, s64, s{sFB}\ns_sub_u32 s64, s64, {FLO}\ns_cmp_eq_u32 s{sRQ}, 0\ns_cselect_b32 s64, s64, {WS_SIZE}\nv_add_u32 v{V_T}, s64, v{V_L16}")
        for i in range(2): e(f"buffer_store_dwordx4 {vr(64+4*i,4)}, v{V_T}, {WSR}, 0 offen offset:{i*1024} sc1")
        qa = o['_acc2']('P', 0, 0)
        phi(e, qa, 16)
        for i in range(8): e(f"v_cvt_pk_bf16_f32 v{qa+i}, v{qa+2*i}, v{qa+2*i+1}")
        for uu in range(2): e(f"buffer_store_dwordx4 {vr(qa+4*uu,4)}, v{V_L16}, {WSR}, s49 offen offset:{uu*1024} sc1")
        e(f"s_add_u32 s{sDW}, s{sWOFF}, {SP0*SLOT}")
        e(f"s_mov_b32 s{S_DBG}, s{S_WS}\ns_mov_b32 s{S_DBG+1}, s{S_WS+1}\ns_mov_b32 s{S_DBG+2}, 0\ns_mov_b32 s{S_DBG+3}, 0x20000")
        e(f"s_lshl_b32 s64, s{sJ}, 2\ns_add_u32 s64, s64, 32\ns_add_u32 s64, s64, s{sFB}\ns_cmp_eq_u32 s{sRQ}, 0\ns_cselect_b32 s64, s64, {WS_SIZE}\nv_mov_b32 v4, s64\nv_mov_b32 v5, 1")
        e(f"s_cmp_eq_u32 s{sT}, 0\ns_cbranch_scc0 L_{nm}_nomask0")
        for r in range(4):
            m = sr(sMASK + 2 * r, 2)
            e(f"v_cndmask_b32 v{SR+r}, v{SR+r}, v{V_NINF}, {m}\nv_cndmask_b32 v{SR+12+r}, v{SR+12+r}, v{V_NINF}, {m}\nv_mov_b32 v{SR+4+r}, v{V_NINF}")
        a.label(f"L_{nm}_nomask0")
    else:
        e("s_waitcnt lgkmcnt(8)\ns_barrier")
    def rowmax(dst, b, qt, acc=False):
        s = SR + b * 16 + qt * 8
        e(f"v_max3_f32 v{dst}, v{s}, v{s+1}, " + (f"v{dst}" if acc else f"v{s+1}"))
        for i in range(1, 4): e(f"v_max3_f32 v{dst}, v{s+2*i}, v{s+2*i+1}, v{dst}")
    def set_c():
        for qt in range(2):
            for kt in range(2):
                for r in range(4): e(f"v_sub_f32 v{Cb(kt,qt)+r}, 0, v{V_T+4+qt}")
    for qt in range(2): rowmax(V_T + 4 + qt, 0, qt)
    for qt in range(2): xgroup(e, "v_max_f32", V_T + 4 + qt, V_T + 6 + qt)
    late_dma(3)
    set_c()
    for i in range(16): e(f"v_sub_f32 v{SR+i}, v{SR+i}, v{V_T+4+i//8}")
    late_dma(4)
    if grp and o.get('prio', 1): e("s_setprio 0")
    ncb = [0]
    def cond_bar(between=(), vmn=None):
        ncb[0] += 1
        L = f"L_{nm}_cb{ncb[0]}"
        oo = [f"s_cmp_ge_u32 s{sNB}, s{sJL}\ns_cbranch_scc1 {L}"]
        if grp:
            oo.append(f"s_cmp_eq_u32 s{sNB}, 1\ns_cbranch_scc1 {L}")
            oo.append(f"s_add_u32 s15, s{sNB}, 1\ns_cmp_lg_u32 s15, s{sJL}\ns_cbranch_scc1 {L}n\ns_waitcnt vmcnt(0)\n{L}n:")
        oo.append(bar if vmn is None else f"s_waitcnt vmcnt({vmn})\ns_barrier")
        oo += bar_post()[1:-1]
        if vmn is not None:
            oo = [x.replace(f"s_cbranch_scc1 {L}\n", f"s_cbranch_scc1 {L}s\n") if not x.endswith(L) else x + "s" for x in oo]
            oo.append(f"s_branch {L}\n{L}s:\ns_waitcnt vmcnt(0)")
        oo.append(f"{L}:")
        oo += list(between)
        oo += [bar_post()[0], bar_post()[-1]]
        return "\n".join(oo)
    def step(st, tailops=(), mode='loop'):
        mf = qk_mfmas(1 - st, lambda i: ring(st * 16 + i)) + [(8 + f, x) for f, x in pv_mfmas(1 - st, lambda i: ring(st * 16 + 8 + i))]
        main = []
        for m, (f, x) in enumerate(mf):
            if m % 8 == 0: x += " ; also " + ",".join(vr(ring(st*16+f+j), 4) for j in range(1, 4))
            main.append(x)
        main += sum_mfmas(1 - st)
        if mode == 'nobar':
            def zc(x):
                c, _, cm = x.partition(" ;")
                pp = c.split(", "); pp[3] = "0"
                return ", ".join(pp) + (" ;" + cm if cm else "")
            main = main[:16] + [zc(x) for x in main[16:]]
        exps, _, cvts = sm_ops(st)
        fill = [(2 * i, exps[i]) for i in range(16)] + [(4 * i + 3, cvts[i]) for i in range(8)]
        if st == 0:
            for i, x in enumerate(nextaddr): fill.append((3 + 8 * i, x))
        for k in range(16):
            tgt = st * 16 + k + D
            pos = 4 * (k // 2) + 1
            if tgt == 32:
                if mode == 'loop':
                    fill.append((pos - 2, bar))
                    for i, x in enumerate(bar_post()): fill.append((pos + 1 + i, x))
                elif mode == 'cond': fill.append((pos - 2, cond_bar()))
                else: fill.append((pos + 2, bar_post()[0])); fill.append((pos + 3, bar_post()[-1]))
            fill.append((pos, rd(tgt)))
        for i, x in enumerate(tailops): fill.append((33, x))
        fill = [(min(p, 33), x) for p, x in fill]
        fill.sort(key=lambda t: t[0])
        for x in interleave(main, fill): e(x)
    def step0_first():
        main = [x for _, x in qk_mfmas(1, ring)]
        exps, _, cvts = sm_ops(0)
        fill = [(i, exps[i]) for i in range(16)] + [(2 * i + 2, cvts[i]) for i in range(8)]
        for i, x in enumerate(nextaddr): fill.append((3 + 4 * i, x))
        for k in range(8): fill.append((2 * k + 1, rd(16 + k)))
        fill.sort(key=lambda t: t[0])
        for x in interleave(main, fill): e(x)
    if ts and o.get('mk', 0) == 1: ts_mark(a)
    if grp:
        e(f"s_cmp_lt_u32 s{sREM}, 3\ns_cbranch_scc0 L_{nm}_big")
        for r in range(64): e(f"v_mov_b32 v{OR+r}, 0")
        for r in range(8): e(f"v_mov_b32 v{PR+8+r}, 0\nv_mov_b32 v{LS+r}, 0")
        e(f"s_branch L_{nm}_chk")
        a.label(f"L_{nm}_big")
    step0_first()
    step(1, [f"s_sub_u32 s{sREM}, s{sREM}, 2", f"s_cmp_lt_u32 s{sREM}, 3"], mode='nobar')
    if grp: e(f"s_cbranch_scc1 L_{nm}_chk")
    e(".p2align 6")
    a.label(f"L_{nm}_loop")
    step(0, [f"s_sub_u32 s{sREM}, s{sREM}, 2"])
    step(1, [f"s_cmp_ge_u32 s{sREM}, 3"])
    e(f"s_cbranch_scc1 L_{nm}_loop")
    a.label(f"L_{nm}_chk")
    e(f"s_cmp_eq_u32 s{sREM}, 0\ns_cbranch_scc1 L_{nm}_tail0")
    e(f"s_cmp_eq_u32 s{sREM}, 1\ns_cbranch_scc0 L_{nm}_chk1")
    mask_ops(e)
    a.label(f"L_{nm}_chk1")
    step(0)
    e(f"s_cmp_eq_u32 s{sREM}, 1\ns_cbranch_scc1 L_{nm}_tail1")
    mask_ops(e)
    step(1, mode='cond')
    def sm_pv(b, fr):
        main = [x for _, x in pv_mfmas(1 - b, fr)] + sum_mfmas(1 - b)
        exps, _, cvts = sm_ops(b)
        fill = [(i, exps[i]) for i in range(16)] + [(2 * i + 3, cvts[i]) for i in range(8)]
        fill.sort(key=lambda t: t[0])
        for x in interleave(main, fill): e(x)
    a.label(f"L_{nm}_tail0")
    for k in range(16): e(f"ds_read_b128 {vr(ring(k),4)}, v{V_RD} offset:{16384 + k*1024}")
    sm_pv(0, lambda i: ring(i))
    e(cond_bar())
    for x in [x for _, x in pv_mfmas(0, lambda i: ring(8 + i))] + sum_mfmas(0): e(x)
    e(f"s_branch L_{nm}_epi")
    a.label(f"L_{nm}_tail1")
    for k in range(8): e(f"ds_read_b128 {vr(ring(k),4)}, v{V_RD} offset:{24576 + k*1024}")
    sm_pv(1, lambda i: ring(i))
    e(cond_bar([f"ds_read_b128 {vr(ring(8+k),4)}, v{V_RN} offset:{16384 + k*1024}" for k in range(8)]))
    for x in [x for _, x in pv_mfmas(1, lambda i: ring(8 + i))] + sum_mfmas(1): e(x)
    def epilogue(check):
        if check:
            e(f"v_add_f32 v{V_T+7}, v{LS}, v{LS+4}")
            e(f"v_cmp_nle_f32 vcc, v{V_T+7}, v{V_T+3}")
            e(f"s_cmp_lg_u64 vcc, 0")
            if force_fb: e("s_cmp_eq_u32 s2, s2")
            e(f"s_cselect_b32 s{sFLAG}, 1, 0\ns_cbranch_scc1 L_{nm}_post")
        for qt in range(2):
            e(f"v_rcp_f32 v{V_T+4+qt}, v{LS+4*qt}\nv_sub_f32 v{V_T+6}, 1.0, v{V_G+qt}\nv_mul_f32 v{V_T+4+qt}, v{V_T+4+qt}, v{V_T+6}")
        e(f"s_lshr_b32 s4, s{sT}, 1\ns_mul_i32 s4, s4, {144*4096}\ns_lshl_b32 s5, s{sH}, 14\ns_add_u32 s4, s4, s5\ns_and_b32 s5, s{sT}, 1\ns_lshl_b32 s5, s5, 11\ns_add_u32 s4, s4, s5\ns_add_u32 s4, s4, {WS_CTX}")
        for t in range(4):
            for qt in range(2):
                oo = Ob(2 * t, qt)
                for i in range(8): e(f"v_mul_f32 v{oo+i}, v{V_T+4+qt}, v{oo+i}")
                for i in range(4): e(f"v_cvt_pk_bf16_f32 v{oo+i}, v{oo+2*i}, v{oo+2*i+1}")
                e(f"buffer_store_dwordx4 {vr(oo,4)}, v{V_L16}, {WSR}, s4 offen offset:{qt*1024} sc1")
            if t < 3: e("s_add_u32 s4, s4, 4096")
    a.label(f"L_{nm}_epi")
    if ts: ts_mid(a)
    e(f"v_mov_b32 v{V_T+3}, {f32hex(2.0**30)}\nv_mov_b32 v{V_RN}, 0")
    epilogue(True)
    a.label(f"L_{nm}_post")
    fl_load = f"buffer_load_dword v{V_RN}, v{V_T}, {WSR}, s{sFB} offen sc1"
    nomov = lambda x: x.replace(f"v_mov_b32 v{V_RD}, v{V_RN}\n", "")
    if grp:
        sv = VmTrack()
        for g3 in range(3):
            for i in range(8): sv.issue(('D', g3 - 3))
        nbar = [0]
        def sbar():
            k = nbar[0]; nbar[0] += 1
            e(nomov(cond_bar(vmn=sv.n_after(lambda tg: tg == ('D', k - 3)))))
            for i in range(9): sv.issue(('D', k))
        def V(x): e(x); sv.issue(('X', 0))
        KV = OR; WTR = RG; TT = SR
        e(f"s_cmp_ge_u32 s{sJ}, 4\ns_cbranch_scc1 L_{nm}_post2")
        e(f"s_lshl_b32 s6, s2, 2\ns_add_u32 s6, s6, s{sRQ}\ns_lshl_b32 s8, s6, 13\ns_add_u32 s9, s8, 4096\ns_lshl_b32 s10, s6, 10")
        srd(a, 68, 78, 4096 * 1024); srd(a, 60, 76, 512 * 1024)
        for i in range(8):
            V(f"buffer_load_dwordx4 {vr(WTR+4*i,4)}, v{V_L16}, s[68:71], s{8+i//4} offen offset:{(i%4)*1024}")
            if i in (2, 5): sbar()
        V(f"buffer_load_dwordx4 {vr(WTR+32,4)}, v{V_L16}, s[60:63], s10 offen")
        e(f"v_lshlrev_b32 v{V_T}, 2, v0")
        V(fl_load)
        e(f"v_lshrrev_b32 v{TT}, 3, v0\nv_mul_u32_u24 v{TT}, {144*4096}, v{TT}\nv_and_b32 v{TT+1}, 7, v0\nv_lshl_add_u32 v{TT}, v{TT+1}, 4, v{TT}")
        for i in range(1, 4): e(f"v_xor_b32 v{TT+i}, {32*i}, v{TT}")
        e(f"s_lshl_b32 s9, s6, 4\ns_and_b32 s9, s9, 96\nv_xor_b32 v{TT+4}, s9, v{TT}")
        e(f"s_lshl_b32 s8, s6, 10\ns_add_u32 s8, s8, {WS_WT}\ns_lshl_b32 s9, s6, 7\ns_add_u32 s9, s9, {WS_WT + 128*4096}")
        sbar(); sbar()
        for i in range(8):
            if i in (3, 6): sbar()
            V(f"buffer_store_dwordx4 {vr(WTR+4*i,4)}, v{TT+i//2}, {WSR}, s8 offen offset:{i*128} sc1")
        V(f"buffer_store_dwordx4 {vr(WTR+32,4)}, v{TT+4}, {WSR}, s9 offen sc1")
        e(f"s_lshl_b32 s4, s{sJ}, 2\ns_add_u32 s4, s4, s{sRQ}\ns_cmp_lg_u32 s4, 0\ns_cbranch_scc1 L_{nm}_post2")
        chk2 = f"v_cmp_eq_u32 vcc, 1, v{V_RN}\ns_and_b32 s64, vcc_lo, 0xff00\ns_cmp_eq_u32 s64, 0xff00\ns_cbranch_scc1 L_{nm}_pgo"
        e(chk2)
        a.label(f"L_{nm}_pw")
        e(fl_load)
        e(nomov(cond_bar(vmn=16)))
        e(nomov(cond_bar(vmn=16)))
        e(chk2)
        e(f"s_cmp_lt_u32 s{sNB}, s{sJL}\ns_cbranch_scc1 L_{nm}_pw")
        e("s_mov_b32 s67, 0x20000")
        a.label(f"L_{nm}_spin2")
        e(f"s_sleep 8\n{fl_load}\n{chk2}")
        e(f"s_sub_u32 s67, s67, 1\ns_cmp_lg_u32 s67, 0\ns_cbranch_scc1 L_{nm}_spin2")
        a.label(f"L_{nm}_pgo")
        sv.tags = [('D', g3 - 3) for g3 in range(3) for i in range(8)]; nbar[0] = 0
        e(f"s_sub_u32 s4, s{sFB}, {FLO}")
        for i in range(16):
            V(f"buffer_load_dwordx4 {vr(KV+4*i,4)}, v{V_L16}, {WSR}, s4 offen offset:{(i%4)*1024} sc1")
            if i % 4 == 3 and i < 15: e("s_add_u32 s4, s4, 4096")
            if i == 7: sbar()
        sbar(); sbar()
        for r in range(1, 8):
            for i in range(4): e(f"v_pk_add_f32 {vr(KV+2*i,2)}, {vr(KV+2*i,2)}, {vr(KV+8*r+2*i,2)}")
        for i in range(4): e(f"v_cvt_pk_bf16_f32 v{KV+8+i}, v{KV+2*i}, v{KV+2*i+1}")
        e(f"s_lshl_b32 s4, s{sH}, 10\ns_add_u32 s4, s4, {WS_KVF}")
        e(f"buffer_store_dwordx4 {vr(KV+8,4)}, v{V_L16}, {WSR}, s4 offen sc1")
        a.label(f"L_{nm}_post2")
    e(f"s_cmp_ge_u32 s{sNB}, s{sJL}\ns_cbranch_scc1 L_{nm}_postdone")
    e(nomov(cond_bar()))
    e(f"s_branch L_{nm}_post{'2' if grp else ''}")
    a.label(f"L_{nm}_postdone")
    e(f"s_cmp_eq_u32 s{sFLAG}, 0\ns_cbranch_scc1 L_{nm}_nofb")
    def ld8(base, so0, so1):
        for i in range(8): e(f"buffer_load_dwordx4 {vr(ring(base+i),4)}, v{V_L16}, {WSR}, {so0 if i < 4 else so1} offen offset:{(i%4)*1024} sc1")
    for r in range(16): e(f"v_mov_b32 v{CB+r}, 0")
    e(f"v_mov_b32 v{V_T+4}, v{V_NINF}\nv_mov_b32 v{V_T+5}, v{V_NINF}")
    e(f"s_add_u32 s10, s7, {WS_KF}\ns_mov_b32 s{sREM}, s{sT}")
    a.label(f"L_{nm}_fb1")
    e("s_add_u32 s11, s10, 4096")
    ld8(0, "s10", "s11")
    e(f"s_cmp_eq_u32 s{sREM}, 0\ns_cbranch_scc0 L_{nm}_fb1n")
    mask_ops(e)
    a.label(f"L_{nm}_fb1n")
    for _, x in qk_mfmas(0, ring): e(x)
    for qt in range(2): rowmax(V_T + 4 + qt, 0, qt, acc=True)
    e(f"s_add_u32 s10, s10, 8192\ns_cmp_eq_u32 s{sREM}, 0\ns_cbranch_scc1 L_{nm}_fb1d\ns_sub_u32 s{sREM}, s{sREM}, 1\ns_branch L_{nm}_fb1")
    a.label(f"L_{nm}_fb1d")
    for qt in range(2): xgroup(e, "v_max_f32", V_T + 4 + qt, V_T + 6)
    set_c()
    for r in range(64): e(f"v_mov_b32 v{OR+r}, 0")
    for r in range(8): e(f"v_mov_b32 v{LS+r}, 0")
    e(f"s_add_u32 s10, s7, {WS_KF}\ns_add_u32 s12, s7, {WS_VF}\ns_mov_b32 s{sREM}, s{sT}")
    a.label(f"L_{nm}_fb2")
    e("s_add_u32 s11, s10, 4096\ns_add_u32 s13, s12, 4096")
    ld8(0, "s10", "s11"); ld8(8, "s12", "s13")
    e(f"s_cmp_eq_u32 s{sREM}, 0\ns_cbranch_scc0 L_{nm}_fb2n")
    mask_ops(e)
    a.label(f"L_{nm}_fb2n")
    for _, x in qk_mfmas(0, ring): e(x)
    exps, _, cvts = sm_ops(0)
    for x in exps + cvts: e(x)
    for x in [x for _, x in pv_mfmas(0, lambda i: ring(8 + i))] + sum_mfmas(0): e(x)
    e(f"s_add_u32 s10, s10, 8192\ns_add_u32 s12, s12, 8192\ns_cmp_eq_u32 s{sREM}, 0\ns_cbranch_scc1 L_{nm}_fb2d\ns_sub_u32 s{sREM}, s{sREM}, 1\ns_branch L_{nm}_fb2")
    a.label(f"L_{nm}_fb2d")
    epilogue(False)
    a.label(f"L_{nm}_nofb")
    if ts: ts_end(a, 0, S_WS, 3, vtmp=176)
    e("s_endpgm")
```

```python
from common import *
from k1 import f32hex, LOG2E
WS_PQ3 = 80 * MB
WS_G3 = 83 * MB
WS_KVF = 83 * MB + 512 * 1024
def gen_k3(name="k3_kernel", PD=3, ts=False, tsidx=1, a0=3, aper=3):
    a = Asm(); e = a.e
    khead(a, name)
    if ts: ts_start(a)
    e(f"s_cmp_ge_u32 s2, 256\ns_cbranch_scc1 L_{name}_end")
    e(f"s_load_dwordx2 s[8:9], s[0:1], {KA_OUT}\ns_load_dwordx2 s[10:11], s[0:1], {KA_WS}")
    code_prefetch(a, name, 242, 241)
    e("v_lshrrev_b32 v1, 6, v0\nv_and_b32 v0, 63, v0\nv_readfirstlane_b32 s3, v1")
    e("s_and_b32 s30, s2, 6\ns_lshl_b32 s30, s30, 2\ns_lshr_b32 s31, s2, 3\ns_and_b32 s32, s31, 7\ns_add_u32 s30, s30, s32\ns_lshr_b32 s31, s31, 3\ns_and_b32 s33, s2, 1\ns_lshl_b32 s33, s33, 2\ns_add_u32 s31, s31, s33")
    e("v_lshlrev_b32 v2, 4, v0\ns_mul_i32 s33, s3, 20480")
    e(f"s_mul_i32 s34, s31, {144*4096}\ns_add_u32 s34, s34, {WS_WT}\ns_lshl_b32 s39, s3, 13\ns_add_u32 s35, s34, s39\ns_add_u32 s35, s35, {128*4096}\ns_lshl_b32 s39, s3, 16\ns_add_u32 s34, s34, s39")
    e(f"s_mul_i32 s37, s30, {144*4096}\ns_add_u32 s37, s37, {WS_CTX}\ns_add_u32 s37, s37, s39")
    e("s_waitcnt lgkmcnt(0)")
    srd(a, 24, 10, WS_SIZE)
    ACC = 64; CF = 128; WF = 208; PQ = 16; KVF = 48; GG = 12; X = 192; TT = 240
    NS = 18; NSLOT = 5; NC = 4
    assert PD < NC
    vm = VmTrack()
    def loads(idx):
        slot = idx % NSLOT
        e(f"s_add_u32 m0, s33, {slot*4096}")
        so = "s34" if idx < 16 else "s35"
        for i in range(4):
            e(f"buffer_load_dwordx4 v2, s[24:27], {so} offen offset:{i*1024} lds"); vm.issue(('W', idx))
        e(f"s_add_u32 {so}, {so}, 4096")
        if idx < 16:
            for i in range(4):
                b = CF + (idx % NC) * 16 + i * 4
                e(f"buffer_load_dwordx4 {vr(b,4)}, v2, s[24:27], s37 offen offset:{i*1024}"); vm.issue(('C', idx))
            e("s_add_u32 s37, s37, 4096")
    loads(0)
    srd(a, 20, 8, 2048 * 512 * 2)
    e("v_lshrrev_b32 v8, 2, v0\nv_lshlrev_b32 v8, 7, v8")
    e("v_lshrrev_b32 v9, 3, v0\nv_and_b32 v9, 3, v9\nv_lshlrev_b32 v9, 5, v9")
    e("v_and_b32 v10, 3, v0\nv_lshlrev_b32 v10, 3, v10\nv_add3_u32 v8, v8, v9, v10\nv_add_u32 v8, s33, v8")
    e("v_xor_b32 v9, 32, v8\nv_xor_b32 v10, 64, v8\nv_xor_b32 v11, 96, v8")
    for idx in range(1, PD): loads(idx)
    e(f"s_lshl_b32 s40, s30, 16\ns_lshl_b32 s41, s3, 13\ns_add_u32 s40, s40, s41\ns_add_u32 s40, s40, {WS_PQ3}\ns_add_u32 s41, s40, 4096")
    e(f"s_lshl_b32 s42, s3, 12\ns_add_u32 s42, s42, {WS_KVF}\ns_lshl_b32 s43, s30, 10\ns_add_u32 s43, s43, {WS_G3}")
    for i in range(8): e(f"buffer_load_dwordx4 {vr(PQ+4*i,4)}, v2, s[24:27], s{40+i//4} offen offset:{(i%4)*1024}"); vm.issue(('A', 0))
    for i in range(4): e(f"buffer_load_dwordx4 {vr(KVF+4*i,4)}, v2, s[24:27], s42 offen offset:{i*1024}"); vm.issue(('A', 0))
    e(f"buffer_load_dwordx4 {vr(GG,4)}, v2, s[24:27], s43 offen"); vm.issue(('A', 0))
    e(f"s_mov_b32 s44, {f32hex(LOG2E)}\ns_mov_b32 s45, s44\ns_mov_b32 s46, {f32hex(1e-6)}\ns_mov_b32 s47, s46\ns_mov_b32 s48, 1.0\ns_mov_b32 s49, 1.0")
    def head(hh):
        p = PQ + 8 * hh
        for t in range(4):
            e(f"v_mfma_f32_16x16x16_bf16 {vr(X+4*t,4)}, {vr(KVF+4*hh,2)}, {vr(p+2*t,2)}, 0")
            e(f"v_mfma_f32_16x16x16_bf16 {vr(TT+4*t,4)}, {vr(KVF+4*hh+2,2)}, {vr(p+2*t,2)}, 0")
        for t in range(4): e(f"v_add_f32 v{TT+4*t}, s46, v{TT+4*t}")
        for t in range(4): e(f"v_rcp_f32 v{TT+4*t}, v{TT+4*t}")
        for t in range(4): e(f"v_mul_f32 v{TT+4*t}, v{GG+t}, v{TT+4*t}")
        for t in range(4):
            for i in range(4): e(f"v_mul_f32 v{X+4*t+i}, v{TT+4*t}, v{X+4*t+i}")
        if hh % 2 == 0:
            for i in range(8): e(f"v_cvt_pk_bf16_f32 v{p+i}, v{X+2*i}, v{X+2*i+1}")
        else:
            q = p - 8
            for t in (3, 2, 1):
                e(f"v_mov_b32 v{q+4*t}, v{q+2*t}\nv_mov_b32 v{q+4*t+1}, v{q+2*t+1}")
            for t in range(4):
                e(f"v_cvt_pk_bf16_f32 v{q+4*t+2}, v{X+4*t}, v{X+4*t+1}\nv_cvt_pk_bf16_f32 v{q+4*t+3}, v{X+4*t+2}, v{X+4*t+3}")
    for idx in range(NS):
        slot = idx % NSLOT
        e(f"s_waitcnt vmcnt({vm.n_after(lambda t: t == ('W', idx))})")
        wb = WF + (idx % 2) * 16
        for n in range(4):
            for hf in range(2):
                e(f"ds_read_b64_tr_b16 {vr(wb+n*4+hf*2,2)}, v{8+n} offset:{slot*4096+hf*2048}")
        if idx + PD < NS: loads(idx + PD)
        cb = CF + (idx % NC) * 16 if idx < 16 else PQ + (idx - 16) * 16
        for n in range(4):
            for i in range(4):
                d = ACC + (n * 4 + i) * 4
                c = vr(d, 4) if idx else "0"
                e(f"v_mfma_f32_16x16x32_bf16 {vr(d,4)}, {vr(wb+n*4,4)}, {vr(cb+i*4,4)}, {c}")
        if idx >= a0 and (idx - a0) % aper == 0 and (idx - a0) // aper < 4: head((idx - a0) // aper)
    if ts: ts_mid(a)
    e("v_add_u32 v12, s33, v2")
    for t in range(16):
        e(f"ds_write_b128 v12, {vr(ACC+t*4,4)} offset:{t*1024}")
    e("s_lshr_b32 s41, s3, 1\ns_and_b32 s42, s3, 1")
    e("v_lshrrev_b32 v13, 5, v0\nv_lshlrev_b32 v13, 12, v13")
    e("v_and_b32 v14, 15, v0\nv_lshlrev_b32 v14, 4, v14")
    e("v_and_b32 v15, 16, v0\nv_lshlrev_b32 v15, 5, v15\nv_add3_u32 v13, v13, v14, v15")
    e(f"s_lshl_b32 s43, s42, 13\ns_lshl_b32 s44, s41, 10\ns_add_u32 s43, s43, s44\nv_add_u32 v13, s43, v13\nv_add_u32 v14, {3*20480}, v13\nv_add_u32 v15, {6*20480}, v13")
    e("v_and_b32 v20, 15, v0\nv_lshlrev_b32 v20, 10, v20\nv_lshrrev_b32 v21, 4, v0\nv_lshlrev_b32 v21, 4, v21\nv_add_u32 v20, v20, v21")
    e("s_lshl_b32 s43, s30, 16\ns_lshl_b32 s44, s41, 14\ns_add_u32 s43, s43, s44\ns_lshl_b32 s44, s31, 7\ns_add_u32 s43, s43, s44\ns_lshl_b32 s44, s42, 6\ns_add_u32 s43, s43, s44")
    e("s_waitcnt lgkmcnt(0)\ns_barrier")
    for u in range(8):
        for ee in range(2):
            e(f"ds_read_b128 {vr(128+(u*2+ee)*4,4)}, v{13+u//3} offset:{(u%3)*20480+ee*256}")
    for u in range(1, 8):
        for j in range(8):
            e(f"v_add_f32 v{128+j}, v{128+j}, v{128+u*8+j}")
    for j in range(4):
        e(f"v_cvt_pk_bf16_f32 v{16+j}, v{128+2*j}, v{129+2*j}")
    e("buffer_store_dwordx4 v[16:19], v20, s[20:23], s43 offen")
    if ts: ts_end(a, tsidx, 24, 3)
    a.label(f"L_{name}_end")
    e("s_endpgm")
    lines = fixup(a.lines, [name])
    return "\n".join(lines) + "\n" + kdesc(name, 256, 100) + "\n"
```

```python
from common import *
import math
import k1 as K1
import k2 as K2
from k1 import f32hex, LOG2E, V_LANE16, V_A, V_W, V_P, V_RA, V_RW, V_RP, AF, WF, RING, TMP, ACC1, ACC2, V_PF, V_PFD, V_PF2
from k3b import WS_PQ3, WS_G3, WS_KVF
from k2 import (V_L16, V_RD, V_RN, V_G, QR, CB, OR, SR, PR, RG, V_NINF, LS, ONES, NSLOT, SLOT, MF, Cb, Ob, Pb, ring,
                qk_mfmas, pv_mfmas, sum_mfmas, sm_ops, xgroup)
WS_KVA = 84 * MB
FLO = 16384
WS_DONE = 86 * MB
WS_PQ2 = 80 * MB
S_X, S_CKV, S_W1, S_W2, S_WS, S_GT, S_DBG, S_DMA = 28, 32, 36, 40, 44, 48, 16, 32
sA, sW, sP, sMA, sMW, sST, sAX = 52, 53, 54, 55, 56, 60, 25
sH, sJ, sRQ, sCH = 20, 21, 22, 23
sT, sJL, sREM, sNB = 24, 25, 26, 27
sK, sV, sRD, sWOFF, sFLAG, sDW = 36, 37, 38, 39, 48, 50
sMASK = 52
V_T = 8
V_FO = 9
V_FL = 30
V_ONE = 31; V_DO = 29; V_DV = 93
sPST = 67; sFB = 51
SP0 = 3

def mask_ops(e):
    for r in range(4):
        m = sr(sMASK + 2 * r, 2)
        e(f"v_cndmask_b32 v{Cb(0,0)+r}, v{Cb(0,0)+r}, v{V_NINF}, {m}")
        e(f"v_cndmask_b32 v{Cb(1,1)+r}, v{Cb(1,1)+r}, v{V_NINF}, {m}")
        e(f"v_mov_b32 v{Cb(1,0)+r}, v{V_NINF}")

def gen_k12(name="k12_kernel", ts=False, **o):
    a = Asm(); e = a.e
    khead(a, name)
    if ts: ts_start(a)
    e(f"s_cmp_ge_u32 s2, 256\ns_cbranch_scc1 L_{name}_end")
    e(f"s_load_dwordx4 s[4:7], s[0:1], {KA_X}")
    e(f"s_load_dwordx4 s[8:11], s[0:1], {KA_CKV}")
    e(f"s_load_dwordx4 s[12:15], s[0:1], {KA_WUK}")
    e(f"s_load_dwordx4 s[68:71], s[0:1], {KA_DBG}")
    e(f"s_load_dwordx2 s[72:73], s[0:1], {KA_GATE}")
    e(f"s_load_dwordx2 s[76:77], s[0:1], {KA_WO}\ns_load_dwordx2 s[78:79], s[0:1], {KA_WO4}")
    e(f"s_load_dwordx2 s[100:101], s[0:1], {KA_OUT}")
    code_prefetch(a, name, V_PF, V_PFD, 20 if o.get('fuse3') else 16)
    e("v_lshrrev_b32 v1, 6, v0\nv_and_b32 v0, 63, v0\nv_readfirstlane_b32 s3, v1")
    e(f"s_and_b32 s{sH}, s2, 31\ns_lshr_b32 s{sJ}, s2, 5\ns_and_b32 s{sRQ}, s3, 3\ns_lshr_b32 s{sCH}, s3, 2")
    e(f"v_lshlrev_b32 v{V_LANE16}, 4, v0")
    T = K1.V_T
    e(f"v_lshrrev_b32 v{T}, 3, v0\nv_lshlrev_b32 v{T}, 10, v{T}")
    e(f"v_lshrrev_b32 v{T+1}, 4, v0\nv_and_b32 v{T+2}, 7, v0\nv_xor_b32 v{T+1}, v{T+1}, v{T+2}\nv_lshlrev_b32 v{T+1}, 4, v{T+1}")
    e(f"v_add_u32 v{V_A}, v{T}, v{T+1}\nv_xor_b32 v{V_A+1}, 64, v{V_A}\nv_add_u32 v{V_A+1}, 7168, v{V_A+1}")
    e(f"v_add_u32 v{V_A+2}, 14336, v{V_A}\nv_add_u32 v{V_A+3}, 14336, v{V_A+1}")
    e(f"v_lshrrev_b32 v{T}, 4, v0\ns_and_b32 s24, s22, 1\ns_lshl_b32 s24, s24, 2\nv_or_b32 v{T+1}, s24, v{T}\nv_lshlrev_b32 v{T+1}, 1, v{T+1}")
    e(f"v_and_b32 v{T+2}, 15, v0\nv_xor_b32 v{T+1}, v{T+1}, v{T+2}\nv_lshlrev_b32 v{T+1}, 4, v{T+1}")
    e(f"v_lshlrev_b32 v{T}, 13, v{T}\ns_lshl_b32 s24, s22, 16\nv_add3_u32 v{V_W}, v{T}, v{T+1}, s24\nv_add_u32 v{V_W+1}, {4*8192-1024}, v{V_W}")
    e(f"s_lshl_b32 s{sA}, s{sJ}, 18\ns_lshl_b32 s24, s3, 15\ns_add_u32 s{sA}, s{sA}, s24")
    e(f"s_lshl_b32 s{sW}, s20, 8\ns_lshl_b32 s{sP}, s20, 5")
    e(f"s_lshl_b32 s{sMA}, s3, 12\ns_add_u32 s{sMA}, s{sMA}, 65536\ns_lshl_b32 s{sMW}, s3, 11")
    e("s_waitcnt lgkmcnt(0)")
    srd(a, S_CKV, 8, 2048 * 1024)
    e("s_cmp_eq_u32 s23, 0")
    e(f"s_cselect_b32 s{S_W1}, s12, s14\ns_cselect_b32 s{S_W1+1}, s13, s15\ns_and_b32 s{S_W1+1}, s{S_W1+1}, 0xffff\ns_mov_b32 s{S_W1+2}, {512*8192}\ns_mov_b32 s{S_W1+3}, 0x20000")
    e(f"s_cmp_eq_u32 s23, 0\ns_cbranch_scc0 L_{name}_ch1")
    for ch in range(2):
        if ch: a.label(f"L_{name}_ch1")
        phase1(a, f"{name}_c{ch}", ch, ts, o)
        phase2(a, f"{name}_c{ch}", ch, ts, o)
        if o.get('fuse3'): phase3(a, f"{name}_c{ch}", ch, ts, o)
    a.label(f"L_{name}_end")
    e("s_endpgm")
    lines = fixup(a.lines, [name])
    return "\n".join(lines) + "\n" + kdesc(name, 256, 102) + "\n"

def kv_dma(m0src, sv=None, mod="sc1"):
    DMR = f"s[{S_DMA}:{S_DMA+3}]"
    sv = sv or f"s{sV}"
    o = [f"s_mov_b32 m0, {m0src}"]
    o += [(f"buffer_load_dwordx4 v{V_L16}, {DMR}, s{sK} offen offset:{i*1024} {mod} lds", 'KV') for i in range(4)]
    o += [f"s_add_u32 m0, {m0src}, 16384"]
    o += [(f"buffer_load_dwordx4 v{V_L16}, {DMR}, {sv} offen offset:{i*1024} {mod} lds", 'KV') for i in range(4)]
    o += [f"s_add_u32 s{sK}, s{sK}, 16384\ns_add_u32 s{sV}, s{sV}, 16384"]
    return o

def phi(e, r0, n, tt=96):
    for i in range(0, n, 2): e(f"v_pk_mul_f32 {vr(tt+i,2)}, {vr(r0+i,2)}, s[72:73]")
    for i in range(n): e(f"v_exp_f32 v{tt+i}, v{tt+i}")
    for i in range(0, n, 2): e(f"v_pk_add_f32 {vr(r0+i,2)}, {vr(r0+i,2)}, 1.0 op_sel_hi:[1,0]")
    for i in range(n): e(f"v_med3_f32 v{r0+i}, v{tt+i}, v{r0+i}, 1.0")
    for i in range(0, n, 2): e(f"v_pk_add_f32 {vr(r0+i,2)}, {vr(r0+i,2)}, s[74:75]")

def phase1(a, nm, ch, ts, o):
    e = a.e
    vm = VmTrack()
    pf, pf1_at, pf2_at = o.get('pf', 2), o.get('pf1_at', 1), o.get('pf2_at', 8)
    st0, stn = o.get('st0', 16), o.get('stn', 2)
    PUB, POLL, CHK = o.get('pub', 30), o.get('poll', 31), o.get('chk', 32)
    GPUB = 3; DPOLL = 11; DCHK = 15
    ldmod = o.get('ldmod', 'sc1')
    WSR = f"s[{S_WS}:{S_WS+3}]"; DBR = f"s[{S_DBG}:{S_DBG+3}]"
    NH = 32
    T = K1.V_T
    def dmaW(u):
        if u >= NH: return []
        out = []
        slot = (u % 4) * 16384
        if u < 16 or ch == 0:
            rs = S_W1 if u < 16 else S_W2
            so = (u % 16) * 32 * 8192
            out.append(f"s_add_u32 m0, s{sMW}, {slot}\ns_add_u32 s64, s{sW}, {so}")
            for i in range(2):
                out.append((f"buffer_load_dwordx4 v{V_W+i}, s[{rs}:{rs+3}], s64 offen offset:{i*1024} lds", ('W', u)))
        else:
            out.append(f"s_add_u32 m0, s65, {slot}\ns_mov_b32 s64, s{sP}\ns_add_u32 s{sP}, s{sP}, s{sPST}")
            out.append((f"buffer_load_dwordx4 v{V_P}, s[{S_W2}:{S_W2+3}], s64 offen lds", ('W', u)))
        return out
    def dmaA(s, half):
        if s >= 16: return []
        rs, so = (S_CKV, sA) if s < 8 else (S_X, sAX)
        out = [f"s_add_u32 m0, s{sMA}, {(s % 3) * 32768}\ns_add_u32 s66, s{so}, {(s % 8) * 128}"]
        for i in (2 * half, 2 * half + 1):
            out.append((f"buffer_load_dwordx4 v{V_A+i}, s[{rs}:{rs+3}], s66 offen offset:{i*1024} lds", ('A', s)))
        return out
    def emit(x):
        if isinstance(x, tuple):
            if x[1][0] == 'S': assert any(l.startswith(f"v_cvt_pk_bf16_f32 v{ACC1+4*x[1][1]+3},") for l in a.lines[line0:]), x
            e(x[0]); vm.issue(x[1])
        else: e(x)
    line0 = len(a.lines)
    for x in dmaW(0) + dmaA(0, 0) + dmaA(0, 1): emit(x)
    for x in dmaW(1) + dmaA(1, 0) + dmaW(2) + dmaA(1, 1): emit(x)
    srd(a, S_X, 4, 2048 * 1024); srd(a, S_WS, 70, WS_SIZE); srd(a, S_DBG, 68, 256)
    if ch == 0: srd(a, S_W2, 10, 512 * 8192)
    else:
        e(f"s_cmp_eq_u32 s{sRQ}, 3\ns_cselect_b32 s{S_W2}, s72, s6\ns_cselect_b32 s{S_W2+1}, s73, s7\ns_mov_b32 s{S_W2+2}, {512*3072}\ns_cselect_b32 s{S_W2+2}, 1024, s{S_W2+2}")
        e(f"s_cselect_b32 s{sP}, 0, s{sP}\ns_cselect_b32 s{sPST}, 64, {32*3072}\ns_cselect_b64 vcc, -1, 0\ns_and_b32 s{S_W2+1}, s{S_W2+1}, 0xffff\ns_mov_b32 s{S_W2+3}, 0x20000")
        e("s_lshl_b32 s65, s22, 10\ns_add_u32 s65, s65, 8192")
        e(f"v_lshrrev_b32 v{T}, 1, v0\nv_lshrrev_b32 v{T+1}, 2, v0\nv_and_b32 v{T+1}, 4, v{T+1}\nv_xor_b32 v{T}, v{T}, v{T+1}\nv_mul_u32_u24 v{T}, 3072, v{T}")
        e(f"v_and_b32 v{T+1}, 1, v0\nv_lshlrev_b32 v{T+1}, 4, v{T+1}\ns_lshl_b32 s24, s22, 10\nv_add3_u32 v{V_P}, v{T}, v{T+1}, s24")
        e(f"v_and_b32 v{T}, 48, v0\nv_cndmask_b32 v{V_P}, v{V_P}, v{T}, vcc")
    e(f"s_sub_u32 s26, 15, s{sJ}")
    e(f"s_lshl_b32 s{sAX}, s{26 if ch == 0 else sJ}, 17\ns_lshl_b32 s24, s{sRQ}, 15\ns_add_u32 s{sAX}, s{sAX}, s24")
    e(f"v_and_b32 v{T}, 15, v0\nv_lshrrev_b32 v{T+1}, 1, v{T}\nv_lshrrev_b32 v{T+2}, 4, v0\nv_xor_b32 v{T+1}, v{T+1}, v{T+2}\nv_lshlrev_b32 v{T+1}, 4, v{T+1}")
    e(f"v_lshlrev_b32 v{T}, 7, v{T}\ns_lshl_b32 s24, s22, 13\ns_add_u32 s24, s24, 65536\nv_add3_u32 v{V_RA}, v{T}, v{T+1}, s24")
    e(f"v_xor_b32 v{V_RA+1}, 64, v{V_RA}\nv_add_u32 v{V_RA+2}, 0x10000, v{V_RA}\nv_add_u32 v{V_RA+3}, 0x10000, v{V_RA+1}")
    e(f"v_lshrrev_b32 v{T}, 4, v0\nv_bfe_u32 v{T+1}, v0, 2, 2\nv_lshl_add_u32 v{T+2}, v{T}, 3, v{T+1}\nv_lshlrev_b32 v{T+2}, 8, v{T+2}")
    e(f"v_and_b32 v{T+3}, 1, v{T}\nv_lshl_add_u32 v{T+3}, v{T+3}, 2, v{T+1}\nv_lshlrev_b32 v{T+3}, 5, v{T+3}")
    e(f"v_and_b32 v{T+4}, 3, v0\nv_lshlrev_b32 v{T+4}, 3, v{T+4}\nv_add3_u32 v{V_RW}, v{T+2}, v{T+3}, v{T+4}")
    for n in range(1, 8): e(f"v_xor_b32 v{V_RW+n}, {32*n}, v{V_RW}")
    e(f"v_lshlrev_b32 v{T+2}, 8, v{T}\nv_add3_u32 v{V_RP}, v{T+2}, v{T+3}, v{T+4}\nv_xor_b32 v{V_RP+1}, 128, v{V_RP}")
    e(f"s_lshl_b32 s57, s20, 19\ns_lshl_b32 s24, s21, 2\ns_add_u32 s24, s24, s22\ns_lshl_b32 s24, s24, 14\ns_add_u32 s57, s57, s24")
    base = WS_VF if ch else WS_KF
    for i in range(4): e(f"s_add_u32 s{sST+i}, s57, {base + i*4096}")
    e(f"s_lshl_b32 s{sFB}, s{sH}, 15\ns_add_u32 s{sFB}, s{sFB}, {WS_KVA + FLO}")
    e(f"v_mov_b32 v{V_ONE}, 1\ns_lshl_b32 s24, s{sH}, 2\nv_mov_b32 v{V_DO}, s24")
    if o.get('fuse3'): e(f"s_movk_i32 s24, 128\nv_writelane_b32 v{V_DO}, s24, 1")
    if ch == 0:
        t = TMP
        e(f"v_mov_b32 v{t}, 0")
        e(f"s_lshl_b32 s27, s{sJ}, 2\ns_add_u32 s27, s27, s{sRQ}\ns_cmp_eq_u32 s27, 0\ns_cselect_b32 s24, s{sFB}, {WS_SIZE}\nv_lshl_add_u32 v{T}, v0, 2, s24")
        emit((f"buffer_store_dword v{t}, v{T}, {WSR}, 0 offen sc1", ('G', 2)))
        if o.get('fuse3'):
            for i in range(1, 4): e(f"v_mov_b32 v{t+i}, 0")
            e(f"s_mul_i32 s24, s{sRQ}, 2048\ns_add_u32 s24, s24, {WS_DONE}\ns_cmp_eq_u32 s2, 0\ns_cselect_b32 s24, s24, {WS_SIZE}\nv_add_u32 v{T+1}, s24, v{V_LANE16}")
            for i in range(2): emit((f"buffer_store_dwordx4 {vr(t,4)}, v{T+1}, {WSR}, 0 offen offset:{i*1024} sc1", ('G', 2)))
        e(f"s_lshl_b32 s24, s{sH}, 2\ns_cmp_eq_u32 s27, 0\ns_cselect_b32 s24, s24, 0x1000\nv_mov_b32 v{V_FO}, s24")
        if o.get('fuse3'): e(f"s_add_u32 s24, s2, s3\ns_cmp_eq_u32 s24, 0\ns_movk_i32 s24, 0x1000\ns_cselect_b32 s24, 128, s24\nv_writelane_b32 v{V_FO}, s24, 1")
        e(f"s_lshl_b32 s24, s{sJ}, 2\ns_add_u32 s24, s24, s{sFB}\ns_cmp_eq_u32 s{sRQ}, 0\ns_cselect_b32 s24, s24, {WS_SIZE}\nv_mov_b32 v{V_FL}, s24")
    else:
        e(f"v_lshlrev_b32 v{V_FO}, 2, v0")
    def pf_batch(b):
        ptr, size, two = {(0, 0): (10, 0x400000, 1), (0, 1): (10, 0x400000, 1), (0, 2): (4, 0x200000, 0), (0, 3): (6, 0x180000, 0),
                          (1, 0): (78, 0x400000, 1), (1, 1): (78, 0x400000, 1), (1, 2): (76, 0x80000, 0), (1, 3): (76, 0, 0)}[(ch, b)]
        if size == 0: return []
        oo = [f"s_mov_b32 s72, s{ptr}\ns_and_b32 s73, s{ptr+1}, 0xffff\ns_mov_b32 s75, 0x20000\ns_cmp_eq_u32 s22, {b}\ns_cselect_b32 s74, {size}, 0\n"
              + (f"s_lshl_b32 s68, s2, 14\ns_add_u32 s68, s68, {(b % 2) * 8192}" if two else "s_lshl_b32 s68, s2, 13")
              + f"\nv_lshlrev_b32 v{V_PF}, 7, v0\nv_add_u32 v{V_PF}, s68, v{V_PF}"]
        oo.append((f"buffer_load_dword v{V_PFD}, v{V_PF}, s[72:75], 0 offen", ('PF', b)))
        return oo
    def pf_any(tbl):
        for rq in range(4):
            ptr, size, sh, add = tbl[rq]
            if rq == 0: e(f"s_mov_b32 s72, s{ptr}\ns_mov_b32 s73, s{ptr+1}\ns_mov_b32 s74, {size}\ns_lshl_b32 s68, s2, {sh}\ns_add_u32 s68, s68, {add}")
            else: e(f"s_lshl_b32 s69, s2, {sh}\ns_add_u32 s69, s69, {add}\ns_cmp_eq_u32 s{sRQ}, {rq}\ns_cselect_b32 s72, s{ptr}, s72\ns_cselect_b32 s73, s{ptr+1}, s73\ns_cselect_b32 s74, {size}, s74\ns_cselect_b32 s68, s69, s68")
        e(f"s_and_b32 s73, s73, 0xffff\ns_mov_b32 s75, 0x20000\nv_lshlrev_b32 v{V_PF}, 7, v0\nv_add_u32 v{V_PF}, s68, v{V_PF}")
        emit((f"buffer_load_dword v{V_PFD}, v{V_PF}, s[72:75], 0 offen", ('PF', 0)))
    o['_pf_any'] = pf_any
    if o.get('pfmode', 3) == 2 or (o.get('pfmode', 3) == 3 and ch == 1): pf = 0
    if o.get('pfmode', 3) == 1:
        pf = 0
        if ch == 0: pf_any({0: (10, 0x400000, 14, 0), 1: (10, 0x400000, 14, 8192), 2: (4, 0x200000, 13, 0), 3: (6, 0x180000, 13, 0)})
    def acc1(mt, nt):
        if ch == 0: return ACC1 + (((nt // 2) * 4 + mt) * 2 + nt % 2) * 4
        return ACC1 + ((nt * 2 + mt // 2) * 2 + mt % 2) * 4
    if ch == 0:
        tiles2 = [('Q', 4), ('Q', 5), ('Q', 0), ('Q', 1), ('Q', 2), ('Q', 3)]
        def acc2(kind, idx, mt): return ACC2 + (((idx // 2) * 4 + mt) * 2 + idx % 2) * 4
    else:
        tiles2 = [('Q', 6), ('Q', 7), ('G', 3), ('P', 0), ('P', 1), ('P', 2)]
        def acc2(kind, idx, mt):
            if kind == 'Q': return ACC2 + 64 + (mt * 2 + idx % 2) * 4
            return ACC2 + (idx * 4 + mt) * 4
    frags = []
    for u in range(NH):
        slot = (u % 4) * 16384
        ab = AF + (u % 2) * 16
        first = (u % 16 == 0)
        tl = [('W', n) for n in range(8)] if u < 16 else tiles2
        for kind, idx in tl:
            if kind == 'W':
                rd = (lambda d, idx=idx, slot=slot: [f"ds_read_b64_tr_b16 {vr(d+2*hf,2)}, v{V_RW+idx} offset:{slot+ch*8192+hf*1024}" for hf in range(2)])
                wfirst = (ch == 0); accf = (lambda mt, idx=idx: acc1(mt, idx))
            elif kind == 'Q':
                rd = (lambda d, idx=idx, slot=slot: [f"ds_read_b64_tr_b16 {vr(d+2*hf,2)}, v{V_RW+idx} offset:{slot+hf*1024}" for hf in range(2)])
                wfirst = True; accf = (lambda mt, idx=idx: acc2('Q', idx, mt))
            elif kind == 'G':
                rd = (lambda d, idx=idx, slot=slot: [f"ds_read_b128 {vr(d,4)}, v{V_LANE16} offset:{slot+8192+3*1024}", ""])
                wfirst = True; accf = (lambda mt, idx=idx: acc2('G', idx, mt))
            else:
                rd = (lambda d, idx=idx, slot=slot: [f"ds_read_b64_tr_b16 {vr(d+2*hf,2)}, v{V_RP+hf} offset:{slot+8192+idx*1024}" for hf in range(2)])
                wfirst = (idx == 0); accf = (lambda mt, idx=idx: acc2('P', idx, mt))
            def mf(w, mt, accf=accf, wfirst=wfirst, ab=ab, first=first):
                d = vr(accf(mt), 4); A = vr(ab + mt * 4, 4); W = vr(w, 4)
                x, y = (W, A) if wfirst else (A, W)
                return f"{MF} {d}, {x}, {y}, {'0' if first else d}"
            frags.append((u, rd, mf))
    def act_reads(u):
        if u >= NH: return []
        s = u // 2; ks = u % 2; sl = s % 3
        ab = AF + (u % 2) * 16
        reg = V_RA + ks + (2 if sl == 2 else 0)
        off = 32768 if sl == 1 else 0
        return [f"ds_read_b128 {vr(ab+mt*4,4)}, v{reg} offset:{off+mt*2048}" for mt in range(4)]
    def barrier(u):
        pred = lambda tg: tg == ('W', u) or tg == ('A', u // 2) or (u == PUB and tg[0] in ('S', 'G')) or (u == GPUB and tg[0] == 'G')
        if u < NH: e(f"s_waitcnt vmcnt({vm.n_after(pred)}) lgkmcnt(0)\ns_barrier")
        else: e("s_waitcnt lgkmcnt(0)\ns_barrier")
        if o.get('trace'): stamp(u)
    def stamp(i):
        e(f"s_memrealtime s[84:85]\ns_waitcnt lgkmcnt(0)\nv_writelane_b32 v{V_PF2}, s84, {i}")
    def store_kv(j):
        fi = ((j % 4) * 4 + j // 4) if ch == 0 else ((j % 2) * 8 + j // 2)
        return (f"buffer_store_dwordx4 {vr(ACC1+4*j,4)}, v{V_LANE16}, {WSR}, s{sST+fi//4} offen offset:{(fi%4)*1024} {o.get('kvst', 'sc1')}", ('S', j))
    poll = (f"buffer_load_dword v{V_FL}, v{V_FO}, {WSR}, s{sFB} offen sc1", ('F', 0))
    dpoll = (f"buffer_load_dword v{V_DV}, v{V_DO}, {DBR}, 0 offen sc1", ('F', 2))
    def spin(tag, chk, ld):
        e(chk + f"\ns_cbranch_scc1 L_{nm}_{tag}ok")
        e("s_mov_b32 s66, 0x20000")
        a.label(f"L_{nm}_{tag}spin")
        e(f"s_sleep {o.get('sleep', 8)}")
        e(ld)
        e(chk + f"\ns_cbranch_scc1 L_{nm}_{tag}ok")
        e(f"s_sub_u32 s66, s66, 1\ns_cmp_lg_u32 s66, 0\ns_cbranch_scc1 L_{nm}_{tag}spin")
        a.label(f"L_{nm}_{tag}ok")
    def check_clear():
        spin("c", f"v_cmp_ne_u32 vcc, 0, v{V_DV}\ns_cmp_eq_u32 vcc_lo, -1", dpoll[0])
    def check_flags():
        spin("f", f"v_cmp_eq_u32 vcc, 1, v{V_FL}\ns_and_b32 s64, vcc_lo, 0xff\ns_cmp_eq_u32 s64, 0xff", poll[0])
    NF = len(frags)
    D = RING - 1
    def plan(u):
        G = sum(1 for f in frags if f[0] == u) if u else sum(1 for f in frags if f[0] == 0) - D + 1
        if u == NH: G = D - 1
        nsl = 4 * G
        ops = dmaW(u + 3) + dmaA(u // 2 + 2, u % 2)
        for j in range(16):
            if st0 + (j * o.get('stspan', 12)) // 16 == u: ops.append(store_kv(j))
        npre = o.get('pre', 0)
        for j in range(npre):
            if 1 + (j * o.get('prespan', 12)) // npre == u:
                fi = j * (16 // npre)
                if o.get('preld'): ops.append((f"buffer_load_dwordx4 {vr(224,4)}, v{V_LANE16}, {WSR}, s{sST+fi//4} offen offset:{(fi%4)*1024} sc1", ('Z', j)))
                else: ops.append((f"buffer_store_dwordx4 {vr(TMP,4)}, v{V_LANE16}, {WSR}, s{sST+fi//4} offen offset:{(fi%4)*1024} sc1", ('Z', j)))
        if pf:
            u0 = pf1_at if ch == 0 else pf2_at
            if u >= u0 and (u - u0) % pf == 0 and (u - u0) // pf < 4: ops += pf_batch((2, 3, 0, 1)[(u - u0) // pf])
        if u == GPUB and ch == 0: ops = [(f"buffer_store_dword v{V_ONE}, v{V_FO}, {DBR}, 0 offen sc1", ('F', 1))] + ops
        if u == PUB and ch == 0: ops = [(f"buffer_store_dword v{V_ONE}, v{V_FL}, {WSR}, 0 offen sc1", ('F', 1))] + ops
        if u == DPOLL: ops = [dpoll] + ops
        if ch == 1:
            if u == 16:
                ops = ops + [f"s_mov_b32 s{S_DMA}, s{S_WS}\ns_mov_b32 s{S_DMA+1}, s{S_WS+1}\ns_mov_b32 s{S_DMA+2}, {WS_SIZE}\ns_mov_b32 s{S_DMA+3}, 0x20000\n"
                             f"s_lshl_b32 s{sWOFF}, s{sRQ}, 12\ns_lshl_b32 s7, s{sH}, 19\ns_add_u32 s{sK}, s7, s{sWOFF}\ns_add_u32 s{sV}, s{sK}, {WS_VF - 8192}\n"
                             f"s_add_u32 s13, s{sK}, {WS_KF}\ns_cmp_lt_u32 s{sRQ}, 2\ns_cselect_b32 s13, s13, s{sV}\ns_add_u32 s{sK}, s{sK}, {WS_KF + 8192}\n"
                             f"s_add_u32 s14, s{sWOFF}, {SP0*SLOT}\ns_add_u32 s15, s{sWOFF}, {((SP0+1)%NSLOT)*SLOT}"]
            if u == POLL: ops = ops + [poll]
            if u == CHK: ops = ops + [(x[0], ('KV', 0)) if isinstance(x, tuple) else x for x in kv_dma("s14", "s13", ldmod)]
            if u == min(CHK + o.get('kv1', 0), NH): ops = ops + [(x[0], ('KV', 1)) if isinstance(x, tuple) else x for x in kv_dma("s15", None, ldmod)]
        units = []; cur = []
        for x in ops:
            cur.append(x)
            if isinstance(x, tuple): units.append(cur); cur = []
        sch = {}
        if u == 30:
            su = [f"s_lshl_b32 s4, s{sJ}, 1\ns_sub_u32 s{sJL}, 32, s4", f"s_lshl_b32 s4, s{sJ}, 2",
                  (f"s_add_u32 s5, s4, 3\ns_sub_u32 s{sT}, s5, s{sRQ}" if ch else f"s_sub_u32 s6, 60, s4\ns_add_u32 s{sT}, s6, s{sRQ}"),
                  f"s_lshl_b32 s7, s{sH}, 19\ns_mov_b32 s{sRD}, {SP0*SLOT}", f"s_mov_b32 s{sNB}, 1\ns_mov_b32 s{sREM}, s{sT}", f"s_mov_b32 s{sFLAG}, 0\ns_lshl_b32 s12, s{sRQ}, 13",
                  (f"s_sub_u32 s12, {32768+3*8192}, s12" if ch else "s_nop 0"),
                  f"v_lshrrev_b32 v{T+3}, 4, v0\nv_lshlrev_b32 v{T+3}, 2, v{T+3}", f"v_and_b32 v{T+4}, 15, v0"]
            for r in range(4): su += [f"v_cmp_gt_u32 {sr(sMASK+2*r,2)}, v{T+3}, v{T+4}", f"v_add_u32 v{T+3}, 1, v{T+3}"]
            su += [f"s_mov_b32 s70, {f32hex(LOG2E / math.sqrt(128.0))}\ns_mov_b32 s71, s70", f"s_lshl_b32 s64, s{sRQ}, 14\ns_add_u32 s64, s64, 32768", f"v_add_u32 v{T}, s64, v{V_LANE16}"]
            if ch: su += [f"s_mov_b32 s72, {f32hex(LOG2E)}\ns_mov_b32 s73, s72",
                          f"s_lshl_b32 s74, s{sJ}, 1\ns_sub_u32 s75, 30, s74\ns_sub_u32 s74, s74, 2\ns_cmp_lt_u32 s{sRQ}, 2\ns_cselect_b32 s74, s75, s74\ns_add_u32 s74, s74, s{sRQ}",
                          f"s_lshl_b32 s49, s74, 16\ns_lshl_b32 s75, s{sH}, 11\ns_add_u32 s49, s49, s75\ns_add_u32 s49, s49, {WS_PQ3}",
                          f"s_lshl_b32 s75, s74, 10\ns_add_u32 s75, s75, {WS_G3}\ns_cmp_eq_u32 s{sH}, 0\ns_cselect_b32 s75, s75, {WS_SIZE}\nv_add_u32 v{T+2}, s75, v{V_LANE16}",
                          f"s_mov_b32 s74, {f32hex(1e-6)}\ns_mov_b32 s75, s74"]
            for i, x in enumerate(su): sch.setdefault(min(i, nsl - 1), []).append(x)
        n = len(units)
        for i, un in enumerate(units):
            p = min(int((i + (0.25 if ch == 0 else 0.75)) * nsl / n), nsl - 1)
            for x in un[:-1]: sch.setdefault(max(p - 1, 0), []).append(x)
            sch.setdefault(p, []).append(un[-1])
        if cur: sch.setdefault(nsl - 1, []).extend(cur)
        if u:
            for i, x in enumerate(act_reads(u)): sch.setdefault(2 + 3 * i, []).append(x)
        return sch
    barrier(0)
    for x in act_reads(0): e(x)
    for q in range(D):
        for x in frags[q][1](WF + (q % RING) * 4): e(x)
    published = 0
    sch = plan(0); slot = 0
    packs = [f"v_cvt_pk_bf16_f32 v{ACC1+4*j+i}, v{ACC1+8*j+2*i}, v{ACC1+8*j+2*i+1}" for j in range(16) for i in range(4)]
    npacked = 0
    for q in range(NF):
        u, rd, mf = frags[q]
        w = WF + (q % RING) * 4
        nxt = q + D
        reads = []
        need_bar = False
        if nxt < NF:
            if frags[nxt][0] > published: need_bar = True
            reads = frags[nxt][1](WF + (nxt % RING) * 4)
        elif nxt == NF: need_bar = True
        avail = 0
        if u == 15:
            nt = q - 15 * 8
            avail = max((16 * ((nt - 1) // 2) if ch == 0 else 8 * (nt - 1)) if nt >= 1 else 0, 0)
        elif u >= 16: avail = 64
        for mt in range(4):
            if u == 16 and q - 128 >= 2:
                while npacked < 64: e(packs[npacked]); npacked += 1
            e(mf(w, mt))
            if not need_bar and reads and mt in (0, 1): e(reads[mt])
            for x in sch.pop(slot, []): emit(x)
            slot += 1
            k = 0
            while npacked < avail and k < 3: e(packs[npacked]); npacked += 1; k += 1
        if need_bar:
            for sl in sorted(sch):
                for x in sch[sl]: emit(x)
            published += 1
            barrier(published)
            for x in reads: e(x)
            if published == DCHK: check_clear()
            if ch == 1 and published == CHK:
                check_flags()
                if o.get('trace'): stamp(40)
            sch = plan(published); slot = 0
    for sl in sorted(sch):
        for x in sch[sl]: emit(x)
    def q_out(src, mt, t):
        for i in range(4): e(f"v_pk_mul_f32 {vr(src+2*i,2)}, {vr(src+2*i,2)}, s[70:71]")
        for i in range(4): e(f"v_cvt_pk_bf16_f32 v{src+i}, v{src+2*i}, v{src+2*i+1}")
        e(f"ds_write_b128 v{T}, {vr(src,4)} offset:{mt*4096+t*1024}")
    if ch == 0:
        for t in (2, 0, 1):
            for mt in range(4): q_out(acc2('Q', 2 * t, mt), mt, t)
        e("s_waitcnt lgkmcnt(0)\ns_barrier")
    else:
        for mt in range(4): q_out(acc2('Q', 6, mt), mt, 3)
        GQ = acc2('G', 3, 0)
        for mt in range(4): e(f"v_mul_f32 v{GQ+mt}, {f32hex(-LOG2E)}, v{GQ+4*mt}")
        for mt in range(4): e(f"v_exp_f32 v{GQ+mt}, v{GQ+mt}")
        for mt in range(4): e(f"v_add_f32 v{GQ+mt}, 1.0, v{GQ+mt}")
        for mt in range(4): e(f"v_rcp_f32 v{GQ+mt}, v{GQ+mt}")
        e(f"v_and_b32 v{T+1}, 15, v0\ns_lshl_b32 s64, s{sRQ}, 8\nv_lshl_add_u32 v{T+1}, v{T+1}, 2, s64")
        for mt in range(4): e(f"ds_write_b32 v{T+1}, v{GQ+mt} offset:{mt*64}")
        qa, ka, va = acc2('P', 0, 0), acc2('P', 1, 0), acc2('P', 2, 0)
        emit((f"buffer_store_dwordx4 {vr(GQ,4)}, v{T+2}, {WSR}, 0 offen sc1", ('Q', 0)))
        phi(e, ka, 16)
        for i in range(8): e(f"v_cvt_pk_bf16_f32 v{ka+i}, v{ka+2*i}, v{ka+2*i+1}")
        for i in range(8): e(f"v_cvt_pk_bf16_f32 v{va+i}, v{va+2*i}, v{va+2*i+1}")
        for r in range(4): e(f"v_mov_b32 v{ONES+r}, 0x3f803f80")
        kv = 112; z = 116
        for uu in range(2):
            e(f"{MF} {vr(kv,4)}, {vr(ka+4*uu,4)}, {vr(va+4*uu,4)}, {vr(kv,4) if uu else '0'}")
            e(f"{MF} {vr(z,4)}, {vr(ka+4*uu,4)}, {vr(ONES,4)}, {vr(z,4) if uu else '0'}")
        e(f"s_lshl_b32 s64, s{sRQ}, 11\nv_add_u32 v{T+1}, s64, v{V_LANE16}")
        e(f"ds_write_b128 v{T+1}, {vr(kv,4)} offset:1024\nds_write_b128 v{T+1}, {vr(z,4)} offset:2048")
        e(f"s_waitcnt vmcnt({vm.n_after(lambda tg: tg == ('KV', 0))}) lgkmcnt(0)\ns_barrier")
    o['_acc2'] = acc2
    o['_nkv1'] = vm.n_after(lambda tg: tg == ('KV', 1))
    if o.get('trace'):
        stamp(33)
        e(f"s_lshl_b32 s68, s2, 3\ns_add_u32 s68, s68, s3\ns_lshl_b32 s68, s68, 8\ns_add_u32 s68, s68, {WS_TS + MB}\nv_lshlrev_b32 v{V_PF}, 2, v0")
        e(f"buffer_store_dword v{V_PF2}, v{V_PF}, {WSR}, s68 offen")

def phase2(a, nm, grp, ts, o):
    e = a.e
    D = 8
    force_fb = o.get('force_fb', False)
    ldmod = o.get('ldmod', 'sc1')
    WSR = f"s[{S_WS}:{S_WS+3}]"; DBR = f"s[{S_DBG}:{S_DBG+3}]"
    def dma_ops(m0src): return [x[0] if isinstance(x, tuple) else x for x in kv_dma(m0src, None, ldmod)]
    if ts and o.get('mk', 0) == 0: ts_mark(a)
    def foff(i):
        st, k = divmod(i, 16)
        return (st * 8192 + k * 1024) if k < 8 else (16384 + st * 8192 + (k - 8) * 1024)
    def rd(i): return f"ds_read_b128 {vr(ring(i),4)}, v{V_RN if i >= 32 else V_RD} offset:{foff(i % 32)}"
    if grp and o.get('prio', 1): e("s_setprio 1")
    e(f"v_add_u32 v{V_RN}, s12, v{V_L16}\nv_add_u32 v{V_RD}, {SP0*SLOT}, v{V_L16}")
    for i in range(4):
        e(f"ds_read_b128 {vr(QR+4*i,4)}, v{V_RN} offset:{32768+i*1024}\nds_read_b128 {vr(QR+16+4*i,4)}, v{V_RN} offset:{32768+4096+i*1024}")
        e(rd(8 + i))
    for i in range(4, 8): e(rd(8 + i))
    e(f"s_lshr_b32 s12, s12, 6\nv_and_b32 v{V_T+1}, 15, v0\nv_lshl_add_u32 v{V_T+2}, v{V_T+1}, 2, s12")
    for qt in range(2): e(f"ds_read_b32 v{V_G+qt}, v{V_T+2} offset:{qt*64}")
    if grp:
        for r in range(8): e(f"ds_read_b128 {vr(64+4*r,4)}, v{V_L16} offset:{1024+r*1024}")
    e(f"v_mov_b32 v{V_NINF}, 0xff800000")
    if not grp:
        for r in range(4): e(f"v_mov_b32 v{ONES+r}, 0x3f803f80")
    nextaddr = [f"s_add_u32 s{sRD}, s{sRD}, {SLOT}", f"s_cmp_eq_u32 s{sRD}, {NSLOT*SLOT}\ns_cselect_b32 s{sRD}, 0, s{sRD}", f"v_add_u32 v{V_RN}, s{sRD}, v{V_L16}"]
    bar = (f"s_waitcnt vmcnt({8*(NSLOT-3)})\n" if grp else "") + "s_barrier"
    def bar_post():
        oo = [f"v_mov_b32 v{V_RD}, v{V_RN}"]
        if grp:
            oo.append(f"s_cmp_eq_u32 s{sNB}, 2\ns_cselect_b32 s{S_DBG+2}, {WS_SIZE}, 0\ns_add_u32 s15, s{sNB}, {NSLOT-2}\ns_cmp_gt_u32 s15, s{sJL}\ns_cselect_b32 s{S_DMA+2}, 0, s{S_DMA+2}")
            oo.append(f"buffer_store_dword v5, v4, {DBR}, 0 offen sc1")
            oo += dma_ops(f"s{sDW}")
            oo.append(f"s_add_u32 s{sDW}, s{sDW}, {SLOT}\ns_cmp_ge_u32 s{sDW}, {NSLOT*SLOT}\ns_cselect_b32 s{sDW}, s{sWOFF}, s{sDW}")
        oo.append(f"s_add_u32 s{sNB}, s{sNB}, 1")
        return oo
    def late_dma(j):
        if grp:
            e(f"s_add_u32 s14, s{sWOFF}, {((SP0+j)%NSLOT)*SLOT}")
            for x in dma_ops("s14"): e(x)
    qk0 = [x for _, x in qk_mfmas(0, lambda i: ring(8 + i))]
    for kt in range(2):
        for qt in range(2): qk0 = [x.replace(", " + vr(Cb(kt, qt), 4), ", 0") for x in qk0]
    for x in interleave(qk0, [(8 + i, rd(i)) for i in range(D)]): e(x)
    if grp:
        e(f"s_waitcnt vmcnt({o['_nkv1']}) lgkmcnt(8)\ns_barrier")
        late_dma(2)
        for r in range(1, 4):
            for i in range(8): e(f"v_add_f32 v{64+i}, v{64+i}, v{64+8*r+i}")
        e(f"s_lshl_b32 s64, s{sJ}, 11\ns_add_u32 s64, s64, s{sFB}\ns_sub_u32 s64, s64, {FLO}\ns_cmp_eq_u32 s{sRQ}, 0\ns_cselect_b32 s64, s64, {WS_SIZE}\nv_add_u32 v{V_T}, s64, v{V_L16}")
        for i in range(2): e(f"buffer_store_dwordx4 {vr(64+4*i,4)}, v{V_T}, {WSR}, 0 offen offset:{i*1024} sc1")
        qa = o['_acc2']('P', 0, 0)
        phi(e, qa, 16)
        for i in range(8): e(f"v_cvt_pk_bf16_f32 v{qa+i}, v{qa+2*i}, v{qa+2*i+1}")
        for uu in range(2): e(f"buffer_store_dwordx4 {vr(qa+4*uu,4)}, v{V_L16}, {WSR}, s49 offen offset:{uu*1024} sc1")
        e(f"s_add_u32 s{sDW}, s{sWOFF}, {SP0*SLOT}")
        e(f"s_mov_b32 s{S_DBG}, s{S_WS}\ns_mov_b32 s{S_DBG+1}, s{S_WS+1}\ns_mov_b32 s{S_DBG+2}, 0\ns_mov_b32 s{S_DBG+3}, 0x20000")
        e(f"s_lshl_b32 s64, s{sJ}, 2\ns_add_u32 s64, s64, 32\ns_add_u32 s64, s64, s{sFB}\ns_cmp_eq_u32 s{sRQ}, 0\ns_cselect_b32 s64, s64, {WS_SIZE}\nv_mov_b32 v4, s64\nv_mov_b32 v5, 1")
        e(f"s_cmp_eq_u32 s{sT}, 0\ns_cbranch_scc0 L_{nm}_nomask0")
        for r in range(4):
            m = sr(sMASK + 2 * r, 2)
            e(f"v_cndmask_b32 v{SR+r}, v{SR+r}, v{V_NINF}, {m}\nv_cndmask_b32 v{SR+12+r}, v{SR+12+r}, v{V_NINF}, {m}\nv_mov_b32 v{SR+4+r}, v{V_NINF}")
        a.label(f"L_{nm}_nomask0")
    else:
        e("s_waitcnt lgkmcnt(8)\ns_barrier")
    def rowmax(dst, b, qt, acc=False):
        s = SR + b * 16 + qt * 8
        e(f"v_max3_f32 v{dst}, v{s}, v{s+1}, " + (f"v{dst}" if acc else f"v{s+1}"))
        for i in range(1, 4): e(f"v_max3_f32 v{dst}, v{s+2*i}, v{s+2*i+1}, v{dst}")
    def set_c():
        for qt in range(2):
            for kt in range(2):
                for r in range(4): e(f"v_sub_f32 v{Cb(kt,qt)+r}, 0, v{V_T+4+qt}")
    for qt in range(2): rowmax(V_T + 4 + qt, 0, qt)
    for qt in range(2): xgroup(e, "v_max_f32", V_T + 4 + qt, V_T + 6 + qt)
    late_dma(3)
    set_c()
    for i in range(16): e(f"v_sub_f32 v{SR+i}, v{SR+i}, v{V_T+4+i//8}")
    late_dma(4)
    if grp and o.get('prio', 1): e("s_setprio 0")
    ncb = [0]
    def cond_bar(between=(), vmn=None):
        ncb[0] += 1
        L = f"L_{nm}_cb{ncb[0]}"
        oo = [f"s_cmp_ge_u32 s{sNB}, s{sJL}\ns_cbranch_scc1 {L}"]
        if grp:
            oo.append(f"s_cmp_eq_u32 s{sNB}, 1\ns_cbranch_scc1 {L}")
            oo.append(f"s_add_u32 s15, s{sNB}, 1\ns_cmp_lg_u32 s15, s{sJL}\ns_cbranch_scc1 {L}n\ns_waitcnt vmcnt(0)\n{L}n:")
        oo.append(bar if vmn is None else f"s_waitcnt vmcnt({vmn})\ns_barrier")
        bp = bar_post()[1:-1]
        if grp: bp = bp[:2] + [f"s_cbranch_scc1 {L}d"] + bp[2:] + [f"{L}d:"]
        oo += bp
        if vmn is not None:
            oo = [x.replace(f"s_cbranch_scc1 {L}\n", f"s_cbranch_scc1 {L}s\n") if not x.endswith(L) else x + "s" for x in oo]
            oo.append(f"s_branch {L}\n{L}s:\ns_waitcnt vmcnt(0)")
        oo.append(f"{L}:")
        oo += list(between)
        oo += [bar_post()[0], bar_post()[-1]]
        return "\n".join(oo)
    def step(st, tailops=(), mode='loop'):
        mf = qk_mfmas(1 - st, lambda i: ring(st * 16 + i)) + [(8 + f, x) for f, x in pv_mfmas(1 - st, lambda i: ring(st * 16 + 8 + i))]
        main = []
        for m, (f, x) in enumerate(mf):
            if m % 8 == 0: x += " ; also " + ",".join(vr(ring(st*16+f+j), 4) for j in range(1, 4))
            main.append(x)
        main += sum_mfmas(1 - st)
        if mode == 'nobar':
            def zc(x):
                c, _, cm = x.partition(" ;")
                pp = c.split(", "); pp[3] = "0"
                return ", ".join(pp) + (" ;" + cm if cm else "")
            main = main[:16] + [zc(x) for x in main[16:]]
        exps, _, cvts = sm_ops(st)
        fill = [(2 * i, exps[i]) for i in range(16)] + [(4 * i + 3, cvts[i]) for i in range(8)]
        if st == 0:
            for i, x in enumerate(nextaddr): fill.append((3 + 8 * i, x))
        for k in range(16):
            tgt = st * 16 + k + D
            pos = 4 * (k // 2) + 1
            if tgt == 32:
                if mode == 'loop':
                    fill.append((pos - 2, bar))
                    for i, x in enumerate(bar_post()): fill.append((pos + 1 + i, x))
                elif mode == 'cond': fill.append((pos - 2, cond_bar()))
                else: fill.append((pos + 2, bar_post()[0])); fill.append((pos + 3, bar_post()[-1]))
            fill.append((pos, rd(tgt)))
        for i, x in enumerate(tailops): fill.append((33, x))
        fill = [(min(p, 33), x) for p, x in fill]
        fill.sort(key=lambda t: t[0])
        for x in interleave(main, fill): e(x)
    def step0_first():
        main = [x for _, x in qk_mfmas(1, ring)]
        exps, _, cvts = sm_ops(0)
        fill = [(i, exps[i]) for i in range(16)] + [(2 * i + 2, cvts[i]) for i in range(8)]
        for i, x in enumerate(nextaddr): fill.append((3 + 4 * i, x))
        for k in range(8): fill.append((2 * k + 1, rd(16 + k)))
        fill.sort(key=lambda t: t[0])
        for x in interleave(main, fill): e(x)
    if ts and o.get('mk', 0) == 1: ts_mark(a)
    if grp:
        e(f"s_cmp_lt_u32 s{sREM}, 3\ns_cbranch_scc0 L_{nm}_big")
        for r in range(64): e(f"v_mov_b32 v{OR+r}, 0")
        for r in range(8): e(f"v_mov_b32 v{PR+8+r}, 0\nv_mov_b32 v{LS+r}, 0")
        e(f"s_branch L_{nm}_chk")
        a.label(f"L_{nm}_big")
    step0_first()
    if not grp and o.get('g1pf', 1):
        e(f"s_cmp_lt_u32 s{sRQ}, 2\ns_cselect_b32 s72, s78, s76\ns_cselect_b32 s73, s79, s77\ns_mov_b32 s74, 0x80000\ns_cselect_b32 s74, 0x400000, s74\ns_lshl_b32 s68, s2, 1\ns_and_b32 s69, s{sRQ}, 1\ns_add_u32 s68, s68, s69\ns_lshl_b32 s68, s68, 13")
        e(f"s_and_b32 s73, s73, 0xffff\ns_mov_b32 s75, 0x20000\nv_lshlrev_b32 v242, 7, v0\nv_add_u32 v242, s68, v242")
        e(f"buffer_load_dword v241, v242, s[72:75], 0 offen")
    step(1, [f"s_sub_u32 s{sREM}, s{sREM}, 2", f"s_cmp_lt_u32 s{sREM}, 3"], mode='nobar')
    if grp: e(f"s_cbranch_scc1 L_{nm}_chk")
    e(".p2align 6")
    a.label(f"L_{nm}_loop")
    step(0, [f"s_sub_u32 s{sREM}, s{sREM}, 2"])
    step(1, [f"s_cmp_ge_u32 s{sREM}, 3"])
    e(f"s_cbranch_scc1 L_{nm}_loop")
    a.label(f"L_{nm}_chk")
    e(f"s_cmp_eq_u32 s{sREM}, 0\ns_cbranch_scc1 L_{nm}_tail0")
    e(f"s_cmp_eq_u32 s{sREM}, 1\ns_cbranch_scc0 L_{nm}_chk1")
    mask_ops(e)
    a.label(f"L_{nm}_chk1")
    step(0)
    e(f"s_cmp_eq_u32 s{sREM}, 1\ns_cbranch_scc1 L_{nm}_tail1")
    mask_ops(e)
    step(1, mode='cond')
    def sm_pv(b, fr):
        main = [x for _, x in pv_mfmas(1 - b, fr)] + sum_mfmas(1 - b)
        exps, _, cvts = sm_ops(b)
        fill = [(i, exps[i]) for i in range(16)] + [(2 * i + 3, cvts[i]) for i in range(8)]
        fill.sort(key=lambda t: t[0])
        for x in interleave(main, fill): e(x)
    a.label(f"L_{nm}_tail0")
    for k in range(16): e(f"ds_read_b128 {vr(ring(k),4)}, v{V_RD} offset:{16384 + k*1024}")
    sm_pv(0, lambda i: ring(i))
    e(cond_bar())
    for x in [x for _, x in pv_mfmas(0, lambda i: ring(8 + i))] + sum_mfmas(0): e(x)
    e(f"s_branch L_{nm}_epi")
    a.label(f"L_{nm}_tail1")
    for k in range(8): e(f"ds_read_b128 {vr(ring(k),4)}, v{V_RD} offset:{24576 + k*1024}")
    sm_pv(1, lambda i: ring(i))
    e(cond_bar([f"ds_read_b128 {vr(ring(8+k),4)}, v{V_RN} offset:{16384 + k*1024}" for k in range(8)]))
    for x in [x for _, x in pv_mfmas(1, lambda i: ring(8 + i))] + sum_mfmas(1): e(x)
    def epilogue(check):
        if check:
            e(f"v_add_f32 v{V_T+7}, v{LS}, v{LS+4}")
            e(f"v_cmp_nle_f32 vcc, v{V_T+7}, v{V_T+3}")
            e(f"s_cmp_lg_u64 vcc, 0")
            if force_fb: e("s_cmp_eq_u32 s2, s2")
            e(f"s_cselect_b32 s{sFLAG}, 1, 0\ns_cbranch_scc1 L_{nm}_post")
        for qt in range(2):
            e(f"v_rcp_f32 v{V_T+4+qt}, v{LS+4*qt}\nv_sub_f32 v{V_T+6}, 1.0, v{V_G+qt}\nv_mul_f32 v{V_T+4+qt}, v{V_T+4+qt}, v{V_T+6}")
        e(f"s_lshr_b32 s4, s{sT}, 1\ns_mul_i32 s4, s4, {144*4096}\ns_lshl_b32 s5, s{sH}, 14\ns_add_u32 s4, s4, s5\ns_and_b32 s5, s{sT}, 1\ns_lshl_b32 s5, s5, 11\ns_add_u32 s4, s4, s5\ns_add_u32 s4, s4, {WS_CTX}")
        for t in range(4):
            for qt in range(2):
                oo = Ob(2 * t, qt)
                for i in range(8): e(f"v_mul_f32 v{oo+i}, v{V_T+4+qt}, v{oo+i}")
                for i in range(4): e(f"v_cvt_pk_bf16_f32 v{oo+i}, v{oo+2*i}, v{oo+2*i+1}")
                e(f"buffer_store_dwordx4 {vr(oo,4)}, v{V_L16}, {WSR}, s4 offen offset:{qt*1024} sc1")
            if t < 3: e("s_add_u32 s4, s4, 4096")
    a.label(f"L_{nm}_epi")
    if ts: ts_mid(a)
    e(f"v_mov_b32 v{V_T+3}, {f32hex(2.0**30)}\nv_mov_b32 v{V_RN}, 0")
    epilogue(True)
    a.label(f"L_{nm}_post")
    fl_load = f"buffer_load_dword v{V_RN}, v{V_T}, {WSR}, s{sFB} offen sc1"
    nomov = lambda x: x.replace(f"v_mov_b32 v{V_RD}, v{V_RN}\n", "")
    if grp:
        sv = VmTrack()
        for g3 in range(3):
            for i in range(8): sv.issue(('D', g3 - 3))
        nbar = [0]
        def sbar():
            k = nbar[0]; nbar[0] += 1
            e(nomov(cond_bar(vmn=sv.n_after(lambda tg: tg == ('D', k - 3)))))
            for i in range(9): sv.issue(('D', k))
        def V(x): e(x); sv.issue(('X', 0))
        KV = OR; WTR = RG; TT = SR
        e(f"v_lshlrev_b32 v{V_T}, 2, v0")
        wt0 = len(a.lines)
        e(f"s_cmp_ge_u32 s{sJ}, 4\ns_cbranch_scc1 L_{nm}_post2")
        a.label(f"L_{nm}_pd")
        e(f"s_cmp_ge_u32 s{sNB}, {o.get('wtd', 8)}\ns_cbranch_scc1 L_{nm}_pdd")
        e(nomov(cond_bar()))
        e(f"s_branch L_{nm}_pd")
        a.label(f"L_{nm}_pdd")
        e(f"s_lshl_b32 s6, s2, 2\ns_add_u32 s6, s6, s{sRQ}\ns_lshl_b32 s8, s6, 13\ns_add_u32 s9, s8, 4096\ns_lshl_b32 s10, s6, 10")
        srd(a, 68, 78, 4096 * 1024); srd(a, 60, 76, 512 * 1024)
        for i in range(8):
            V(f"buffer_load_dwordx4 {vr(WTR+4*i,4)}, v{V_L16}, s[68:71], s{8+i//4} offen offset:{(i%4)*1024}")
            if i in (2, 5): sbar()
        V(f"buffer_load_dwordx4 {vr(WTR+32,4)}, v{V_L16}, s[60:63], s10 offen")
        e(f"v_lshlrev_b32 v{V_T}, 2, v0")
        V(fl_load)
        e(f"v_lshrrev_b32 v{TT}, 3, v0\nv_mul_u32_u24 v{TT}, {144*4096}, v{TT}\nv_and_b32 v{TT+1}, 7, v0\nv_lshl_add_u32 v{TT}, v{TT+1}, 4, v{TT}")
        for i in range(1, 4): e(f"v_xor_b32 v{TT+i}, {32*i}, v{TT}")
        e(f"s_lshl_b32 s9, s6, 4\ns_and_b32 s9, s9, 96\nv_xor_b32 v{TT+4}, s9, v{TT}")
        e(f"s_lshl_b32 s8, s6, 10\ns_add_u32 s8, s8, {WS_WT}\ns_lshl_b32 s9, s6, 7\ns_add_u32 s9, s9, {WS_WT + 128*4096}")
        sbar(); sbar()
        for i in range(8):
            if i in (3, 6): sbar()
            V(f"buffer_store_dwordx4 {vr(WTR+4*i,4)}, v{TT+i//2}, {WSR}, s8 offen offset:{i*128} sc1")
        V(f"buffer_store_dwordx4 {vr(WTR+32,4)}, v{TT+4}, {WSR}, s9 offen sc1")
        if o.get('fuse3'): del a.lines[wt0:]
        e(f"s_lshl_b32 s4, s{sJ}, 2\ns_add_u32 s4, s4, s{sRQ}\ns_cmp_lg_u32 s4, 0\ns_cbranch_scc1 L_{nm}_post2")
        chk2 = f"v_cmp_eq_u32 vcc, 1, v{V_RN}\ns_and_b32 s64, vcc_lo, 0xff00\ns_cmp_eq_u32 s64, 0xff00\ns_cbranch_scc1 L_{nm}_pgo"
        e(chk2)
        a.label(f"L_{nm}_pw")
        e(fl_load)
        e(nomov(cond_bar(vmn=16)))
        e(nomov(cond_bar(vmn=16)))
        e(chk2)
        e(f"s_cmp_lt_u32 s{sNB}, s{sJL}\ns_cbranch_scc1 L_{nm}_pw")
        e("s_mov_b32 s67, 0x20000")
        a.label(f"L_{nm}_spin2")
        e(f"s_sleep 8\n{fl_load}\n{chk2}")
        e(f"s_sub_u32 s67, s67, 1\ns_cmp_lg_u32 s67, 0\ns_cbranch_scc1 L_{nm}_spin2")
        a.label(f"L_{nm}_pgo")
        sv.tags = [('D', g3 - 3) for g3 in range(3) for i in range(8)]; nbar[0] = 0
        e(f"s_sub_u32 s4, s{sFB}, {FLO}")
        for i in range(16):
            V(f"buffer_load_dwordx4 {vr(KV+4*i,4)}, v{V_L16}, {WSR}, s4 offen offset:{(i%4)*1024} sc1")
            if i % 4 == 3 and i < 15: e("s_add_u32 s4, s4, 4096")
            if i == 7: sbar()
        sbar(); sbar()
        for r in range(1, 8):
            for i in range(4): e(f"v_pk_add_f32 {vr(KV+2*i,2)}, {vr(KV+2*i,2)}, {vr(KV+8*r+2*i,2)}")
        for i in range(4): e(f"v_cvt_pk_bf16_f32 v{KV+8+i}, v{KV+2*i}, v{KV+2*i+1}")
        e(f"s_lshl_b32 s4, s{sH}, 10\ns_add_u32 s4, s4, {WS_KVF}")
        V(f"buffer_store_dwordx4 {vr(KV+8,4)}, v{V_L16}, {WSR}, s4 offen sc1")
        a.label(f"L_{nm}_post2")
    e(f"s_cmp_ge_u32 s{sNB}, s{sJL}\ns_cbranch_scc1 L_{nm}_postdone")
    e(nomov(cond_bar()))
    e(f"s_branch L_{nm}_post{'2' if grp else ''}")
    a.label(f"L_{nm}_postdone")
    e(f"s_cmp_eq_u32 s{sFLAG}, 0\ns_cbranch_scc1 L_{nm}_nofb")
    def ld8(base, so0, so1):
        for i in range(8): e(f"buffer_load_dwordx4 {vr(ring(base+i),4)}, v{V_L16}, {WSR}, {so0 if i < 4 else so1} offen offset:{(i%4)*1024} sc1")
    for r in range(16): e(f"v_mov_b32 v{CB+r}, 0")
    e(f"v_mov_b32 v{V_T+4}, v{V_NINF}\nv_mov_b32 v{V_T+5}, v{V_NINF}")
    e(f"s_add_u32 s10, s7, {WS_KF}\ns_mov_b32 s{sREM}, s{sT}")
    a.label(f"L_{nm}_fb1")
    e("s_add_u32 s11, s10, 4096")
    ld8(0, "s10", "s11")
    e(f"s_cmp_eq_u32 s{sREM}, 0\ns_cbranch_scc0 L_{nm}_fb1n")
    mask_ops(e)
    a.label(f"L_{nm}_fb1n")
    for _, x in qk_mfmas(0, ring): e(x)
    for qt in range(2): rowmax(V_T + 4 + qt, 0, qt, acc=True)
    e(f"s_add_u32 s10, s10, 8192\ns_cmp_eq_u32 s{sREM}, 0\ns_cbranch_scc1 L_{nm}_fb1d\ns_sub_u32 s{sREM}, s{sREM}, 1\ns_branch L_{nm}_fb1")
    a.label(f"L_{nm}_fb1d")
    for qt in range(2): xgroup(e, "v_max_f32", V_T + 4 + qt, V_T + 6)
    set_c()
    for r in range(64): e(f"v_mov_b32 v{OR+r}, 0")
    for r in range(8): e(f"v_mov_b32 v{LS+r}, 0")
    e(f"s_add_u32 s10, s7, {WS_KF}\ns_add_u32 s12, s7, {WS_VF}\ns_mov_b32 s{sREM}, s{sT}")
    a.label(f"L_{nm}_fb2")
    e("s_add_u32 s11, s10, 4096\ns_add_u32 s13, s12, 4096")
    ld8(0, "s10", "s11"); ld8(8, "s12", "s13")
    e(f"s_cmp_eq_u32 s{sREM}, 0\ns_cbranch_scc0 L_{nm}_fb2n")
    mask_ops(e)
    a.label(f"L_{nm}_fb2n")
    for _, x in qk_mfmas(0, ring): e(x)
    exps, _, cvts = sm_ops(0)
    for x in exps + cvts: e(x)
    for x in [x for _, x in pv_mfmas(0, lambda i: ring(8 + i))] + sum_mfmas(0): e(x)
    e(f"s_add_u32 s10, s10, 8192\ns_add_u32 s12, s12, 8192\ns_cmp_eq_u32 s{sREM}, 0\ns_cbranch_scc1 L_{nm}_fb2d\ns_sub_u32 s{sREM}, s{sREM}, 1\ns_branch L_{nm}_fb2")
    a.label(f"L_{nm}_fb2d")
    epilogue(False)
    a.label(f"L_{nm}_nofb")
    if o.get('fuse3'): return
    if ts: ts_end(a, 0, S_WS, 3, vtmp=176)
    e("s_endpgm")

def phase3(a, nm, grp, ts, o):
    e = a.e
    PD = 3; rot = o.get('rot', 2); cmod = o.get('cmod', 'sc1')
    WSR = f"s[{S_WS}:{S_WS+3}]"
    S_O, S_A, S_B = 4, 8, 12
    ACC = 64; CF = 128; WFr = 208; PQ = 16; KVFr = 48; GG = 12; X = 192; TT = 240
    NS = 18; NL = 4; NC = 4
    a0, aper = o.get('a0', 8), o.get('aper', 2)
    srd(a, S_O, 100, 2048 * 1024); srd(a, S_A, 78, 4096 * 1024); srd(a, S_B, 76, 512 * 1024)
    e("s_and_b32 s30, s2, 6\ns_lshl_b32 s30, s30, 2\ns_lshr_b32 s31, s2, 3\ns_and_b32 s32, s31, 7\ns_add_u32 s30, s30, s32\ns_lshr_b32 s31, s31, 3\ns_and_b32 s33, s2, 1\ns_lshl_b32 s33, s33, 2\ns_add_u32 s31, s31, s33")
    e(f"s_lshl_b32 s28, s{sJ}, 2\ns_lshr_b32 s28, 0x24130241, s28\ns_and_b32 s28, s28, 7\ns_lshl_b32 s28, s28, 15")
    e(f"s_xor_b32 s33, s3, 4\ns_lshl_b32 s33, s33, 14\ns_add_u32 s33, s33, s28\ns_sub_u32 s29, s33, {NSLOT*SLOT}\ns_cmp_ge_u32 s33, {NSLOT*SLOT}\ns_cselect_b32 s33, s29, s33")
    e("v_lshrrev_b32 v3, 3, v0\nv_lshlrev_b32 v3, 10, v3")
    e("v_lshrrev_b32 v4, 4, v0\nv_lshlrev_b32 v4, 1, v4\nv_and_b32 v5, 7, v0\nv_xor_b32 v4, v4, v5\nv_lshlrev_b32 v4, 4, v4")
    e("v_add_u32 v4, v3, v4\nv_add_u32 v5, 7168, v4\nv_add_u32 v6, 14336, v4\nv_add_u32 v7, 21504, v4")
    e("s_lshl_b32 s36, s31, 7\ns_lshl_b32 s34, s3, 19\ns_add_u32 s34, s34, s36\ns_lshl_b32 s35, s3, 16\ns_add_u32 s35, s35, s36")
    e(f"s_mul_i32 s37, s30, {144*4096}\ns_add_u32 s37, s37, {WS_CTX}\ns_lshl_b32 s39, s3, 16\ns_add_u32 s37, s37, s39")
    e(f"s_mul_i32 s48, s32, {rot}\ns_and_b32 s48, s48, 15\ns_mov_b32 s52, s48")
    vm = VmTrack()
    def loadW(idx):
        e(f"s_add_u32 m0, s33, {(idx % NL)*4096}")
        if idx < 16:
            e(f"s_lshl_b32 s49, s48, 15\ns_add_u32 s49, s49, s34\ns_add_u32 s48, s48, 1\ns_and_b32 s48, s48, 15")
            rs, so = S_A, "s49"
        else: rs, so = S_B, "s35"
        for i in range(4):
            e(f"buffer_load_dwordx4 v{4+i}, s[{rs}:{rs+3}], {so} offen offset:{i*1024} lds"); vm.issue(('W', idx))
        if idx >= 16: e("s_add_u32 s35, s35, 32768")
    def loadC(idx):
        if idx >= 16: return
        e(f"s_lshl_b32 s50, s52, 12\ns_add_u32 s50, s50, s37\ns_add_u32 s52, s52, 1\ns_and_b32 s52, s52, 15")
        for i in range(4):
            e(f"buffer_load_dwordx4 {vr(CF+(idx%NC)*16+i*4,4)}, v{V_L16}, {WSR}, s50 offen offset:{i*1024} {cmod}"); vm.issue(('C', idx))
    def setup2():
        e("v_lshrrev_b32 v8, 2, v0\nv_lshlrev_b32 v8, 7, v8")
        e("v_lshrrev_b32 v9, 3, v0\nv_and_b32 v9, 3, v9\nv_lshlrev_b32 v9, 5, v9")
        e("v_and_b32 v10, 3, v0\nv_lshlrev_b32 v10, 3, v10\nv_add3_u32 v8, v8, v9, v10\nv_add_u32 v8, s33, v8")
        e("v_xor_b32 v9, 32, v8\nv_xor_b32 v10, 64, v8\nv_xor_b32 v11, 96, v8")
        e(f"s_lshl_b32 s40, s30, 16\ns_lshl_b32 s41, s3, 13\ns_add_u32 s40, s40, s41\ns_add_u32 s40, s40, {WS_PQ3}\ns_add_u32 s41, s40, 4096")
        e(f"s_lshl_b32 s42, s3, 12\ns_add_u32 s42, s42, {WS_KVF}\ns_lshl_b32 s43, s30, 10\ns_add_u32 s43, s43, {WS_G3}\ns_mov_b32 s53, {f32hex(1e-6)}")
    NR = o.get('nr', 7)
    RR = [16, 32, 48, 192, 208, 224, 240]
    def wreg(idx): return RR[idx] if idx < NR else WFr + ((idx - NR) % 2) * 16
    def trread(idx):
        e(f"s_waitcnt vmcnt({vm.n_after(lambda t: t == ('W', idx))})")
        for n in range(4):
            for hf in range(2):
                e(f"ds_read_b64_tr_b16 {vr(wreg(idx)+n*4+hf*2,2)}, v{8+n} offset:{(idx%NL)*4096+hf*2048}")
    def prephase():
        for idx in range(NL): loadW(idx)
        for idx in range(NR):
            trread(idx)
            e("s_waitcnt lgkmcnt(0)")
            loadW(idx + NL)
    e(f"s_lshr_b32 s54, s{sT}, 1\ns_lshl_b32 s54, s54, 8\ns_lshl_b32 s55, s{sH}, 3\ns_add_u32 s54, s54, s55\ns_and_b32 s55, s{sT}, 1\ns_lshl_b32 s55, s55, 2\ns_add_u32 s54, s54, s55\ns_add_u32 s54, s54, {WS_DONE}\nv_mov_b32 v2, 0\nv_mov_b32 v3, 1")
    setup2()
    e("s_waitcnt vmcnt(0)")
    e(f"buffer_store_dword v3, v2, {WSR}, s54 offen sc1")
    if grp:
        prephase()
        e("s_barrier")
        e(f"s_cmp_lg_u32 s{sRQ}, 0\ns_cbranch_scc1 L_{nm}_p3go\ns_mov_b32 s55, 0x40000")
        e(f"v_lshlrev_b32 v2, 2, v0\ns_lshl_b32 s54, s30, 8\ns_add_u32 s54, s54, {WS_DONE}\ns_mov_b32 s56, {WS_DONE + 256}")
        a.label(f"L_{nm}_p3s0")
        e(f"buffer_load_dword v3, v2, {WSR}, s56 offen sc1")
        e(f"v_cmp_eq_u32 vcc, 1, v3\ns_and_b32 s57, vcc_lo, vcc_hi\ns_or_b32 s57, s57, 0x55555555\ns_cmp_eq_u32 s57, -1\ns_cbranch_scc1 L_{nm}_p3spin\ns_sleep 8")
        e(f"s_sub_u32 s55, s55, 1\ns_cmp_lg_u32 s55, 0\ns_cbranch_scc1 L_{nm}_p3s0")
        a.label(f"L_{nm}_p3spin")
        e(f"buffer_load_dword v3, v2, {WSR}, s54 offen sc1")
        e(f"v_cmp_eq_u32 vcc, 1, v3\ns_cmp_eq_u64 vcc, -1\ns_cbranch_scc1 L_{nm}_p3go\ns_sleep {o.get('sleep3', 4)}")
        e(f"s_sub_u32 s55, s55, 1\ns_cmp_gt_i32 s55, 0\ns_cbranch_scc1 L_{nm}_p3spin")
        a.label(f"L_{nm}_p3go")
        e("s_barrier")
    else:
        e("s_barrier")
        prephase()
        e("s_barrier")
    if ts: ts_mark(a) if o.get('mk', 0) == 2 else None
    for idx in range(PD): loadC(idx)
    def loadA():
        for i in range(8): e(f"buffer_load_dwordx4 {vr(PQ+4*i,4)}, v{V_L16}, {WSR}, s{40+i//4} offen offset:{(i%4)*1024} {cmod}"); vm.issue(('A', 0))
        for i in range(4): e(f"buffer_load_dwordx4 {vr(KVFr+4*i,4)}, v{V_L16}, {WSR}, s42 offen offset:{i*1024} {cmod}"); vm.issue(('A', 0))
        e(f"buffer_load_dwordx4 {vr(GG,4)}, v{V_L16}, {WSR}, s43 offen {cmod}"); vm.issue(('A', 0))
    def head(hh):
        p = PQ + 8 * hh
        for t in range(4):
            e(f"v_mfma_f32_16x16x16_bf16 {vr(X+4*t,4)}, {vr(KVFr+4*hh,2)}, {vr(p+2*t,2)}, 0")
            e(f"v_mfma_f32_16x16x16_bf16 {vr(TT+4*t,4)}, {vr(KVFr+4*hh+2,2)}, {vr(p+2*t,2)}, 0")
        for t in range(4): e(f"v_add_f32 v{TT+4*t}, s53, v{TT+4*t}")
        for t in range(4): e(f"v_rcp_f32 v{TT+4*t}, v{TT+4*t}")
        for t in range(4): e(f"v_mul_f32 v{TT+4*t}, v{GG+t}, v{TT+4*t}")
        for t in range(4):
            for i in range(4): e(f"v_mul_f32 v{X+4*t+i}, v{TT+4*t}, v{X+4*t+i}")
        if hh % 2 == 0:
            for i in range(8): e(f"v_cvt_pk_bf16_f32 v{p+i}, v{X+2*i}, v{X+2*i+1}")
        else:
            q = p - 8
            for t in (3, 2, 1): e(f"v_mov_b32 v{q+4*t}, v{q+2*t}\nv_mov_b32 v{q+4*t+1}, v{q+2*t+1}")
            for t in range(4): e(f"v_cvt_pk_bf16_f32 v{q+4*t+2}, v{X+4*t}, v{X+4*t+1}\nv_cvt_pk_bf16_f32 v{q+4*t+3}, v{X+4*t+2}, v{X+4*t+3}")
    for idx in range(NS):
        wb = wreg(idx)
        if idx >= NR:
            trread(idx)
            if idx > NR and idx - 1 + NL < NS: loadW(idx - 1 + NL)
        loadC(idx + PD)
        if idx == 3: loadA()
        cb = CF + (idx % NC) * 16 if idx < 16 else PQ + (idx - 16) * 16
        for n in range(4):
            for i in range(4):
                d = ACC + (n * 4 + i) * 4
                e(f"{MF} {vr(d,4)}, {vr(wb+n*4,4)}, {vr(cb+i*4,4)}, {vr(d,4) if idx else '0'}")
        if idx >= a0 and (idx - a0) % aper == 0 and (idx - a0) // aper < 4: head((idx - a0) // aper)
    e(f"v_add_u32 v12, s33, v{V_L16}")
    for t in range(16): e(f"ds_write_b128 v12, {vr(ACC+t*4,4)} offset:{t*1024}")
    e("s_lshr_b32 s41, s3, 1\ns_and_b32 s42, s3, 1")
    e("v_lshrrev_b32 v13, 5, v0\nv_lshlrev_b32 v13, 12, v13")
    e("v_and_b32 v14, 15, v0\nv_lshlrev_b32 v14, 4, v14")
    e("v_and_b32 v15, 16, v0\nv_lshlrev_b32 v15, 5, v15\nv_add3_u32 v13, v13, v14, v15")
    e("s_lshl_b32 s43, s42, 13\ns_lshl_b32 s40, s41, 10\ns_add_u32 s43, s43, s40\nv_add_u32 v13, s43, v13")
    for u in range(4):
        e(f"v_add_u32 v{24+u}, s28, v13")
        if u < 3: e(f"s_add_u32 s28, s28, {SLOT}\ns_cmp_eq_u32 s28, {NSLOT*SLOT}\ns_cselect_b32 s28, 0, s28")
    e("v_and_b32 v20, 15, v0\nv_lshlrev_b32 v20, 10, v20\nv_lshrrev_b32 v21, 4, v0\nv_lshlrev_b32 v21, 4, v21\nv_add_u32 v20, v20, v21")
    e("s_lshl_b32 s43, s30, 16\ns_lshl_b32 s40, s41, 14\ns_add_u32 s43, s43, s40\ns_lshl_b32 s40, s31, 7\ns_add_u32 s43, s43, s40\ns_lshl_b32 s40, s42, 6\ns_add_u32 s43, s43, s40")
    e("s_waitcnt lgkmcnt(0)\ns_barrier")
    for u in range(8):
        for ee in range(2):
            e(f"ds_read_b128 {vr(128+(u*2+ee)*4,4)}, v{24+u//2} offset:{(u%2)*16384+ee*256}")
    for u in range(1, 8):
        for j in range(8): e(f"v_add_f32 v{128+j}, v{128+j}, v{128+u*8+j}")
    for j in range(4): e(f"v_cvt_pk_bf16_f32 v{16+j}, v{128+2*j}, v{129+2*j}")
    e(f"buffer_store_dwordx4 v[16:19], v20, s[{S_O}:{S_O+3}], s43 offen")
    if ts: ts_end(a, 0, S_WS, 3, vtmp=176)
    e("s_endpgm")
```

```python
import sys
from common import *
import k1, k2, k3, k12, k3b
HEADER = open("gated_mix__linear_attn_block__compressed_kv_cla__prompt.s.ref").read().split("; Override")[0]
def build(parts, path):
    out = HEADER
    for name, grid, block, lds, _ in parts:
        out += f"; @launch kernel={name} grid=({grid},1,1) block=({block},1,1) lds={lds}\n"
    out += '.amdgcn_target "amdgcn-amd-amdhsa--gfx950"\n.text\n'
    seen = set()
    for name, _, _, _, txt in parts:
        if name in seen: continue
        seen.add(name); out += txt
    out += "L_code_end:\n"
    open(path, "w").write(out)
def full(path, ts=False, o1={}, o2={}, o3={}):
    build([("k1_kernel", 256, 512, 163840, k1.gen_k1(ts=ts, **o1)),
           ("k2_kernel", 256, 512, 163840, k2.gen_k2(ts=ts, **o2)),
           ("k3_kernel", 256, 512, 163840, k3.gen_k3(ts=ts, **o3))], path)
def fused(path, ts=False, o12={}, o3={}):
    if o12.get('fuse3'):
        return build([("k12_kernel", 256, 512, 163840, k12.gen_k12(ts=ts, **o12))], path)
    build([("k12_kernel", 256, 512, 163840, k12.gen_k12(ts=ts, **o12)),
           ("k3_kernel", 256, 512, 163840, k3b.gen_k3(ts=ts, tsidx=1, **o3))], path)
KNAME = "gated_mix__linear_attn_block__compressed_kv_cla__prompt_kernel"
def single(path, **o):
    out = HEADER + "; @launch grid=(256,1,1) block=(512,1,1) lds=163840\n"
    out += '.amdgcn_target "amdgcn-amd-amdhsa--gfx950"\n.text\n'
    txt = k12.gen_k12(name="kk_kernel", fuse3=1, **o)
    for pat in (".globl kk_kernel", ".type kk_kernel,", "\nkk_kernel:", ".amdhsa_kernel kk_kernel"):
        assert pat in txt
        txt = txt.replace(pat, pat.replace("kk_kernel", KNAME))
    open(path, "w").write(out + txt + "L_code_end:\n")
if __name__ == "__main__":
    single("s1.s")
    fused("fu_ts.s", ts=True)
    fused("fu_fb.s", o12=dict(force_fb=True))
    fused("fu.s")
    fused("f3.s", o12=dict(fuse3=1))
    full("full_ts.s", ts=True)
    full("full_ts2.s", ts=2)
    full("full_fb.s", ts=False, o2=dict(force_fb=True))
```

```python
from common import *
import math
import k1 as K1
import k2 as K2
from k1 import f32hex, LOG2E, V_LANE16, V_A, V_W, V_P, V_RA, V_RW, V_RP, AF, WF, RING, TMP, ACC1, ACC2, V_PF, V_PFD, V_PF2
from k3b import WS_PQ3, WS_G3, WS_KVF
from k2 import (V_L16, V_RD, V_RN, V_G, QR, CB, OR, SR, PR, RG, V_NINF, LS, ONES, NSLOT, SLOT, MF, Cb, Ob, Pb, ring,
                qk_mfmas, pv_mfmas, sum_mfmas, sm_ops, xgroup)
WS_KVA = 84 * MB
FLO = 16384
WS_AP = 88 * MB
WS_DONE = 86 * MB
WS_PQ2 = 80 * MB
S_X, S_CKV, S_W1, S_W2, S_WS, S_GT, S_DBG, S_DMA = 28, 32, 36, 40, 44, 48, 16, 32
sA, sW, sP, sMA, sMW, sST, sAX = 52, 53, 54, 55, 56, 60, 25
sH, sJ, sRQ, sCH = 20, 21, 22, 23
sT, sJL, sREM, sNB = 24, 25, 26, 27
sK, sV, sRD, sWOFF, sFLAG, sDW = 36, 37, 38, 39, 48, 50
sMASK = 52
V_T = 8
V_FO = 9
V_FL = 30
V_ONE = 31; V_DO = 29; V_DV = 93
sPST = 67; sFB = 51; sPUBN = 65
SP0 = 3

def mask_ops(e):
    for r in range(4):
        m = sr(sMASK + 2 * r, 2)
        e(f"v_cndmask_b32 v{Cb(0,0)+r}, v{Cb(0,0)+r}, v{V_NINF}, {m}")
        e(f"v_cndmask_b32 v{Cb(1,1)+r}, v{Cb(1,1)+r}, v{V_NINF}, {m}")
        e(f"v_mov_b32 v{Cb(1,0)+r}, v{V_NINF}")

def gen_k12(name="k12_kernel", ts=False, **o):
    a = Asm(); e = a.e
    o['_name'] = name
    khead(a, name)
    if ts: ts_start(a)
    e(f"s_cmp_ge_u32 s2, 256\ns_cbranch_scc1 L_{name}_end")
    e(f"s_load_dwordx4 s[4:7], s[0:1], {KA_X}")
    e(f"s_load_dwordx4 s[8:11], s[0:1], {KA_CKV}")
    e(f"s_load_dwordx4 s[12:15], s[0:1], {KA_WUK}")
    e(f"s_load_dwordx4 s[68:71], s[0:1], {KA_DBG}")
    e(f"s_load_dwordx2 s[72:73], s[0:1], {KA_GATE}")
    e(f"s_load_dwordx2 s[76:77], s[0:1], {KA_WO}\ns_load_dwordx2 s[78:79], s[0:1], {KA_WO4}")
    e(f"s_load_dwordx2 s[100:101], s[0:1], {KA_OUT}")
    code_prefetch(a, name, V_PF, V_PFD, 20 if o.get('fuse3') else 16)
    e("v_lshrrev_b32 v1, 6, v0\nv_and_b32 v0, 63, v0\nv_readfirstlane_b32 s3, v1")
    e(f"s_and_b32 s{sH}, s2, 31\ns_lshr_b32 s{sJ}, s2, 5\ns_and_b32 s{sRQ}, s3, 3\ns_lshr_b32 s{sCH}, s3, 2")
    e(f"v_lshlrev_b32 v{V_LANE16}, 4, v0")
    T = K1.V_T
    e(f"v_lshrrev_b32 v{T}, 3, v0\nv_lshlrev_b32 v{T}, 10, v{T}")
    e(f"v_lshrrev_b32 v{T+1}, 4, v0\nv_and_b32 v{T+2}, 7, v0\nv_xor_b32 v{T+1}, v{T+1}, v{T+2}\nv_lshlrev_b32 v{T+1}, 4, v{T+1}")
    e(f"v_add_u32 v{V_A}, v{T}, v{T+1}\nv_xor_b32 v{V_A+1}, 64, v{V_A}\nv_add_u32 v{V_A+1}, 7168, v{V_A+1}")
    e(f"v_add_u32 v{V_A+2}, 14336, v{V_A}\nv_add_u32 v{V_A+3}, 14336, v{V_A+1}")
    e(f"v_lshrrev_b32 v{T}, 4, v0\ns_and_b32 s24, s22, 1\ns_lshl_b32 s24, s24, 2\nv_or_b32 v{T+1}, s24, v{T}\nv_lshlrev_b32 v{T+1}, 1, v{T+1}")
    e(f"v_and_b32 v{T+2}, 15, v0\nv_xor_b32 v{T+1}, v{T+1}, v{T+2}\nv_lshlrev_b32 v{T+1}, 4, v{T+1}")
    e(f"v_lshlrev_b32 v{T}, 13, v{T}\ns_lshl_b32 s24, s22, 16\nv_add3_u32 v{V_W}, v{T}, v{T+1}, s24\nv_add_u32 v{V_W+1}, {4*8192-1024}, v{V_W}")
    e(f"s_lshl_b32 s{sA}, s{sJ}, 18\ns_lshl_b32 s24, s3, 15\ns_add_u32 s{sA}, s{sA}, s24")
    e(f"s_lshl_b32 s{sW}, s20, 8\ns_lshl_b32 s{sP}, s20, 5")
    e(f"s_lshl_b32 s{sMA}, s3, 12\ns_add_u32 s{sMA}, s{sMA}, 65536\ns_lshl_b32 s{sMW}, s3, 11")
    e("s_waitcnt lgkmcnt(0)")
    srd(a, S_CKV, 8, 2048 * 1024)
    e("s_cmp_eq_u32 s23, 0")
    e(f"s_cselect_b32 s{S_W1}, s12, s14\ns_cselect_b32 s{S_W1+1}, s13, s15\ns_and_b32 s{S_W1+1}, s{S_W1+1}, 0xffff\ns_mov_b32 s{S_W1+2}, {512*8192}\ns_mov_b32 s{S_W1+3}, 0x20000")
    e(f"s_cmp_eq_u32 s23, 0\ns_cbranch_scc0 L_{name}_ch1")
    for ch in range(2):
        if ch: a.label(f"L_{name}_ch1")
        phase1(a, f"{name}_c{ch}", ch, ts, o)
        phase2(a, f"{name}_c{ch}", ch, ts, o)
        if o.get('fuse3'): phase3(a, f"{name}_c{ch}", ch, ts, o)
    a.label(f"L_{name}_end")
    e("s_endpgm")
    lines = fixup(a.lines, [name])
    return "\n".join(lines) + "\n" + kdesc(name, 256, 102) + "\n"

def kv_dma(m0src, sv=None, mod="sc1"):
    DMR = f"s[{S_DMA}:{S_DMA+3}]"
    sv = sv or f"s{sV}"
    o = [f"s_mov_b32 m0, {m0src}"]
    o += [(f"buffer_load_dwordx4 v{V_L16}, {DMR}, s{sK} offen offset:{i*1024} {mod} lds", 'KV') for i in range(4)]
    o += [f"s_add_u32 m0, {m0src}, 16384"]
    o += [(f"buffer_load_dwordx4 v{V_L16}, {DMR}, {sv} offen offset:{i*1024} {mod} lds", 'KV') for i in range(4)]
    o += [f"s_add_u32 s{sK}, s{sK}, 16384\ns_add_u32 s{sV}, s{sV}, 16384"]
    return o

def phi(e, r0, n, tt=96):
    for i in range(0, n, 2): e(f"v_pk_mul_f32 {vr(tt+i,2)}, {vr(r0+i,2)}, s[72:73]")
    for i in range(n): e(f"v_exp_f32 v{tt+i}, v{tt+i}")
    for i in range(0, n, 2): e(f"v_pk_add_f32 {vr(r0+i,2)}, {vr(r0+i,2)}, 1.0 op_sel_hi:[1,0]")
    for i in range(n): e(f"v_med3_f32 v{r0+i}, v{tt+i}, v{r0+i}, 1.0")
    for i in range(0, n, 2): e(f"v_pk_add_f32 {vr(r0+i,2)}, {vr(r0+i,2)}, s[74:75]")

def phase1(a, nm, ch, ts, o):
    e = a.e
    vm = VmTrack()
    pf, pf1_at, pf2_at = o.get('pf', 2), o.get('pf1_at', 1), o.get('pf2_at', 8)
    st0, stn = o.get('st0', 16), o.get('stn', 2)
    PUB, POLL, CHK = o.get('pub', 29), o.get('poll', 30), o.get('chk', 31)
    apc = o.get('fuse3') and o.get('g3', 1) and o.get('apc', 1)
    stag = apc and o.get('stag', 1)
    GPUB = 3; DPOLL, DCHK = (o.get('dpoll', 6), o.get('dchk', 8)) if apc else (11, 15)
    APST, APUB, APOLL, ACHK = (o.get('apst', 5) if stag else 3), DCHK, o.get('apoll', 11), 13
    GATE_U = 12 if stag else 4
    nsk = [0]
    def only(rq, body):
        nsk[0] += 1
        return f"s_cmp_lg_u32 s{sRQ}, {rq}\ns_cbranch_scc1 L_{nm}_sk{nsk[0]}\n{body}\nL_{nm}_sk{nsk[0]}:"
    g3 = (o.get('fuse3') and o.get('g3', 1))
    ldmod = o.get('ldmod', 'sc1')
    WSR = f"s[{S_WS}:{S_WS+3}]"; DBR = f"s[{S_DBG}:{S_DBG+3}]"
    NH = 32
    T = K1.V_T
    def dmaW(u):
        if u >= NH: return []
        out = []
        slot = (u % 4) * 16384
        if u < 16 or ch == 0:
            rs = S_W1 if u < 16 else S_W2
            so = (u % 16) * 32 * 8192
            out.append(f"s_add_u32 m0, s{sMW}, {slot}\ns_add_u32 s64, s{sW}, {so}")
            for i in range(2):
                out.append((f"buffer_load_dwordx4 v{V_W+i}, s[{rs}:{rs+3}], s64 offen offset:{i*1024} lds", ('W', u)))
        else:
            out.append(f"s_add_u32 m0, s65, {slot}\ns_mov_b32 s64, s{sP}\ns_add_u32 s{sP}, s{sP}, s{sPST}")
            if o.get('noap'): return []
            if apc: out.append((f"buffer_load_dwordx4 v{V_LANE16}, s[{S_W2}:{S_W2+3}], s64 offen sc1 lds", ('W', u)))
            else: out.append((f"buffer_load_dwordx4 v{V_P}, s[{S_W2}:{S_W2+3}], s64 offen lds", ('W', u)))
        return out
    def dmaA(s, half):
        if s >= 16: return []
        rs, so = (S_CKV, sA) if s < 8 else (S_X, sAX)
        out = [f"s_add_u32 m0, s{sMA}, {(s % 3) * 32768}\ns_add_u32 s66, s{so}, {(s % 8) * 128}"]
        for i in (2 * half, 2 * half + 1):
            out.append((f"buffer_load_dwordx4 v{V_A+i}, s[{rs}:{rs+3}], s66 offen offset:{i*1024} lds", ('A', s)))
        return out
    def emit(x):
        if isinstance(x, tuple):
            if x[1][0] == 'S': assert any(l.startswith(f"v_cvt_pk_bf16_f32 v{ACC1+4*x[1][1]+3},") for l in a.lines[line0:]), x
            e(x[0]); vm.issue(x[1])
        else: e(x)
    line0 = len(a.lines)
    for x in dmaW(0) + dmaA(0, 0) + dmaA(0, 1): emit(x)
    for x in dmaW(1) + dmaA(1, 0) + dmaW(2) + dmaA(1, 1): emit(x)
    srd(a, S_X, 4, 2048 * 1024); srd(a, S_WS, 70, WS_SIZE); srd(a, S_DBG, 68, 256)
    if ch == 0: srd(a, S_W2, 10, 512 * 8192)
    else:
        e(f"s_cmp_eq_u32 s{sRQ}, 3\ns_cselect_b32 s{S_W2}, s72, s6\ns_cselect_b32 s{S_W2+1}, s73, s7\ns_mov_b32 s{S_W2+2}, {512*3072}\ns_cselect_b32 s{S_W2+2}, {0 if g3 else 1024}, s{S_W2+2}")
        e(f"s_cselect_b32 s{sP}, 0, s{sP}\ns_cselect_b32 s{sPST}, 64, {32*3072}\ns_cselect_b64 vcc, -1, 0\ns_and_b32 s{S_W2+1}, s{S_W2+1}, 0xffff\ns_mov_b32 s{S_W2+3}, 0x20000")
        e("s_lshl_b32 s65, s22, 10\ns_add_u32 s65, s65, 8192")
        e(f"v_lshrrev_b32 v{T}, 1, v0\nv_lshrrev_b32 v{T+1}, 2, v0\nv_and_b32 v{T+1}, 4, v{T+1}\nv_xor_b32 v{T}, v{T}, v{T+1}\nv_mul_u32_u24 v{T}, 3072, v{T}")
        e(f"v_and_b32 v{T+1}, 1, v0\nv_lshlrev_b32 v{T+1}, 4, v{T+1}\ns_lshl_b32 s24, s22, 10\nv_add3_u32 v{V_P}, v{T}, v{T+1}, s24")
        e(f"v_and_b32 v{T}, 48, v0\nv_cndmask_b32 v{V_P}, v{V_P}, v{T}, vcc")
        if apc:
            e(f"s_mul_i32 s74, s{sJ}, {64*3072}\ns_add_u32 s74, s74, s{sP}\ns_add_u32 s75, s74, {32*3072}")
            gath = f"buffer_load_dwordx4 v[240:243], v{V_P}, s[{S_W2}:{S_W2+3}], s74 offen\nbuffer_load_dwordx4 v[244:247], v{V_P}, s[{S_W2}:{S_W2+3}], s75 offen"
            if not stag: e(gath)
    e(f"s_sub_u32 s26, 15, s{sJ}")
    e(f"s_lshl_b32 s{sAX}, s{26 if ch == 0 else sJ}, 17\ns_lshl_b32 s24, s{sRQ}, 15\ns_add_u32 s{sAX}, s{sAX}, s24")
    GX, GW = 224, 228
    if g3:
        srd(a, S_GT, 72, 1024)
        e(f"s_lshl_b32 s58, s{sH}, 3\ns_add_u32 s58, s58, s3\ns_cmp_lt_u32 s58, 128\ns_cselect_b32 s59, s26, s{sJ}\ns_and_b32 s58, s58, 127\ns_lshl_b32 s59, s59, 7\ns_add_u32 s58, s58, s59\ns_lshl_b32 s59, s58, 10")
        gxl = f"buffer_load_dwordx4 {vr(GX,4)}, v{V_LANE16}, s[{S_X}:{S_X+3}], s59 offen"
        if not stag: emit((gxl, ('L', 0)))
        emit((f"buffer_load_dwordx4 {vr(GW,4)}, v{V_LANE16}, s[{S_GT}:{S_GT+3}], 0 offen", ('L', 0)))
    e(f"v_and_b32 v{T}, 15, v0\nv_lshrrev_b32 v{T+1}, 1, v{T}\nv_lshrrev_b32 v{T+2}, 4, v0\nv_xor_b32 v{T+1}, v{T+1}, v{T+2}\nv_lshlrev_b32 v{T+1}, 4, v{T+1}")
    e(f"v_lshlrev_b32 v{T}, 7, v{T}\ns_lshl_b32 s24, s22, 13\ns_add_u32 s24, s24, 65536\nv_add3_u32 v{V_RA}, v{T}, v{T+1}, s24")
    e(f"v_xor_b32 v{V_RA+1}, 64, v{V_RA}\nv_add_u32 v{V_RA+2}, 0x10000, v{V_RA}\nv_add_u32 v{V_RA+3}, 0x10000, v{V_RA+1}")
    e(f"v_lshrrev_b32 v{T}, 4, v0\nv_bfe_u32 v{T+1}, v0, 2, 2\nv_lshl_add_u32 v{T+2}, v{T}, 3, v{T+1}\nv_lshlrev_b32 v{T+2}, 8, v{T+2}")
    e(f"v_and_b32 v{T+3}, 1, v{T}\nv_lshl_add_u32 v{T+3}, v{T+3}, 2, v{T+1}\nv_lshlrev_b32 v{T+3}, 5, v{T+3}")
    e(f"v_and_b32 v{T+4}, 3, v0\nv_lshlrev_b32 v{T+4}, 3, v{T+4}\nv_add3_u32 v{V_RW}, v{T+2}, v{T+3}, v{T+4}")
    for n in range(1, 8): e(f"v_xor_b32 v{V_RW+n}, {32*n}, v{V_RW}")
    e(f"v_lshlrev_b32 v{T+2}, 8, v{T}\nv_add3_u32 v{V_RP}, v{T+2}, v{T+3}, v{T+4}\nv_xor_b32 v{V_RP+1}, 128, v{V_RP}")
    e(f"s_lshl_b32 s57, s20, 19\ns_lshl_b32 s24, s21, 2\ns_add_u32 s24, s24, s22\ns_lshl_b32 s24, s24, 14\ns_add_u32 s57, s57, s24")
    base = WS_VF if ch else WS_KF
    for i in range(4): e(f"s_add_u32 s{sST+i}, s57, {base + i*4096}")
    e(f"s_lshl_b32 s{sFB}, s{sH}, 15\ns_add_u32 s{sFB}, s{sFB}, {WS_KVA + FLO}")
    e(f"v_mov_b32 v{V_ONE}, 1\ns_lshl_b32 s24, s{sH}, 2\nv_mov_b32 v{V_DO}, s24")
    if o.get('fuse3'): e(f"s_movk_i32 s24, 128\nv_writelane_b32 v{V_DO}, s24, 1")
    if ch == 0:
        t = TMP
        e(f"v_mov_b32 v{t}, 0")
        e(f"s_lshl_b32 s27, s{sJ}, 2\ns_add_u32 s27, s27, s{sRQ}\ns_cmp_eq_u32 s27, 0\ns_cselect_b32 s24, s{sFB}, {WS_SIZE}\nv_lshl_add_u32 v{T}, v0, 2, s24")
        emit((f"buffer_store_dword v{t}, v{T}, {WSR}, 0 offen sc1", ('G', 2)))
        if o.get('fuse3'):
            for i in range(1, 4): e(f"v_mov_b32 v{t+i}, 0")
            e(f"s_mul_i32 s24, s{sRQ}, 2048\ns_add_u32 s24, s24, {WS_DONE}\ns_cmp_eq_u32 s2, 0\ns_cselect_b32 s24, s24, {WS_SIZE}\nv_add_u32 v{T+1}, s24, v{V_LANE16}")
            for i in range(2): emit((f"buffer_store_dwordx4 {vr(t,4)}, v{T+1}, {WSR}, 0 offen offset:{i*1024} sc1", ('G', 2)))
        e(f"s_lshl_b32 s24, s{sH}, 2\ns_cmp_eq_u32 s27, 0\ns_cselect_b32 s24, s24, 0x1000\nv_mov_b32 v{V_FO}, s24")
        if o.get('fuse3'): e(f"s_add_u32 s24, s2, s3\ns_cmp_eq_u32 s24, 0\ns_movk_i32 s24, 0x1000\ns_cselect_b32 s24, 128, s24\nv_writelane_b32 v{V_FO}, s24, 1")
        e(f"s_lshl_b32 s24, s{sJ}, 2\ns_add_u32 s24, s24, s{sFB}\ns_cmp_eq_u32 s{sRQ}, 0\ns_cselect_b32 s24, s24, {WS_SIZE}\nv_mov_b32 v{V_FL}, s24")
    else:
        e(f"v_lshlrev_b32 v{V_FO}, 2, v0")
    def pf_batch(b):
        ptr, size, two = {(0, 0): (10, 0x400000, 1), (0, 1): (10, 0x400000, 1), (0, 2): (4, 0x200000, 0), (0, 3): (6, 0x180000, 0),
                          (1, 0): (78, 0x400000, 1), (1, 1): (78, 0x400000, 1), (1, 2): (76, 0x80000, 0), (1, 3): (76, 0, 0)}[(ch, b)]
        if size == 0: return []
        oo = [f"s_mov_b32 s72, s{ptr}\ns_and_b32 s73, s{ptr+1}, 0xffff\ns_mov_b32 s75, 0x20000\ns_cmp_eq_u32 s22, {b}\ns_cselect_b32 s74, {size}, 0\n"
              + (f"s_lshl_b32 s68, s2, 14\ns_add_u32 s68, s68, {(b % 2) * 8192}" if two else "s_lshl_b32 s68, s2, 13")
              + f"\nv_lshlrev_b32 v{V_PF}, 7, v0\nv_add_u32 v{V_PF}, s68, v{V_PF}"]
        oo.append((f"buffer_load_dword v{V_PFD}, v{V_PF}, s[72:75], 0 offen", ('PF', b)))
        return oo
    def pf_any(tbl):
        for rq in range(4):
            ptr, size, sh, add = tbl[rq]
            if rq == 0: e(f"s_mov_b32 s72, s{ptr}\ns_mov_b32 s73, s{ptr+1}\ns_mov_b32 s74, {size}\ns_lshl_b32 s68, s2, {sh}\ns_add_u32 s68, s68, {add}")
            else: e(f"s_lshl_b32 s69, s2, {sh}\ns_add_u32 s69, s69, {add}\ns_cmp_eq_u32 s{sRQ}, {rq}\ns_cselect_b32 s72, s{ptr}, s72\ns_cselect_b32 s73, s{ptr+1}, s73\ns_cselect_b32 s74, {size}, s74\ns_cselect_b32 s68, s69, s68")
        e(f"s_and_b32 s73, s73, 0xffff\ns_mov_b32 s75, 0x20000\nv_lshlrev_b32 v{V_PF}, 7, v0\nv_add_u32 v{V_PF}, s68, v{V_PF}")
        emit((f"buffer_load_dword v{V_PFD}, v{V_PF}, s[72:75], 0 offen", ('PF', 0)))
    o['_pf_any'] = pf_any
    if o.get('pfmode', 3) == 2 or (o.get('pfmode', 3) == 3 and ch == 1): pf = 0
    if o.get('pfmode', 3) == 1:
        pf = 0
        if ch == 0: pf_any({0: (10, 0x400000, 14, 0), 1: (10, 0x400000, 14, 8192), 2: (4, 0x200000, 13, 0), 3: (6, 0x180000, 13, 0)})
    def acc1(mt, nt):
        if ch == 0: return ACC1 + (((nt // 2) * 4 + mt) * 2 + nt % 2) * 4
        return ACC1 + ((nt * 2 + mt // 2) * 2 + mt % 2) * 4
    if ch == 0:
        tiles2 = [('Q', 4), ('Q', 5), ('Q', 0), ('Q', 1), ('Q', 2), ('Q', 3)]
        def acc2(kind, idx, mt): return ACC2 + (((idx // 2) * 4 + mt) * 2 + idx % 2) * 4
    else:
        tiles2 = [('Q', 6), ('Q', 7)] + ([] if g3 else [('G', 3)]) + [('P', 0), ('P', 1), ('P', 2)]
        def acc2(kind, idx, mt):
            if kind == 'Q': return ACC2 + 64 + (mt * 2 + idx % 2) * 4
            return ACC2 + (idx * 4 + mt) * 4
    frags = []
    for u in range(NH):
        slot = (u % 4) * 16384
        ab = AF + (u % 2) * 16
        first = (u % 16 == 0)
        tl = [('W', n) for n in range(8)] if u < 16 else tiles2
        for kind, idx in tl:
            if kind == 'W':
                rd = (lambda d, idx=idx, slot=slot: [f"ds_read_b64_tr_b16 {vr(d+2*hf,2)}, v{V_RW+idx} offset:{slot+ch*8192+hf*1024}" for hf in range(2)])
                wfirst = (ch == 0); accf = (lambda mt, idx=idx: acc1(mt, idx))
            elif kind == 'Q':
                rd = (lambda d, idx=idx, slot=slot: [f"ds_read_b64_tr_b16 {vr(d+2*hf,2)}, v{V_RW+idx} offset:{slot+hf*1024}" for hf in range(2)])
                wfirst = True; accf = (lambda mt, idx=idx: acc2('Q', idx, mt))
            elif kind == 'G':
                rd = (lambda d, idx=idx, slot=slot: [f"ds_read_b128 {vr(d,4)}, v{V_LANE16} offset:{slot+8192+3*1024}", ""])
                wfirst = True; accf = (lambda mt, idx=idx: acc2('G', idx, mt))
            else:
                rd = (lambda d, idx=idx, slot=slot: [f"ds_read_b64_tr_b16 {vr(d+2*hf,2)}, v{V_RP+hf} offset:{slot+8192+idx*1024}" for hf in range(2)])
                wfirst = (idx == 0); accf = (lambda mt, idx=idx: acc2('P', idx, mt))
            def mf(w, mt, accf=accf, wfirst=wfirst, ab=ab, first=first):
                d = vr(accf(mt), 4); A = vr(ab + mt * 4, 4); W = vr(w, 4)
                x, y = (W, A) if wfirst else (A, W)
                return f"{MF} {d}, {x}, {y}, {'0' if first else d}"
            frags.append((u, rd, mf))
    def act_reads(u):
        if u >= NH: return []
        s = u // 2; ks = u % 2; sl = s % 3
        ab = AF + (u % 2) * 16
        reg = V_RA + ks + (2 if sl == 2 else 0)
        off = 32768 if sl == 1 else 0
        return [f"ds_read_b128 {vr(ab+mt*4,4)}, v{reg} offset:{off+mt*2048}" for mt in range(4)]
    def barrier(u):
        pred = lambda tg: tg == ('W', u) or tg == ('A', u // 2) or (u == PUB and tg[0] in ('S', 'G')) or (u == GPUB and tg[0] == 'G') or (u == APUB and tg[0] == 'AP')
        if u < NH: e(f"s_waitcnt vmcnt({vm.n_after(pred)}) lgkmcnt(0)\ns_barrier")
        else: e("s_waitcnt lgkmcnt(0)\ns_barrier")
        if o.get('trace'): stamp(u)
    def stamp(i):
        e(f"s_memrealtime s[84:85]\ns_waitcnt lgkmcnt(0)\nv_writelane_b32 v{V_PF2}, s84, {i}")
    def store_kv(j):
        fi = ((j % 4) * 4 + j // 4) if ch == 0 else ((j % 2) * 8 + j // 2)
        return (f"buffer_store_dwordx4 {vr(ACC1+4*j,4)}, v{V_LANE16}, {WSR}, s{sST+fi//4} offen offset:{(fi%4)*1024} {o.get('kvst', 'sc1')}", ('S', j))
    poll = (f"buffer_load_dword v{V_FL}, v{V_FO}, {WSR}, s{sFB} offen sc1", ('F', 0))
    dpoll = (f"buffer_load_dword v{V_DV}, v{V_DO}, {DBR}, 0 offen sc1", ('F', 2))
    def spin(tag, chk, ld):
        e(chk + f"\ns_cbranch_scc1 L_{nm}_{tag}ok")
        e("s_mov_b32 s66, 0x20000")
        a.label(f"L_{nm}_{tag}spin")
        e(f"s_sleep {o.get('sleep', 8)}")
        e(ld)
        e(chk + f"\ns_cbranch_scc1 L_{nm}_{tag}ok")
        e(f"s_sub_u32 s66, s66, 1\ns_cmp_lg_u32 s66, 0\ns_cbranch_scc1 L_{nm}_{tag}spin")
        a.label(f"L_{nm}_{tag}ok")
    def check_clear():
        spin("c", f"v_cmp_ne_u32 vcc, 0, v{V_DV}\ns_cmp_eq_u32 vcc_lo, -1", dpoll[0])
    def check_flags():
        spin("f", f"v_cmp_eq_u32 vcc, 1, v{V_FL}\ns_and_b32 s64, vcc_lo, 0xff\ns_cmp_eq_u32 s64, 0xff", poll[0])
    NF = len(frags)
    D = RING - 1
    def plan(u):
        G = sum(1 for f in frags if f[0] == u) if u else sum(1 for f in frags if f[0] == 0) - D + 1
        if u == NH: G = D - 1
        nsl = 4 * G
        ops = dmaW(u + 3) + dmaA(u // 2 + 2, u % 2)
        for j in range(16):
            if st0 + (j * o.get('stspan', 11)) // 16 == u and not o.get('nost'): ops.append(store_kv(j))
        npre = o.get('pre', 0)
        for j in range(npre):
            if 1 + (j * o.get('prespan', 12)) // npre == u:
                fi = j * (16 // npre)
                if o.get('preld'): ops.append((f"buffer_load_dwordx4 {vr(224,4)}, v{V_LANE16}, {WSR}, s{sST+fi//4} offen offset:{(fi%4)*1024} sc1", ('Z', j)))
                else: ops.append((f"buffer_store_dwordx4 {vr(TMP,4)}, v{V_LANE16}, {WSR}, s{sST+fi//4} offen offset:{(fi%4)*1024} sc1", ('Z', j)))
        side = []
        if stag:
            if ch == 1 and u < 3 and not o.get('nogath'): side.append(only(u, gath))
            gx0 = o.get('gx0', (1, 5))[ch]
            if gx0 <= u < gx0 + 4 and not o.get('nogx'): side.append(only(u - gx0, gxl))
            q0, qs = o.get('q0', 3), o.get('qs', 2)
            if ch == 0 and u >= q0 and (u - q0) % qs == 0 and (u - q0) // qs < 4 and not o.get('noq'):
                r = (u - q0) // qs
                side.append(only(r, f"s_lshl_b32 s68, s2, 14\ns_add_u32 s68, s68, {r*4096}\nv_lshlrev_b32 v{V_PF}, 6, v0\nbuffer_load_dword v{V_PFD}, v{V_PF}, s[{S_W2}:{S_W2+3}], s68 offen"))
        if ch == 0 and u in o.get('cpf', (12, 28)):
            kn = o['_name']
            side.append(only(0, f"v_and_b32 v{V_PF}, 31, v0\nv_min_u32 v{V_PF}, 19, v{V_PF}\nv_lshl_add_u32 v{V_PF}, v{V_PF}, 7, s98\nv_min_u32 v{V_PF}, L_code_end-L_pc_{kn}-4, v{V_PF}\nv_mov_b32 v{V_PF+1}, s97\n"
                             f"v_add_co_u32 v{V_PF}, vcc, s96, v{V_PF}\nv_addc_co_u32 v{V_PF+1}, vcc, 0, v{V_PF+1}, vcc\nglobal_load_dword v{V_PFD}, v[{V_PF}:{V_PF+1}], off"))
        if pf and not stag:
            u0 = pf1_at if ch == 0 else pf2_at
            order = [b for b in (2, 3, 0, 1) if not (ch == 0 and ((b == 2 and g3 and o.get('nopfx', 1)) or (b == 3 and apc)))]
            if u >= u0 and (u - u0) % pf == 0 and (u - u0) // pf < len(order): ops += pf_batch(order[(u - u0) // pf])
        if u == GPUB and ch == 0: ops = [(f"buffer_store_dword v{V_ONE}, v{V_FO}, {DBR}, 0 offen sc1", ('F', 1))] + ops
        if u == PUB and ch == 0: ops = [(f"buffer_store_dword v{V_ONE}, v{V_FL}, {WSR}, 0 offen sc1", ('F', 1))] + ops
        if u == DPOLL: ops = [dpoll] + ops
        if apc and ch == 1 and u == APST:
            ops = ops + [f"s_mov_b32 s{S_W2}, s{S_WS}\ns_mov_b32 s{S_W2+1}, s{S_WS+1}\ns_cmp_eq_u32 s{sRQ}, 3\ns_cselect_b32 s{S_W2+2}, 0, {WS_SIZE}\ns_mov_b32 s{S_W2+3}, 0x20000\n"
                         f"s_mul_i32 s{sP}, s{sH}, {16*3072}\ns_lshl_b32 s24, s{sRQ}, 10\ns_add_u32 s{sP}, s{sP}, s24\ns_add_u32 s{sP}, s{sP}, {WS_AP}\ns_movk_i32 s{sPST}, 3072\ns_mul_i32 s24, s{sJ}, 6144\ns_add_u32 s24, s24, s{sP}",
                         (f"buffer_store_dwordx4 v[240:243], v{V_LANE16}, s[{S_W2}:{S_W2+3}], s24 offen sc1", ('AP', 0)),
                         (f"buffer_store_dwordx4 v[244:247], v{V_LANE16}, s[{S_W2}:{S_W2+3}], s24 offen offset:3072 sc1", ('AP', 0))]
        if apc and ch == 0 and u == APUB: ops = [(f"buffer_store_dword v{V_ONE}, v{V_FL}, {WSR}, 0 offen offset:64 sc1", ('F', 1))] + ops
        if apc and ch == 1 and u == APOLL: ops = [poll] + ops
        if ch == 1:
            if u == 16:
                ops = ops + [f"s_mov_b32 s{S_DMA}, s{S_WS}\ns_mov_b32 s{S_DMA+1}, s{S_WS+1}\ns_mov_b32 s{S_DMA+2}, {WS_SIZE}\ns_mov_b32 s{S_DMA+3}, 0x20000\n"
                             f"s_lshl_b32 s{sWOFF}, s{sRQ}, 12\ns_lshl_b32 s7, s{sH}, 19\ns_add_u32 s{sK}, s7, s{sWOFF}\ns_add_u32 s{sV}, s{sK}, {WS_VF - 8192}\n"
                             f"s_add_u32 s13, s{sK}, {WS_KF}\ns_cmp_lt_u32 s{sRQ}, 2\ns_cselect_b32 s13, s13, s{sV}\ns_add_u32 s{sK}, s{sK}, {WS_KF + 8192}\n"
                             f"s_add_u32 s14, s{sWOFF}, {SP0*SLOT}\ns_add_u32 s15, s{sWOFF}, {((SP0+1)%NSLOT)*SLOT}"]
            if u == POLL: ops = ops + [poll]
            if u == CHK: ops = ops + [(x[0], ('KV', 0)) if isinstance(x, tuple) else x for x in kv_dma("s14", "s13", ldmod)]
            if u == min(CHK + o.get('kv1', 0), NH): ops = ops + [(x[0], ('KV', 1)) if isinstance(x, tuple) else x for x in kv_dma("s15", None, ldmod)]
        units = []; cur = []
        for x in ops:
            cur.append(x)
            if isinstance(x, tuple): units.append(cur); cur = []
        sch = {}
        if u == GATE_U and g3:
            t = 232
            gl = [f"v_mov_b32 v{t}, 0"]
            for j in range(4):
                gl += [f"v_lshlrev_b32 v{t+1}, 16, v{GX+j}\nv_lshlrev_b32 v{t+2}, 16, v{GW+j}", f"v_fmac_f32 v{t}, v{t+1}, v{t+2}\nv_and_b32 v{t+1}, 0xffff0000, v{GX+j}",
                       f"v_and_b32 v{t+2}, 0xffff0000, v{GW+j}\nv_fmac_f32 v{t}, v{t+1}, v{t+2}"]
            gl += [f"v_add_f32_dpp v{t}, v{t}, v{t} {sh} row_mask:0xf bank_mask:0xf bound_ctrl:0" for sh in ("row_shr:1", "row_shr:2", "row_shr:4", "row_shr:8")]
            gl += [f"v_add_f32_dpp v{t}, v{t}, v{t} row_bcast:15 row_mask:0xa bank_mask:0xf", f"v_add_f32_dpp v{t}, v{t}, v{t} row_bcast:31 row_mask:0xc bank_mask:0xf"]
            gl += [f"v_mul_f32 v{t}, {f32hex(-LOG2E)}, v{t}", f"v_exp_f32 v{t}, v{t}", f"v_add_f32 v{t}, 1.0, v{t}", f"v_rcp_f32 v{t}, v{t}",
                   f"s_lshl_b32 s58, s58, 2\ns_add_u32 s58, s58, {WS_G}", f"v_readlane_b32 s59, v{t}, 63", f"v_mov_b32 v{t+2}, 0", f"v_mov_b32 v{t+1}, s59",
                   (f"buffer_store_dword v{t+1}, v{t+2}, {WSR}, s58 offen sc1", ('L', 1))]
            for i, x in enumerate(gl): sch.setdefault(i, []).append(x)
        if u == 30:
            su = [f"s_lshl_b32 s4, s{sJ}, 1\ns_sub_u32 s{sJL}, 32, s4", f"s_lshl_b32 s4, s{sJ}, 2",
                  (f"s_add_u32 s5, s4, 3\ns_sub_u32 s{sT}, s5, s{sRQ}" if ch else f"s_sub_u32 s6, 60, s4\ns_add_u32 s{sT}, s6, s{sRQ}"),
                  f"s_lshl_b32 s7, s{sH}, 19\ns_mov_b32 s{sRD}, {SP0*SLOT}", f"s_mov_b32 s{sNB}, 1\ns_mov_b32 s{sREM}, s{sT}", f"s_mov_b32 s{sFLAG}, 0\ns_lshl_b32 s12, s{sRQ}, 13",
                  (f"s_sub_u32 s12, {32768+3*8192}, s12" if ch else "s_nop 0"),
                  f"v_lshrrev_b32 v{T+3}, 4, v0\nv_lshlrev_b32 v{T+3}, 2, v{T+3}", f"v_and_b32 v{T+4}, 15, v0"]
            for r in range(4): su += [f"v_cmp_gt_u32 {sr(sMASK+2*r,2)}, v{T+3}, v{T+4}", f"v_add_u32 v{T+3}, 1, v{T+3}"]
            su += [f"s_mov_b32 s70, {f32hex(LOG2E / math.sqrt(128.0))}\ns_mov_b32 s71, s70", f"s_lshl_b32 s64, s{sRQ}, 14\ns_add_u32 s64, s64, 32768", f"v_add_u32 v{T}, s64, v{V_LANE16}"]
            if ch: su += [f"s_mov_b32 s72, {f32hex(LOG2E)}\ns_mov_b32 s73, s72",
                          f"s_lshl_b32 s74, s{sJ}, 1\ns_sub_u32 s75, 30, s74\ns_sub_u32 s74, s74, 2\ns_cmp_lt_u32 s{sRQ}, 2\ns_cselect_b32 s74, s75, s74\ns_add_u32 s74, s74, s{sRQ}",
                          f"s_lshl_b32 s49, s74, 16\ns_lshl_b32 s75, s{sH}, 11\ns_add_u32 s49, s49, s75\ns_add_u32 s49, s49, {WS_PQ3}",
                          f"s_lshl_b32 s75, s74, 10\ns_add_u32 s75, s75, {WS_G3}\ns_cmp_eq_u32 s{sH}, 0\ns_cselect_b32 s75, s75, {WS_SIZE}\nv_add_u32 v{T+2}, s75, v{V_LANE16}",
                          f"s_mov_b32 s74, {f32hex(1e-6)}\ns_mov_b32 s75, s74"]
            for i, x in enumerate(su): sch.setdefault(min(i, nsl - 1), []).append(x)
        n = len(units)
        for i, un in enumerate(units):
            p = min(int((i + (0.25 if ch == 0 else 0.75)) * nsl / n), nsl - 1)
            for x in un[:-1]: sch.setdefault(max(p - 1, 0), []).append(x)
            sch.setdefault(p, []).append(un[-1])
        if cur: sch.setdefault(nsl - 1, []).extend(cur)
        for i, x in enumerate(side): sch.setdefault(nsl - 2 - 4 * i, []).append(x)
        if u:
            for i, x in enumerate(act_reads(u)): sch.setdefault(2 + 3 * i, []).append(x)
        return sch
    barrier(0)
    for x in act_reads(0): e(x)
    for q in range(D):
        for x in frags[q][1](WF + (q % RING) * 4): e(x)
    published = 0
    sch = plan(0); slot = 0
    packs = [f"v_cvt_pk_bf16_f32 v{ACC1+4*j+i}, v{ACC1+8*j+2*i}, v{ACC1+8*j+2*i+1}" for j in range(16) for i in range(4)]
    npacked = 0
    for q in range(NF):
        u, rd, mf = frags[q]
        w = WF + (q % RING) * 4
        nxt = q + D
        reads = []
        need_bar = False
        if nxt < NF:
            if frags[nxt][0] > published: need_bar = True
            reads = frags[nxt][1](WF + (nxt % RING) * 4)
        elif nxt == NF: need_bar = True
        avail = 0
        if u == 15:
            nt = q - 15 * 8
            avail = max((16 * ((nt - 1) // 2) if ch == 0 else 8 * (nt - 1)) if nt >= 1 else 0, 0)
        elif u >= 16: avail = 64
        for mt in range(4):
            if u == 16 and q - 128 >= 2:
                while npacked < 64: e(packs[npacked]); npacked += 1
            e(mf(w, mt))
            if not need_bar and reads and mt in (0, 1): e(reads[mt])
            for x in sch.pop(slot, []): emit(x)
            slot += 1
            k = 0
            while npacked < avail and k < 3: e(packs[npacked]); npacked += 1; k += 1
        if need_bar:
            for sl in sorted(sch):
                for x in sch[sl]: emit(x)
            published += 1
            barrier(published)
            for x in reads: e(x)
            if published == DCHK: check_clear()
            if apc and ch == 1 and published == ACHK:
                spin("a", f"v_cmp_eq_u32 vcc, 1, v{V_FL}\ns_and_b32 s64, vcc_lo, 0xff0000\ns_cmp_eq_u32 s64, 0xff0000", poll[0])
            if ch == 1 and published == CHK:
                check_flags()
                if o.get('trace'): stamp(40)
            sch = plan(published); slot = 0
    for sl in sorted(sch):
        for x in sch[sl]: emit(x)
    def q_out(src, mt, t):
        for i in range(4): e(f"v_pk_mul_f32 {vr(src+2*i,2)}, {vr(src+2*i,2)}, s[70:71]")
        for i in range(4): e(f"v_cvt_pk_bf16_f32 v{src+i}, v{src+2*i}, v{src+2*i+1}")
        e(f"ds_write_b128 v{T}, {vr(src,4)} offset:{mt*4096+t*1024}")
    if ch == 0:
        for t in (2, 0, 1):
            for mt in range(4): q_out(acc2('Q', 2 * t, mt), mt, t)
        e("s_waitcnt lgkmcnt(0)\ns_barrier")
    else:
        for mt in range(4): q_out(acc2('Q', 6, mt), mt, 3)
        if not g3:
            GQ = acc2('G', 3, 0)
            for mt in range(4): e(f"v_mul_f32 v{GQ+mt}, {f32hex(-LOG2E)}, v{GQ+4*mt}")
            for mt in range(4): e(f"v_exp_f32 v{GQ+mt}, v{GQ+mt}")
            for mt in range(4): e(f"v_add_f32 v{GQ+mt}, 1.0, v{GQ+mt}")
            for mt in range(4): e(f"v_rcp_f32 v{GQ+mt}, v{GQ+mt}")
            e(f"v_and_b32 v{T+1}, 15, v0\ns_lshl_b32 s64, s{sRQ}, 8\nv_lshl_add_u32 v{T+1}, v{T+1}, 2, s64")
            for mt in range(4): e(f"ds_write_b32 v{T+1}, v{GQ+mt} offset:{mt*64}")
        qa, ka, va = acc2('P', 0, 0), acc2('P', 1, 0), acc2('P', 2, 0)
        if not g3: emit((f"buffer_store_dwordx4 {vr(GQ,4)}, v{T+2}, {WSR}, 0 offen sc1", ('Q', 0)))
        phi(e, ka, 16)
        for i in range(8): e(f"v_cvt_pk_bf16_f32 v{ka+i}, v{ka+2*i}, v{ka+2*i+1}")
        for i in range(8): e(f"v_cvt_pk_bf16_f32 v{va+i}, v{va+2*i}, v{va+2*i+1}")
        for r in range(4): e(f"v_mov_b32 v{ONES+r}, 0x3f803f80")
        kv = 112; z = 116
        for uu in range(2):
            e(f"{MF} {vr(kv,4)}, {vr(ka+4*uu,4)}, {vr(va+4*uu,4)}, {vr(kv,4) if uu else '0'}")
            e(f"{MF} {vr(z,4)}, {vr(ka+4*uu,4)}, {vr(ONES,4)}, {vr(z,4) if uu else '0'}")
        e(f"s_lshl_b32 s64, s{sRQ}, 11\nv_add_u32 v{T+1}, s64, v{V_LANE16}")
        e(f"ds_write_b128 v{T+1}, {vr(kv,4)} offset:1024\nds_write_b128 v{T+1}, {vr(z,4)} offset:2048")
        e(f"s_waitcnt vmcnt({vm.n_after(lambda tg: tg == ('KV', 0))}) lgkmcnt(0)\ns_barrier")
    o['_acc2'] = acc2
    o['_nkv1'] = vm.n_after(lambda tg: tg == ('KV', 1))
    if o.get('trace'):
        stamp(33)
        e(f"s_lshl_b32 s68, s2, 3\ns_add_u32 s68, s68, s3\ns_lshl_b32 s68, s68, 8\ns_add_u32 s68, s68, {WS_TS + MB}\nv_lshlrev_b32 v{V_PF}, 2, v0")
        e(f"buffer_store_dword v{V_PF2}, v{V_PF}, {WSR}, s68 offen")

def phase2(a, nm, grp, ts, o):
    e = a.e
    D = 8
    force_fb = o.get('force_fb', False)
    ldmod = o.get('ldmod', 'sc1')
    WSR = f"s[{S_WS}:{S_WS+3}]"; DBR = f"s[{S_DBG}:{S_DBG+3}]"
    def dma_ops(m0src): return [x[0] if isinstance(x, tuple) else x for x in kv_dma(m0src, None, ldmod)]
    if ts and o.get('mk', 0) == 0: ts_mark(a)
    def foff(i):
        st, k = divmod(i, 16)
        return (st * 8192 + k * 1024) if k < 8 else (16384 + st * 8192 + (k - 8) * 1024)
    def rd(i): return f"ds_read_b128 {vr(ring(i),4)}, v{V_RN if i >= 32 else V_RD} offset:{foff(i % 32)}"
    if grp and o.get('prio', 1): e("s_setprio 1")
    e(f"v_add_u32 v{V_RN}, s12, v{V_L16}\nv_add_u32 v{V_RD}, {SP0*SLOT}, v{V_L16}")
    for i in range(4):
        e(f"ds_read_b128 {vr(QR+4*i,4)}, v{V_RN} offset:{32768+i*1024}\nds_read_b128 {vr(QR+16+4*i,4)}, v{V_RN} offset:{32768+4096+i*1024}")
        e(rd(8 + i))
    for i in range(4, 8): e(rd(8 + i))
    e(f"s_lshr_b32 s12, s12, 6\nv_and_b32 v{V_T+1}, 15, v0\nv_lshl_add_u32 v{V_T+2}, v{V_T+1}, 2, s12")
    g3 = (o.get('fuse3') and o.get('g3', 1))
    for qt in range(2 if not g3 else 0): e(f"ds_read_b32 v{V_G+qt}, v{V_T+2} offset:{qt*64}")
    if grp:
        for r in range(8): e(f"ds_read_b128 {vr(64+4*r,4)}, v{V_L16} offset:{1024+r*1024}")
    e(f"v_mov_b32 v{V_NINF}, 0xff800000")
    if not grp:
        for r in range(4): e(f"v_mov_b32 v{ONES+r}, 0x3f803f80")
    nextaddr = [f"s_add_u32 s{sRD}, s{sRD}, {SLOT}", f"s_cmp_eq_u32 s{sRD}, {NSLOT*SLOT}\ns_cselect_b32 s{sRD}, 0, s{sRD}", f"v_add_u32 v{V_RN}, s{sRD}, v{V_L16}"]
    bar = (f"s_waitcnt vmcnt({8*(NSLOT-3)})\n" if grp else "") + "s_barrier"
    def bar_post():
        oo = [f"v_mov_b32 v{V_RD}, v{V_RN}"]
        if grp:
            oo.append(f"s_cmp_eq_u32 s{sNB}, s{sPUBN}\ns_cselect_b32 s{S_DBG+2}, {WS_SIZE}, 0\ns_add_u32 s15, s{sNB}, {NSLOT-2}\ns_cmp_gt_u32 s15, s{sJL}\ns_cselect_b32 s{S_DMA+2}, 0, s{S_DMA+2}")
            oo.append(f"buffer_store_dword v5, v4, {DBR}, 0 offen sc1")
            oo += dma_ops(f"s{sDW}")
            oo.append(f"s_add_u32 s{sDW}, s{sDW}, {SLOT}\ns_cmp_ge_u32 s{sDW}, {NSLOT*SLOT}\ns_cselect_b32 s{sDW}, s{sWOFF}, s{sDW}")
        oo.append(f"s_add_u32 s{sNB}, s{sNB}, 1")
        return oo
    def late_dma(j):
        if grp:
            e(f"s_add_u32 s14, s{sWOFF}, {((SP0+j)%NSLOT)*SLOT}")
            for x in dma_ops("s14"): e(x)
    qk0 = [x for _, x in qk_mfmas(0, lambda i: ring(8 + i))]
    for kt in range(2):
        for qt in range(2): qk0 = [x.replace(", " + vr(Cb(kt, qt), 4), ", 0") for x in qk0]
    for x in interleave(qk0, [(8 + i, rd(i)) for i in range(D)]): e(x)
    if grp:
        e(f"s_waitcnt vmcnt({o['_nkv1']}) lgkmcnt(8)\ns_barrier")
        late_dma(2)
        for r in range(1, 4):
            for i in range(8): e(f"v_add_f32 v{64+i}, v{64+i}, v{64+8*r+i}")
        e(f"s_lshl_b32 s64, s{sJ}, 11\ns_add_u32 s64, s64, s{sFB}\ns_sub_u32 s64, s64, {FLO}\ns_cmp_eq_u32 s{sRQ}, 0\ns_cselect_b32 s64, s64, {WS_SIZE}\nv_add_u32 v{V_T}, s64, v{V_L16}")
        for i in range(2): e(f"buffer_store_dwordx4 {vr(64+4*i,4)}, v{V_T}, {WSR}, 0 offen offset:{i*1024} sc1")
        qa = o['_acc2']('P', 0, 0)
        phi(e, qa, 16)
        for i in range(8): e(f"v_cvt_pk_bf16_f32 v{qa+i}, v{qa+2*i}, v{qa+2*i+1}")
        for uu in range(2): e(f"buffer_store_dwordx4 {vr(qa+4*uu,4)}, v{V_L16}, {WSR}, s49 offen offset:{uu*1024} sc1")
        e(f"s_add_u32 s{sDW}, s{sWOFF}, {SP0*SLOT}")
        e(f"s_mov_b32 s{S_DBG}, s{S_WS}\ns_mov_b32 s{S_DBG+1}, s{S_WS+1}\ns_mov_b32 s{S_DBG+2}, 0\ns_mov_b32 s{S_DBG+3}, 0x20000")
        e(f"s_lshl_b32 s64, s{sJ}, 2\ns_add_u32 s64, s64, 32\ns_add_u32 s64, s64, s{sFB}\ns_cmp_eq_u32 s{sRQ}, 0\ns_cselect_b32 s64, s64, {WS_SIZE}\nv_mov_b32 v4, s64\nv_mov_b32 v5, 1\ns_mov_b32 s{sPUBN}, 2")
        e(f"s_cmp_eq_u32 s{sT}, 0\ns_cbranch_scc0 L_{nm}_nomask0")
        for r in range(4):
            m = sr(sMASK + 2 * r, 2)
            e(f"v_cndmask_b32 v{SR+r}, v{SR+r}, v{V_NINF}, {m}\nv_cndmask_b32 v{SR+12+r}, v{SR+12+r}, v{V_NINF}, {m}\nv_mov_b32 v{SR+4+r}, v{V_NINF}")
        a.label(f"L_{nm}_nomask0")
    else:
        e("s_waitcnt lgkmcnt(8)\ns_barrier")
    def rowmax(dst, b, qt, acc=False):
        s = SR + b * 16 + qt * 8
        e(f"v_max3_f32 v{dst}, v{s}, v{s+1}, " + (f"v{dst}" if acc else f"v{s+1}"))
        for i in range(1, 4): e(f"v_max3_f32 v{dst}, v{s+2*i}, v{s+2*i+1}, v{dst}")
    def set_c():
        for qt in range(2):
            for kt in range(2):
                for r in range(4): e(f"v_sub_f32 v{Cb(kt,qt)+r}, 0, v{V_T+4+qt}")
    for qt in range(2): rowmax(V_T + 4 + qt, 0, qt)
    for qt in range(2): xgroup(e, "v_max_f32", V_T + 4 + qt, V_T + 6 + qt)
    late_dma(3)
    set_c()
    for i in range(16): e(f"v_sub_f32 v{SR+i}, v{SR+i}, v{V_T+4+i//8}")
    late_dma(4)
    if grp and o.get('prio', 1): e("s_setprio 0")
    ncb = [0]
    wtpoll = f"buffer_load_dword v241, v243, {WSR}, 0 offen sc1\nbuffer_load_dword v242, v243, {WSR}, 0 offen offset:1024 sc1"
    o['_wtpoll'] = wtpoll
    if grp: e(f"s_lshl_b32 s64, s{sRQ}, 8\ns_add_u32 s64, s64, {WS_DONE}\nv_lshl_add_u32 v243, v0, 2, s64\nv_mov_b32 v241, 0\nv_mov_b32 v242, 0")
    def cond_bar(between=(), vmn=None):
        ncb[0] += 1
        L = f"L_{nm}_cb{ncb[0]}"
        oo = [f"s_cmp_ge_u32 s{sNB}, s{sJL}\ns_cbranch_scc1 {L}"]
        if grp:
            oo.append(f"s_cmp_eq_u32 s{sNB}, 1\ns_cbranch_scc1 {L}")
            oo.append(f"s_add_u32 s15, s{sNB}, 1\ns_cmp_lg_u32 s15, s{sJL}\ns_cbranch_scc1 {L}n\ns_waitcnt vmcnt(0)\n{L}n:")
        oo.append(bar if vmn is None else f"s_waitcnt vmcnt({vmn})\ns_barrier")
        bp = bar_post()[1:-1]
        if grp and o.get('fuse3') and o.get('wt', 1):
            bp = bp[:2] + [f"s_cbranch_scc1 {L}d"] + bp[2:] + [f"s_branch {L}e\n{L}d:\ns_add_u32 s15, s{sNB}, 2\ns_cmp_lg_u32 s15, s{sJL}\ns_cbranch_scc1 {L}e\n{wtpoll}\n{L}e:"]
        elif grp: bp = bp[:2] + [f"s_cbranch_scc1 {L}d"] + bp[2:] + [f"{L}d:"]
        oo += bp
        if vmn is not None:
            oo = [x.replace(f"s_cbranch_scc1 {L}\n", f"s_cbranch_scc1 {L}s\n") if not x.endswith(L) else x + "s" for x in oo]
            oo.append(f"s_branch {L}\n{L}s:\ns_waitcnt vmcnt(0)")
        oo.append(f"{L}:")
        oo += list(between)
        oo += [bar_post()[0], bar_post()[-1]]
        return "\n".join(oo)
    def step(st, tailops=(), mode='loop'):
        mf = qk_mfmas(1 - st, lambda i: ring(st * 16 + i)) + [(8 + f, x) for f, x in pv_mfmas(1 - st, lambda i: ring(st * 16 + 8 + i))]
        main = []
        for m, (f, x) in enumerate(mf):
            if m % 8 == 0: x += " ; also " + ",".join(vr(ring(st*16+f+j), 4) for j in range(1, 4))
            main.append(x)
        main += sum_mfmas(1 - st)
        if mode == 'nobar':
            def zc(x):
                c, _, cm = x.partition(" ;")
                pp = c.split(", "); pp[3] = "0"
                return ", ".join(pp) + (" ;" + cm if cm else "")
            main = main[:16] + [zc(x) for x in main[16:]]
        exps, _, cvts = sm_ops(st)
        fill = [(2 * i, exps[i]) for i in range(16)] + [(4 * i + 3, cvts[i]) for i in range(8)]
        if st == 0:
            for i, x in enumerate(nextaddr): fill.append((3 + 8 * i, x))
        for k in range(16):
            tgt = st * 16 + k + D
            pos = 4 * (k // 2) + 1
            if tgt == 32:
                if mode == 'loop':
                    fill.append((pos - 2, bar))
                    for i, x in enumerate(bar_post()): fill.append((pos + 1 + i, x))
                elif mode == 'cond': fill.append((pos - 2, cond_bar()))
                else: fill.append((pos + 2, bar_post()[0])); fill.append((pos + 3, bar_post()[-1]))
            fill.append((pos, rd(tgt)))
        for i, x in enumerate(tailops): fill.append((33, x))
        fill = [(min(p, 33), x) for p, x in fill]
        fill.sort(key=lambda t: t[0])
        for x in interleave(main, fill): e(x)
    def step0_first():
        main = [x for _, x in qk_mfmas(1, ring)]
        exps, _, cvts = sm_ops(0)
        fill = [(i, exps[i]) for i in range(16)] + [(2 * i + 2, cvts[i]) for i in range(8)]
        for i, x in enumerate(nextaddr): fill.append((3 + 4 * i, x))
        for k in range(8): fill.append((2 * k + 1, rd(16 + k)))
        fill.sort(key=lambda t: t[0])
        for x in interleave(main, fill): e(x)
    if ts and o.get('mk', 0) == 1: ts_mark(a)
    if grp:
        e(f"s_cmp_lt_u32 s{sREM}, 3\ns_cbranch_scc0 L_{nm}_big")
        for r in range(64): e(f"v_mov_b32 v{OR+r}, 0")
        for r in range(8): e(f"v_mov_b32 v{PR+8+r}, 0\nv_mov_b32 v{LS+r}, 0")
        e(f"s_branch L_{nm}_chk")
        a.label(f"L_{nm}_big")
    step0_first()
    if not grp and o.get('g1pf', 1):
        e(f"s_cmp_lt_u32 s{sRQ}, 2\ns_cselect_b32 s72, s78, s76\ns_cselect_b32 s73, s79, s77\ns_mov_b32 s74, 0x80000\ns_cselect_b32 s74, 0x400000, s74\ns_lshl_b32 s68, s2, 1\ns_and_b32 s69, s{sRQ}, 1\ns_add_u32 s68, s68, s69\ns_lshl_b32 s68, s68, 13")
        e(f"s_and_b32 s73, s73, 0xffff\ns_mov_b32 s75, 0x20000\nv_lshlrev_b32 v242, 7, v0\nv_add_u32 v242, s68, v242")
        e(f"buffer_load_dword v241, v242, s[72:75], 0 offen")
    step(1, [f"s_sub_u32 s{sREM}, s{sREM}, 2", f"s_cmp_lt_u32 s{sREM}, 3"], mode='nobar')
    if grp: e(f"s_cbranch_scc1 L_{nm}_chk")
    e(".p2align 6")
    a.label(f"L_{nm}_loop")
    step(0, [f"s_sub_u32 s{sREM}, s{sREM}, 2"])
    step(1, [f"s_cmp_ge_u32 s{sREM}, 3"])
    e(f"s_cbranch_scc1 L_{nm}_loop")
    a.label(f"L_{nm}_chk")
    e(f"s_cmp_eq_u32 s{sREM}, 0\ns_cbranch_scc1 L_{nm}_tail0")
    e(f"s_cmp_eq_u32 s{sREM}, 1\ns_cbranch_scc0 L_{nm}_chk1")
    mask_ops(e)
    a.label(f"L_{nm}_chk1")
    step(0)
    e(f"s_cmp_eq_u32 s{sREM}, 1\ns_cbranch_scc1 L_{nm}_tail1")
    mask_ops(e)
    step(1, mode='cond')
    def sm_pv(b, fr):
        main = [x for _, x in pv_mfmas(1 - b, fr)] + sum_mfmas(1 - b)
        exps, _, cvts = sm_ops(b)
        fill = [(i, exps[i]) for i in range(16)] + [(2 * i + 3, cvts[i]) for i in range(8)]
        fill.sort(key=lambda t: t[0])
        for x in interleave(main, fill): e(x)
    a.label(f"L_{nm}_tail0")
    for k in range(16): e(f"ds_read_b128 {vr(ring(k),4)}, v{V_RD} offset:{16384 + k*1024}")
    sm_pv(0, lambda i: ring(i))
    e(cond_bar())
    for x in [x for _, x in pv_mfmas(0, lambda i: ring(8 + i))] + sum_mfmas(0): e(x)
    e(f"s_branch L_{nm}_epi")
    a.label(f"L_{nm}_tail1")
    for k in range(8): e(f"ds_read_b128 {vr(ring(k),4)}, v{V_RD} offset:{24576 + k*1024}")
    sm_pv(1, lambda i: ring(i))
    e(cond_bar([f"ds_read_b128 {vr(ring(8+k),4)}, v{V_RN} offset:{16384 + k*1024}" for k in range(8)]))
    for x in [x for _, x in pv_mfmas(1, lambda i: ring(8 + i))] + sum_mfmas(1): e(x)
    def epilogue(check):
        if check:
            e(f"v_add_f32 v{V_T+7}, v{LS}, v{LS+4}")
            e(f"v_cmp_nle_f32 vcc, v{V_T+7}, v{V_T+3}")
            e(f"s_cmp_lg_u64 vcc, 0")
            if force_fb: e("s_cmp_eq_u32 s2, s2")
            e(f"s_cselect_b32 s{sFLAG}, 1, 0\ns_cbranch_scc1 L_{nm}_post")
        for qt in range(2):
            e(f"v_rcp_f32 v{V_T+4+qt}, v{LS+4*qt}")
            if not g3: e(f"v_sub_f32 v{V_T+6}, 1.0, v{V_G+qt}\nv_mul_f32 v{V_T+4+qt}, v{V_T+4+qt}, v{V_T+6}")
        e(f"s_lshr_b32 s4, s{sT}, 1\ns_mul_i32 s4, s4, {144*4096}\ns_lshl_b32 s5, s{sH}, 14\ns_add_u32 s4, s4, s5\ns_and_b32 s5, s{sT}, 1\ns_lshl_b32 s5, s5, 11\ns_add_u32 s4, s4, s5\ns_add_u32 s4, s4, {WS_CTX}")
        for t in range(4):
            for qt in range(2):
                oo = Ob(2 * t, qt)
                for i in range(8): e(f"v_mul_f32 v{oo+i}, v{V_T+4+qt}, v{oo+i}")
                for i in range(4): e(f"v_cvt_pk_bf16_f32 v{oo+i}, v{oo+2*i}, v{oo+2*i+1}")
                e(f"buffer_store_dwordx4 {vr(oo,4)}, v{V_L16}, {WSR}, s4 offen offset:{qt*1024} sc1")
            if t < 3: e("s_add_u32 s4, s4, 4096")
    a.label(f"L_{nm}_epi")
    if ts: ts_mid(a)
    e(f"v_mov_b32 v{V_T+3}, {f32hex(2.0**30)}\nv_mov_b32 v{V_RN}, 0")
    epilogue(True)
    a.label(f"L_{nm}_post")
    fl_load = f"buffer_load_dword v{V_RN}, v{V_T}, {WSR}, s{sFB} offen sc1"
    nomov = lambda x: x.replace(f"v_mov_b32 v{V_RD}, v{V_RN}\n", "")
    if grp:
        sv = VmTrack()
        for g3 in range(3):
            for i in range(8): sv.issue(('D', g3 - 3))
        nbar = [0]
        def sbar():
            k = nbar[0]; nbar[0] += 1
            e(nomov(cond_bar(vmn=sv.n_after(lambda tg: tg == ('D', k - 3)))))
            for i in range(9): sv.issue(('D', k))
        def V(x): e(x); sv.issue(('X', 0))
        KV = OR; WTR = RG; TT = SR
        e(f"v_lshlrev_b32 v{V_T}, 2, v0")
        wt0 = len(a.lines)
        e(f"s_cmp_ge_u32 s{sJ}, 4\ns_cbranch_scc1 L_{nm}_post1")
        a.label(f"L_{nm}_pd")
        e(f"s_cmp_ge_u32 s{sNB}, {o.get('wtd', 8)}\ns_cbranch_scc1 L_{nm}_pdd")
        e(nomov(cond_bar()))
        e(f"s_branch L_{nm}_pd")
        a.label(f"L_{nm}_pdd")
        e(f"s_lshr_b32 s6, s{sT}, 1\ns_lshl_b32 s6, s6, 6\ns_lshl_b32 s8, s{sH}, 1\ns_add_u32 s6, s6, s8\ns_and_b32 s8, s{sT}, 1\ns_add_u32 s6, s6, s8")
        e(f"s_lshl_b32 s8, s6, 13\ns_add_u32 s9, s8, 4096\ns_lshl_b32 s10, s6, 10")
        srd(a, 68, 78, 4096 * 1024); srd(a, 60, 76, 512 * 1024)
        for i in range(8):
            V(f"buffer_load_dwordx4 {vr(WTR+4*i,4)}, v{V_L16}, s[68:71], s{8+i//4} offen offset:{(i%4)*1024}")
            if i in (2, 5): sbar()
        V(f"buffer_load_dwordx4 {vr(WTR+32,4)}, v{V_L16}, s[60:63], s10 offen")
        e(f"v_lshlrev_b32 v{V_T}, 2, v0")
        V(fl_load)
        e(f"v_lshrrev_b32 v{TT}, 3, v0\nv_mul_u32_u24 v{TT}, {144*4096}, v{TT}\nv_and_b32 v{TT+1}, 7, v0\nv_lshl_add_u32 v{TT}, v{TT+1}, 4, v{TT}")
        for i in range(1, 4): e(f"v_xor_b32 v{TT+i}, {32*i}, v{TT}")
        e(f"s_lshl_b32 s9, s6, 4\ns_and_b32 s9, s9, 96\nv_xor_b32 v{TT+4}, s9, v{TT}")
        e(f"s_lshl_b32 s8, s6, 10\ns_add_u32 s8, s8, {WS_WT}\ns_lshl_b32 s9, s6, 7\ns_add_u32 s9, s9, {WS_WT + 128*4096}")
        sbar(); sbar()
        for i in range(8):
            if i in (3, 6): sbar()
            V(f"buffer_store_dwordx4 {vr(WTR+4*i,4)}, v{TT+i//2}, {WSR}, s8 offen offset:{i*128} sc1")
        V(f"buffer_store_dwordx4 {vr(WTR+32,4)}, v{TT+4}, {WSR}, s9 offen sc1")
        if o.get('fuse3') and not o.get('wt', 1): del a.lines[wt0:]
        e(f"s_lshl_b32 s4, s{sJ}, 2\ns_add_u32 s4, s4, s{sRQ}\ns_cmp_lg_u32 s4, {4*o.get('kvj', 1)}\ns_cbranch_scc1 L_{nm}_post1")
        chk2 = f"v_cmp_eq_u32 vcc, 1, v{V_RN}\ns_and_b32 s64, vcc_lo, 0xff00\ns_cmp_eq_u32 s64, 0xff00\ns_cbranch_scc1 L_{nm}_pgo"
        e(chk2)
        a.label(f"L_{nm}_pw")
        e(fl_load)
        e(nomov(cond_bar(vmn=16)))
        e(nomov(cond_bar(vmn=16)))
        e(chk2)
        e(f"s_cmp_lt_u32 s{sNB}, s{sJL}\ns_cbranch_scc1 L_{nm}_pw")
        e("s_mov_b32 s67, 0x20000")
        a.label(f"L_{nm}_spin2")
        e(f"s_sleep 8\n{fl_load}\n{chk2}")
        e(f"s_sub_u32 s67, s67, 1\ns_cmp_lg_u32 s67, 0\ns_cbranch_scc1 L_{nm}_spin2")
        a.label(f"L_{nm}_pgo")
        sv.tags = [('D', g3 - 3) for g3 in range(3) for i in range(8)]; nbar[0] = 0
        e(f"s_sub_u32 s4, s{sFB}, {FLO}")
        for i in range(16):
            V(f"buffer_load_dwordx4 {vr(KV+4*i,4)}, v{V_L16}, {WSR}, s4 offen offset:{(i%4)*1024} sc1")
            if i % 4 == 3 and i < 15: e("s_add_u32 s4, s4, 4096")
            if i == 7: sbar()
        sbar(); sbar()
        for r in range(1, 8):
            for i in range(4): e(f"v_pk_add_f32 {vr(KV+2*i,2)}, {vr(KV+2*i,2)}, {vr(KV+8*r+2*i,2)}")
        for i in range(4): e(f"v_cvt_pk_bf16_f32 v{KV+8+i}, v{KV+2*i}, v{KV+2*i+1}")
        e(f"s_lshl_b32 s4, s{sH}, 10\ns_add_u32 s4, s4, {WS_KVF}")
        V(f"buffer_store_dwordx4 {vr(KV+8,4)}, v{V_L16}, {WSR}, s4 offen sc1")
        a.label(f"L_{nm}_post1")
        if o.get('fuse3') and o.get('earlypub', 1):
            e(f"s_lshr_b32 s4, s{sT}, 1\ns_lshl_b32 s4, s4, 8\ns_lshl_b32 s5, s{sH}, 3\ns_add_u32 s4, s4, s5\ns_and_b32 s5, s{sT}, 1\ns_lshl_b32 s5, s5, 2\ns_add_u32 s4, s4, s5\ns_add_u32 s4, s4, {WS_DONE}\nv_mov_b32 v4, s4")
            e(f"s_add_u32 s{sPUBN}, s{sNB}, 2\ns_cmp_eq_u32 s{sFLAG}, 0\ns_cselect_b32 s{sPUBN}, s{sPUBN}, 0")
        a.label(f"L_{nm}_post2")
    e(f"s_cmp_ge_u32 s{sNB}, s{sJL}\ns_cbranch_scc1 L_{nm}_postdone")
    e(nomov(cond_bar()))
    e(f"s_branch L_{nm}_post{'2' if grp else ''}")
    a.label(f"L_{nm}_postdone")
    e(f"s_cmp_eq_u32 s{sFLAG}, 0\ns_cbranch_scc1 L_{nm}_nofb")
    def ld8(base, so0, so1):
        for i in range(8): e(f"buffer_load_dwordx4 {vr(ring(base+i),4)}, v{V_L16}, {WSR}, {so0 if i < 4 else so1} offen offset:{(i%4)*1024} sc1")
    for r in range(16): e(f"v_mov_b32 v{CB+r}, 0")
    e(f"v_mov_b32 v{V_T+4}, v{V_NINF}\nv_mov_b32 v{V_T+5}, v{V_NINF}")
    e(f"s_add_u32 s10, s7, {WS_KF}\ns_mov_b32 s{sREM}, s{sT}")
    a.label(f"L_{nm}_fb1")
    e("s_add_u32 s11, s10, 4096")
    ld8(0, "s10", "s11")
    e(f"s_cmp_eq_u32 s{sREM}, 0\ns_cbranch_scc0 L_{nm}_fb1n")
    mask_ops(e)
    a.label(f"L_{nm}_fb1n")
    for _, x in qk_mfmas(0, ring): e(x)
    for qt in range(2): rowmax(V_T + 4 + qt, 0, qt, acc=True)
    e(f"s_add_u32 s10, s10, 8192\ns_cmp_eq_u32 s{sREM}, 0\ns_cbranch_scc1 L_{nm}_fb1d\ns_sub_u32 s{sREM}, s{sREM}, 1\ns_branch L_{nm}_fb1")
    a.label(f"L_{nm}_fb1d")
    for qt in range(2): xgroup(e, "v_max_f32", V_T + 4 + qt, V_T + 6)
    set_c()
    for r in range(64): e(f"v_mov_b32 v{OR+r}, 0")
    for r in range(8): e(f"v_mov_b32 v{LS+r}, 0")
    e(f"s_add_u32 s10, s7, {WS_KF}\ns_add_u32 s12, s7, {WS_VF}\ns_mov_b32 s{sREM}, s{sT}")
    a.label(f"L_{nm}_fb2")
    e("s_add_u32 s11, s10, 4096\ns_add_u32 s13, s12, 4096")
    ld8(0, "s10", "s11"); ld8(8, "s12", "s13")
    e(f"s_cmp_eq_u32 s{sREM}, 0\ns_cbranch_scc0 L_{nm}_fb2n")
    mask_ops(e)
    a.label(f"L_{nm}_fb2n")
    for _, x in qk_mfmas(0, ring): e(x)
    exps, _, cvts = sm_ops(0)
    for x in exps + cvts: e(x)
    for x in [x for _, x in pv_mfmas(0, lambda i: ring(8 + i))] + sum_mfmas(0): e(x)
    e(f"s_add_u32 s10, s10, 8192\ns_add_u32 s12, s12, 8192\ns_cmp_eq_u32 s{sREM}, 0\ns_cbranch_scc1 L_{nm}_fb2d\ns_sub_u32 s{sREM}, s{sREM}, 1\ns_branch L_{nm}_fb2")
    a.label(f"L_{nm}_fb2d")
    epilogue(False)
    a.label(f"L_{nm}_nofb")
    if o.get('fuse3'): return
    if ts: ts_end(a, 0, S_WS, 3, vtmp=176)
    e("s_endpgm")

def phase3(a, nm, grp, ts, o):
    e = a.e
    deep = o.get('deep', 0)
    g3 = o.get('g3', 1)
    assert not g3 or o.get('wt', 1)
    PD = 5 if deep else 3; rot = o.get('rot', 0 if o.get('wt', 1) else 2); cmod = o.get('cmod', 'sc1')
    WSR = f"s[{S_WS}:{S_WS+3}]"
    S_O, S_A, S_B = 4, 8, 12
    ACC = 64; CF = 128; WFr = 208; PQ = 16; KVFr = 48; GG = 12; X = 192; TT = 240
    NS = 18; NL = 4; NC = 6 if deep else 4
    CFS = [128, 144, 160, 176, 192, 240]
    a0, aper = (11, 1) if deep else (o.get('a0', 8), o.get('aper', 2))
    srd(a, S_O, 100, 2048 * 1024); srd(a, S_A, 78, 4096 * 1024); srd(a, S_B, 76, 512 * 1024)
    xm = o.get('xmap', '8x4')
    if xm == '8x4':
        e("s_and_b32 s30, s2, 6\ns_lshl_b32 s30, s30, 2\ns_lshr_b32 s31, s2, 3\ns_and_b32 s32, s31, 7\ns_add_u32 s30, s30, s32\ns_lshr_b32 s31, s31, 3\ns_and_b32 s33, s2, 1\ns_lshl_b32 s33, s33, 2\ns_add_u32 s31, s31, s33")
    else:
        e("s_and_b32 s30, s2, 7\ns_lshr_b32 s31, s2, 3\ns_and_b32 s32, s31, 3\ns_lshl_b32 s30, s30, 2\ns_add_u32 s30, s30, s32\ns_lshr_b32 s31, s31, 2")
        if xm == '4x8n': e("s_mov_b32 s32, s31")
    e(f"s_lshl_b32 s28, s{sJ}, 2\ns_lshr_b32 s28, 0x24130241, s28\ns_and_b32 s28, s28, 7\ns_lshl_b32 s28, s28, 15")
    e(f"s_xor_b32 s33, s3, 4\ns_lshl_b32 s33, s33, 14\ns_add_u32 s33, s33, s28\ns_sub_u32 s29, s33, {NSLOT*SLOT}\ns_cmp_ge_u32 s33, {NSLOT*SLOT}\ns_cselect_b32 s33, s29, s33")
    e("v_lshrrev_b32 v3, 3, v0\nv_lshlrev_b32 v3, 10, v3")
    e("v_lshrrev_b32 v4, 4, v0\nv_lshlrev_b32 v4, 1, v4\nv_and_b32 v5, 7, v0\nv_xor_b32 v4, v4, v5\nv_lshlrev_b32 v4, 4, v4")
    e("v_add_u32 v4, v3, v4\nv_add_u32 v5, 7168, v4\nv_add_u32 v6, 14336, v4\nv_add_u32 v7, 21504, v4")
    wt = o.get('wt', 1)
    if wt: e(f"s_mul_i32 s34, s31, {144*4096}\ns_add_u32 s34, s34, {WS_WT}\ns_lshl_b32 s39, s3, 13\ns_add_u32 s35, s34, s39\ns_add_u32 s35, s35, {128*4096}\ns_lshl_b32 s39, s3, 16\ns_add_u32 s34, s34, s39")
    else: e("s_lshl_b32 s36, s31, 7\ns_lshl_b32 s34, s3, 19\ns_add_u32 s34, s34, s36\ns_lshl_b32 s35, s3, 16\ns_add_u32 s35, s35, s36")
    e(f"s_mul_i32 s37, s30, {144*4096}\ns_add_u32 s37, s37, {WS_CTX}\ns_lshl_b32 s39, s3, 16\ns_add_u32 s37, s37, s39")
    e(f"s_mul_i32 s48, s32, {rot}\ns_and_b32 s48, s48, 15\ns_mov_b32 s52, s48")
    vm = VmTrack()
    def loadW(idx):
        e(f"s_add_u32 m0, s33, {(idx % NL)*4096}")
        if idx < 16:
            e(f"s_lshl_b32 s49, s48, {12 if wt else 15}\ns_add_u32 s49, s49, s34\ns_add_u32 s48, s48, 1\ns_and_b32 s48, s48, 15")
            rs, so = S_A, "s49"
        else: rs, so = S_B, "s35"
        for i in range(4):
            if wt: e(f"buffer_load_dwordx4 v{V_L16}, {WSR}, {so} offen offset:{i*1024} {cmod} lds")
            else: e(f"buffer_load_dwordx4 v{4+i}, s[{rs}:{rs+3}], {so} offen offset:{i*1024} lds")
            vm.issue(('W', idx))
        if idx >= 16: e(f"s_add_u32 s35, s35, {4096 if wt else 32768}")
    def loadC(idx):
        if idx >= 16: return
        e(f"s_lshl_b32 s50, s52, 12\ns_add_u32 s50, s50, s37\ns_add_u32 s52, s52, 1\ns_and_b32 s52, s52, 15")
        for i in range(4):
            e(f"buffer_load_dwordx4 {vr(CFS[idx%NC]+i*4,4)}, v{V_L16}, {WSR}, s50 offen offset:{i*1024} {cmod}"); vm.issue(('C', idx))
    def setup2():
        e("v_lshrrev_b32 v8, 2, v0\nv_lshlrev_b32 v8, 7, v8")
        e("v_lshrrev_b32 v9, 3, v0\nv_and_b32 v9, 3, v9\nv_lshlrev_b32 v9, 5, v9")
        e("v_and_b32 v10, 3, v0\nv_lshlrev_b32 v10, 3, v10\nv_add3_u32 v8, v8, v9, v10\nv_add_u32 v8, s33, v8")
        e("v_xor_b32 v9, 32, v8\nv_xor_b32 v10, 64, v8\nv_xor_b32 v11, 96, v8")
        e(f"s_lshl_b32 s40, s30, 16\ns_lshl_b32 s41, s3, 13\ns_add_u32 s40, s40, s41\ns_add_u32 s40, s40, {WS_PQ3}\ns_add_u32 s41, s40, 4096")
        e(f"s_lshl_b32 s42, s3, 12\ns_add_u32 s42, s42, {WS_KVF}\ns_lshl_b32 s43, s30, 10\ns_add_u32 s43, s43, {WS_G3}\ns_mov_b32 s53, {f32hex(1e-6)}")
        if g3: e(f"s_lshl_b32 s43, s30, 8\ns_add_u32 s43, s43, {WS_G}\nv_and_b32 v7, 15, v0\nv_lshlrev_b32 v7, 2, v7")
    NR = 5 if deep else o.get('nr', 7)
    RR = [16, 32, 48, 208, 224] if deep else [16, 32, 48, 192, 208, 224, 240]
    def wreg(idx): return RR[idx] if idx < NR else WFr + ((idx - NR) % 2) * 16
    def trread(idx):
        e(f"s_waitcnt vmcnt({vm.n_after(lambda t: t == ('W', idx))})")
        for n in range(4):
            for hf in range(2):
                e(f"ds_read_b64_tr_b16 {vr(wreg(idx)+n*4+hf*2,2)}, v{8+n} offset:{(idx%NL)*4096+hf*2048}")
    def prephase():
        for idx in range(NL): loadW(idx)
        for idx in range(NR):
            trread(idx)
            e("s_waitcnt lgkmcnt(0)")
            loadW(idx + NL)
    e(f"s_lshr_b32 s54, s{sT}, 1\ns_lshl_b32 s54, s54, 8\ns_lshl_b32 s55, s{sH}, 3\ns_add_u32 s54, s54, s55\ns_and_b32 s55, s{sT}, 1\ns_lshl_b32 s55, s55, 2\ns_add_u32 s54, s54, s55\ns_add_u32 s54, s54, {WS_DONE}\nv_mov_b32 v2, 0\nv_mov_b32 v3, 1")
    setup2()
    if grp and o.get('earlypub', 1):
        e(f"s_sub_u32 s55, s{sPUBN}, 1\ns_sub_u32 s56, s{sJL}, 1\ns_cmp_lt_u32 s55, s56\ns_cselect_b32 s55, {WS_SIZE}, 0\nv_mov_b32 v2, s55")
    e("s_waitcnt vmcnt(0)")
    e(f"buffer_store_dword v3, v2, {WSR}, s54 offen sc1")
    if wt and grp:
        wchk = f"v_and_b32 v241, v241, v242\nv_cmp_eq_u32 vcc, 1, v241\ns_cmp_eq_u64 vcc, -1\ns_cbranch_scc1 L_{nm}_p3wok"
        e(wchk)
        e("s_mov_b32 s55, 0x40000")
        a.label(f"L_{nm}_p3w")
        e("s_sleep 8")
        e(o['_wtpoll'])
        e(wchk)
        e(f"s_sub_u32 s55, s55, 1\ns_cmp_lg_u32 s55, 0\ns_cbranch_scc1 L_{nm}_p3w")
        a.label(f"L_{nm}_p3wok")
    def pollflags():
        e(f"s_mov_b32 s55, 0x40000\nv_lshlrev_b32 v2, 2, v0\ns_lshl_b32 s54, s30, 8\ns_add_u32 s54, s54, {WS_DONE}\ns_mov_b32 s56, {WS_DONE + 256*(2*o.get('kvj', 1)+1)}")
        a.label(f"L_{nm}_p3spin")
        e(f"buffer_load_dword v3, v2, {WSR}, s54 offen sc1\nbuffer_load_dword v12, v2, {WSR}, s56 offen sc1")
        e(f"v_cmp_eq_u32 vcc, 1, v12\ns_and_b32 s57, vcc_lo, vcc_hi\ns_or_b32 s57, s57, 0x55555555\nv_cmp_eq_u32 vcc, 1, v3\ns_and_b32 s57, s57, vcc_lo\ns_and_b32 s57, s57, vcc_hi\ns_cmp_eq_u32 s57, -1\ns_cbranch_scc1 L_{nm}_p3go\ns_sleep {o.get('sleep3', 8)}")
        e(f"s_sub_u32 s55, s55, 1\ns_cmp_lg_u32 s55, 0\ns_cbranch_scc1 L_{nm}_p3spin")
        a.label(f"L_{nm}_p3go")
    if o.get('e2', 1):
        if grp:
            prephase()
            e("s_barrier")
            e(f"s_cmp_lg_u32 s{sRQ}, 0\ns_cbranch_scc1 L_{nm}_p3go")
            pollflags()
            e("s_barrier")
        else:
            e("s_barrier")
            prephase()
            e("s_barrier")
    else:
        if grp: prephase()
        e("s_barrier")
        if not grp: prephase()
        pollflags()
    if ts: ts_mark(a) if o.get('mk', 0) == 2 else None
    for idx in range(PD): loadC(idx)
    def loadA():
        for i in range(8): e(f"buffer_load_dwordx4 {vr(PQ+4*i,4)}, v{V_L16}, {WSR}, s{40+i//4} offen offset:{(i%4)*1024} {cmod}"); vm.issue(('A', 0))
        for i in range(4): e(f"buffer_load_dwordx4 {vr(KVFr+4*i,4)}, v{V_L16}, {WSR}, s42 offen offset:{i*1024} {cmod}"); vm.issue(('A', 0))
        if g3:
            for t in range(4): e(f"buffer_load_dword v{GG+t}, v7, {WSR}, s43 offen offset:{t*64} {cmod}"); vm.issue(('A', 0))
        else: e(f"buffer_load_dwordx4 {vr(GG,4)}, v{V_L16}, {WSR}, s43 offen {cmod}"); vm.issue(('A', 0))
    def head(hh):
        p = PQ + 8 * hh
        for t in range(4):
            e(f"v_mfma_f32_16x16x16_bf16 {vr(X+4*t,4)}, {vr(KVFr+4*hh,2)}, {vr(p+2*t,2)}, 0")
            e(f"v_mfma_f32_16x16x16_bf16 {vr(TT+4*t,4)}, {vr(KVFr+4*hh+2,2)}, {vr(p+2*t,2)}, 0")
        for t in range(4): e(f"v_add_f32 v{TT+4*t}, s53, v{TT+4*t}")
        for t in range(4): e(f"v_rcp_f32 v{TT+4*t}, v{TT+4*t}")
        for t in range(4): e(f"v_mul_f32 v{TT+4*t}, v{GG+t}, v{TT+4*t}")
        for t in range(4):
            for i in range(4): e(f"v_mul_f32 v{X+4*t+i}, v{TT+4*t}, v{X+4*t+i}")
        if hh % 2 == 0:
            for i in range(8): e(f"v_cvt_pk_bf16_f32 v{p+i}, v{X+2*i}, v{X+2*i+1}")
        else:
            q = p - 8
            for t in (3, 2, 1): e(f"v_mov_b32 v{q+4*t}, v{q+2*t}\nv_mov_b32 v{q+4*t+1}, v{q+2*t+1}")
            for t in range(4): e(f"v_cvt_pk_bf16_f32 v{q+4*t+2}, v{X+4*t}, v{X+4*t+1}\nv_cvt_pk_bf16_f32 v{q+4*t+3}, v{X+4*t+2}, v{X+4*t+3}")
    for idx in range(NS):
        wb = wreg(idx)
        if idx >= NR:
            trread(idx)
            if idx > NR and idx - 1 + NL < NS: loadW(idx - 1 + NL)
        loadC(idx + PD)
        if idx == 3: loadA()
        cb = CFS[idx % NC] if idx < 16 else PQ + (idx - 16) * 16
        if idx == 16 and g3:
            for t in range(4): e(f"v_sub_f32 v{X+2*t}, 1.0, v{GG+t}")
            for n in range(4):
                for i in range(4):
                    d = ACC + (n * 4 + i) * 4
                    for hh in range(2): e(f"v_pk_mul_f32 {vr(d+2*hh,2)}, {vr(d+2*hh,2)}, {vr(X+2*i,2)} op_sel_hi:[1,0]")
        for n in range(4):
            for i in range(4):
                d = ACC + (n * 4 + i) * 4
                e(f"{MF} {vr(d,4)}, {vr(wb+n*4,4)}, {vr(cb+i*4,4)}, {vr(d,4) if idx else '0'}")
        if idx >= a0 and (idx - a0) % aper == 0 and (idx - a0) // aper < 4: head((idx - a0) // aper)
    e(f"v_add_u32 v12, s33, v{V_L16}")
    for t in range(16): e(f"ds_write_b128 v12, {vr(ACC+t*4,4)} offset:{t*1024}")
    e("s_lshr_b32 s41, s3, 1\ns_and_b32 s42, s3, 1")
    e("v_lshrrev_b32 v13, 5, v0\nv_lshlrev_b32 v13, 12, v13")
    e("v_and_b32 v14, 15, v0\nv_lshlrev_b32 v14, 4, v14")
    e("v_and_b32 v15, 16, v0\nv_lshlrev_b32 v15, 5, v15\nv_add3_u32 v13, v13, v14, v15")
    e("s_lshl_b32 s43, s42, 13\ns_lshl_b32 s40, s41, 10\ns_add_u32 s43, s43, s40\nv_add_u32 v13, s43, v13")
    for u in range(4):
        e(f"v_add_u32 v{24+u}, s28, v13")
        if u < 3: e(f"s_add_u32 s28, s28, {SLOT}\ns_cmp_eq_u32 s28, {NSLOT*SLOT}\ns_cselect_b32 s28, 0, s28")
    e("v_and_b32 v20, 15, v0\nv_lshlrev_b32 v20, 10, v20\nv_lshrrev_b32 v21, 4, v0\nv_lshlrev_b32 v21, 4, v21\nv_add_u32 v20, v20, v21")
    e("s_lshl_b32 s43, s30, 16\ns_lshl_b32 s40, s41, 14\ns_add_u32 s43, s43, s40\ns_lshl_b32 s40, s31, 7\ns_add_u32 s43, s43, s40\ns_lshl_b32 s40, s42, 6\ns_add_u32 s43, s43, s40")
    e("s_waitcnt lgkmcnt(0)\ns_barrier")
    for u in range(8):
        for ee in range(2):
            e(f"ds_read_b128 {vr(128+(u*2+ee)*4,4)}, v{24+u//2} offset:{(u%2)*16384+ee*256}")
    for u in range(1, 8):
        for j in range(8): e(f"v_add_f32 v{128+j}, v{128+j}, v{128+u*8+j}")
    for j in range(4): e(f"v_cvt_pk_bf16_f32 v{16+j}, v{128+2*j}, v{129+2*j}")
    e(f"buffer_store_dwordx4 v[16:19], v20, s[{S_O}:{S_O+3}], s43 offen")
    if ts: ts_end(a, 0, S_WS, 3, vtmp=176)
    e("s_endpgm")
```

```python
from common import *
import math
import k1 as K1
import k2 as K2
from k1 import f32hex, LOG2E, V_LANE16, V_A, V_W, V_P, V_RA, V_RW, V_RP, AF, WF, RING, TMP, ACC1, ACC2, V_PF, V_PFD, V_PF2
from k3b import WS_PQ3, WS_G3, WS_KVF
from k2 import (V_L16, V_RD, V_RN, V_G, QR, CB, OR, SR, PR, RG, V_NINF, LS, ONES, NSLOT, SLOT, MF, Cb, Ob, Pb, ring,
                qk_mfmas, pv_mfmas, sum_mfmas, sm_ops, xgroup)
WS_KVA = 84 * MB
FLO = 16384
WS_AP = 88 * MB
WS_DONE = 86 * MB
WS_PQ2 = 80 * MB
S_X, S_CKV, S_W1, S_W2, S_WS, S_GT, S_DBG, S_DMA = 28, 32, 36, 40, 44, 48, 16, 32
sA, sW, sP, sMA, sMW, sST, sAX = 52, 53, 54, 55, 56, 60, 25
sH, sJ, sRQ, sCH = 20, 21, 22, 23
sT, sJL, sREM, sNB = 24, 25, 26, 27
sK, sV, sRD, sWOFF, sFLAG, sDW = 36, 37, 38, 39, 48, 50
sMASK = 52
V_T = 8
V_FO = 9
V_FL = 30
V_ONE = 31; V_DO = 29; V_DV = 93
sPST = 67; sFB = 51; sPUBN = 65
SP0 = 3

def mask_ops(e):
    for r in range(4):
        m = sr(sMASK + 2 * r, 2)
        e(f"v_cndmask_b32 v{Cb(0,0)+r}, v{Cb(0,0)+r}, v{V_NINF}, {m}")
        e(f"v_cndmask_b32 v{Cb(1,1)+r}, v{Cb(1,1)+r}, v{V_NINF}, {m}")
        e(f"v_mov_b32 v{Cb(1,0)+r}, v{V_NINF}")

def gen_k12(name="k12_kernel", ts=False, **o):
    a = Asm(); e = a.e
    o['_name'] = name
    khead(a, name)
    if ts: ts_start(a)
    if o.get('diag_until'): e("s_memrealtime s[80:81]")
    e(f"s_cmp_ge_u32 s2, 256\ns_cbranch_scc1 L_{name}_end")
    e(f"s_load_dwordx4 s[4:7], s[0:1], {KA_X}")
    e(f"s_load_dwordx4 s[8:11], s[0:1], {KA_CKV}")
    e(f"s_load_dwordx4 s[12:15], s[0:1], {KA_WUK}")
    e(f"s_load_dwordx4 s[68:71], s[0:1], {KA_DBG}")
    e(f"s_load_dwordx2 s[72:73], s[0:1], {KA_GATE}")
    e(f"s_load_dwordx2 s[76:77], s[0:1], {KA_WO}\ns_load_dwordx2 s[78:79], s[0:1], {KA_WO4}")
    e(f"s_load_dwordx2 s[100:101], s[0:1], {KA_OUT}")
    code_prefetch(a, name, V_PF, V_PFD, 20 if o.get('fuse3') else 16)
    e("v_lshrrev_b32 v1, 6, v0\nv_and_b32 v0, 63, v0\nv_readfirstlane_b32 s3, v1")
    e(f"s_and_b32 s{sH}, s2, 31\ns_lshr_b32 s{sJ}, s2, 5\ns_and_b32 s{sRQ}, s3, 3\ns_lshr_b32 s{sCH}, s3, 2")
    e(f"v_lshlrev_b32 v{V_LANE16}, 4, v0")
    T = K1.V_T
    e(f"v_lshrrev_b32 v{T}, 3, v0\nv_lshlrev_b32 v{T}, 10, v{T}")
    e(f"v_lshrrev_b32 v{T+1}, 4, v0\nv_and_b32 v{T+2}, 7, v0\nv_xor_b32 v{T+1}, v{T+1}, v{T+2}\nv_lshlrev_b32 v{T+1}, 4, v{T+1}")
    e(f"v_add_u32 v{V_A}, v{T}, v{T+1}\nv_xor_b32 v{V_A+1}, 64, v{V_A}\nv_add_u32 v{V_A+1}, 7168, v{V_A+1}")
    e(f"v_add_u32 v{V_A+2}, 14336, v{V_A}\nv_add_u32 v{V_A+3}, 14336, v{V_A+1}")
    e(f"v_lshrrev_b32 v{T}, 4, v0\ns_and_b32 s24, s22, 1\ns_lshl_b32 s24, s24, 2\nv_or_b32 v{T+1}, s24, v{T}\nv_lshlrev_b32 v{T+1}, 1, v{T+1}")
    e(f"v_and_b32 v{T+2}, 15, v0\nv_xor_b32 v{T+1}, v{T+1}, v{T+2}\nv_lshlrev_b32 v{T+1}, 4, v{T+1}")
    e(f"v_lshlrev_b32 v{T}, 13, v{T}\ns_lshl_b32 s24, s22, 16\nv_add3_u32 v{V_W}, v{T}, v{T+1}, s24\nv_add_u32 v{V_W+1}, {4*8192-1024}, v{V_W}")
    e(f"s_lshl_b32 s{sA}, s{sJ}, 18\ns_lshl_b32 s24, s3, 15\ns_add_u32 s{sA}, s{sA}, s24")
    e(f"s_lshl_b32 s{sW}, s20, 8\ns_lshl_b32 s{sP}, s20, 5")
    e(f"s_lshl_b32 s{sMA}, s3, 12\ns_add_u32 s{sMA}, s{sMA}, 65536\ns_lshl_b32 s{sMW}, s3, 11")
    e("s_waitcnt lgkmcnt(0)")
    srd(a, S_CKV, 8, 2048 * 1024)
    e("s_cmp_eq_u32 s23, 0")
    e(f"s_cselect_b32 s{S_W1}, s12, s14\ns_cselect_b32 s{S_W1+1}, s13, s15\ns_and_b32 s{S_W1+1}, s{S_W1+1}, 0xffff\ns_mov_b32 s{S_W1+2}, {512*8192}\ns_mov_b32 s{S_W1+3}, 0x20000")
    e(f"s_cmp_eq_u32 s23, 0\ns_cbranch_scc0 L_{name}_ch1")
    for ch in range(2):
        if ch: a.label(f"L_{name}_ch1")
        phase1(a, f"{name}_c{ch}", ch, ts, o)
        phase2(a, f"{name}_c{ch}", ch, ts, o)
        if o.get('fuse3'): phase3(a, f"{name}_c{ch}", ch, ts, o)
    a.label(f"L_{name}_end")
    e("s_endpgm")
    lines = fixup(a.lines, [name])
    return "\n".join(lines) + "\n" + kdesc(name, 256, 102) + "\n"

def kv_dma(m0src, sv=None, mod="sc1"):
    DMR = f"s[{S_DMA}:{S_DMA+3}]"
    sv = sv or f"s{sV}"
    o = [f"s_mov_b32 m0, {m0src}"]
    o += [(f"buffer_load_dwordx4 v{V_L16}, {DMR}, s{sK} offen offset:{i*1024} {mod} lds", 'KV') for i in range(4)]
    o += [f"s_add_u32 m0, {m0src}, 16384"]
    o += [(f"buffer_load_dwordx4 v{V_L16}, {DMR}, {sv} offen offset:{i*1024} {mod} lds", 'KV') for i in range(4)]
    o += [f"s_add_u32 s{sK}, s{sK}, 16384\ns_add_u32 s{sV}, s{sV}, 16384"]
    return o

def phi(e, r0, n, tt=96):
    for i in range(0, n, 2): e(f"v_pk_mul_f32 {vr(tt+i,2)}, {vr(r0+i,2)}, s[72:73]")
    for i in range(n): e(f"v_exp_f32 v{tt+i}, v{tt+i}")
    for i in range(0, n, 2): e(f"v_pk_add_f32 {vr(r0+i,2)}, {vr(r0+i,2)}, 1.0 op_sel_hi:[1,0]")
    for i in range(n): e(f"v_med3_f32 v{r0+i}, v{tt+i}, v{r0+i}, 1.0")
    for i in range(0, n, 2): e(f"v_pk_add_f32 {vr(r0+i,2)}, {vr(r0+i,2)}, s[74:75]")

def phase1(a, nm, ch, ts, o):
    e = a.e
    vm = VmTrack()
    pf, pf1_at, pf2_at = o.get('pf', 2), o.get('pf1_at', 1), o.get('pf2_at', 8)
    st0, stn = o.get('st0', 16), o.get('stn', 2)
    PUB, POLL, CHK = o.get('pub', 29), o.get('poll', 30), o.get('chk', 31)
    apc = o.get('fuse3') and o.get('g3', 1) and o.get('apc', 1)
    stag = apc and o.get('stag', 1)
    fl = stag and o.get('fl', 1)
    GPUB = 3; DPOLL, DCHK = (o.get('dpoll', 6), o.get('dchk', 8)) if apc else (11, 15)
    APST, APUB, APOLL, ACHK = (o.get('apst', 5) if stag else 3), DCHK, o.get('apoll', 11), 13
    GATE_U = 12 if stag else 4
    nsk = [0]
    def only(rq, body):
        nsk[0] += 1
        return f"s_cmp_lg_u32 s{sRQ}, {rq}\ns_cbranch_scc1 L_{nm}_sk{nsk[0]}\n{body}\nL_{nm}_sk{nsk[0]}:"
    g3 = (o.get('fuse3') and o.get('g3', 1))
    ldmod = o.get('ldmod', 'sc1')
    WSR = f"s[{S_WS}:{S_WS+3}]"; DBR = f"s[{S_DBG}:{S_DBG+3}]"
    NH = 32
    T = K1.V_T
    def dmaW(u):
        if u >= NH: return []
        out = []
        slot = (u % 4) * 16384
        if u < 16 or ch == 0:
            rs = S_W1 if u < 16 else S_W2
            so = (u % 16) * 32 * 8192
            out.append(f"s_add_u32 m0, s{sMW}, {slot}\ns_add_u32 s64, s{sW}, {so}")
            for i in range(2):
                out.append((f"buffer_load_dwordx4 v{V_W+i}, s[{rs}:{rs+3}], s64 offen offset:{i*1024} lds", ('W', u)))
        else:
            out.append(f"s_add_u32 m0, s65, {slot}\ns_mov_b32 s64, s{sP}\ns_add_u32 s{sP}, s{sP}, s{sPST}")
            if o.get('noap'): return []
            if apc: out.append((f"buffer_load_dwordx4 v{V_LANE16}, s[{S_W2}:{S_W2+3}], s64 offen sc1 lds", ('W', u)))
            else: out.append((f"buffer_load_dwordx4 v{V_P}, s[{S_W2}:{S_W2+3}], s64 offen lds", ('W', u)))
        return out
    def dmaA(s, half):
        if s >= 16: return []
        rs, so = (S_CKV, sA) if s < 8 else (S_X, sAX)
        out = [f"s_add_u32 m0, s{sMA}, {(s % 3) * 32768}\ns_add_u32 s66, s{so}, {(s % 8) * 128}"]
        for i in (2 * half, 2 * half + 1):
            out.append((f"buffer_load_dwordx4 v{V_A+i}, s[{rs}:{rs+3}], s66 offen offset:{i*1024} lds", ('A', s)))
        return out
    def emit(x):
        if isinstance(x, tuple):
            if x[1][0] == 'S': assert any(l.startswith(f"v_cvt_pk_bf16_f32 v{ACC1+4*x[1][1]+3},") for l in a.lines[line0:]), x
            e(x[0]); vm.issue(x[1])
        else: e(x)
    line0 = len(a.lines)
    for x in dmaW(0) + dmaA(0, 0) + dmaA(0, 1): emit(x)
    for x in dmaW(1) + dmaA(1, 0) + dmaW(2) + dmaA(1, 1): emit(x)
    srd(a, S_X, 4, 2048 * 1024); srd(a, S_WS, 70, WS_SIZE); srd(a, S_DBG, 68, 256)
    if ch == 0: srd(a, S_W2, 10, 512 * 8192)
    else:
        e(f"s_cmp_eq_u32 s{sRQ}, 3\ns_cselect_b32 s{S_W2}, s72, s6\ns_cselect_b32 s{S_W2+1}, s73, s7\ns_mov_b32 s{S_W2+2}, {512*3072}\ns_cselect_b32 s{S_W2+2}, {0 if g3 else 1024}, s{S_W2+2}")
        e(f"s_cselect_b32 s{sP}, 0, s{sP}\ns_cselect_b32 s{sPST}, 64, {32*3072}\ns_cselect_b64 vcc, -1, 0\ns_and_b32 s{S_W2+1}, s{S_W2+1}, 0xffff\ns_mov_b32 s{S_W2+3}, 0x20000")
        e("s_lshl_b32 s65, s22, 10\ns_add_u32 s65, s65, 8192")
        e(f"v_lshrrev_b32 v{T}, 1, v0\nv_lshrrev_b32 v{T+1}, 2, v0\nv_and_b32 v{T+1}, 4, v{T+1}\nv_xor_b32 v{T}, v{T}, v{T+1}\nv_mul_u32_u24 v{T}, 3072, v{T}")
        e(f"v_and_b32 v{T+1}, 1, v0\nv_lshlrev_b32 v{T+1}, 4, v{T+1}\ns_lshl_b32 s24, s22, 10\nv_add3_u32 v{V_P}, v{T}, v{T+1}, s24")
        e(f"v_and_b32 v{T}, 48, v0\nv_cndmask_b32 v{V_P}, v{V_P}, v{T}, vcc")
        if apc:
            e(f"s_mul_i32 s74, s{sJ}, {64*3072}\ns_add_u32 s74, s74, s{sP}\ns_add_u32 s75, s74, {32*3072}")
            if fl:
                e(f"v_bfe_u32 v{T}, v0, 1, 4\nv_lshrrev_b32 v{T+1}, 1, v{T}\nv_and_b32 v{T+1}, 4, v{T+1}\nv_xor_b32 v{T}, v{T}, v{T+1}\nv_mul_u32_u24 v{T}, 3072, v{T}")
                e(f"v_and_b32 v{T+1}, 1, v0\nv_lshlrev_b32 v{T+1}, 4, v{T+1}\nv_and_b32 v{T+2}, 32, v0\nv_add3_u32 v{T}, v{T}, v{T+1}, v{T+2}\ns_lshl_b32 s24, s{sRQ}, 10\nv_add_u32 v{V_P}, s24, v{T}")
                e(f"s_and_b32 s99, s{sH}, 3\ns_lshl_b32 s99, s99, 3\ns_add_u32 s99, s99, s{sJ}\ns_mul_i32 s74, s99, {16*3072}\ns_lshr_b32 s24, s{sH}, 2\ns_lshl_b32 s24, s24, 7\ns_add_u32 s74, s74, s24\ns_add_u32 s75, s74, 64")
            gath = f"buffer_load_dwordx4 v[240:243], v{V_P}, s[{S_W2}:{S_W2+3}], s74 offen\nbuffer_load_dwordx4 v[244:247], v{V_P}, s[{S_W2}:{S_W2+3}], s75 offen"
            if not stag: e(gath)
    e(f"s_sub_u32 s26, 15, s{sJ}")
    e(f"s_lshl_b32 s{sAX}, s{26 if ch == 0 else sJ}, 17\ns_lshl_b32 s24, s{sRQ}, 15\ns_add_u32 s{sAX}, s{sAX}, s24")
    GX, GW = 224, 228
    if g3:
        srd(a, S_GT, 72, 1024)
        e(f"s_lshl_b32 s58, s{sH}, 3\ns_add_u32 s58, s58, s3\ns_cmp_lt_u32 s58, 128\ns_cselect_b32 s59, s26, s{sJ}\ns_and_b32 s58, s58, 127\ns_lshl_b32 s59, s59, 7\ns_add_u32 s58, s58, s59\ns_lshl_b32 s59, s58, 10")
        gxl = f"buffer_load_dwordx4 {vr(GX,4)}, v{V_LANE16}, s[{S_X}:{S_X+3}], s59 offen"
        if not stag: emit((gxl, ('L', 0)))
        emit((f"buffer_load_dwordx4 {vr(GW,4)}, v{V_LANE16}, s[{S_GT}:{S_GT+3}], 0 offen", ('L', 0)))
    e(f"v_and_b32 v{T}, 15, v0\nv_lshrrev_b32 v{T+1}, 1, v{T}\nv_lshrrev_b32 v{T+2}, 4, v0\nv_xor_b32 v{T+1}, v{T+1}, v{T+2}\nv_lshlrev_b32 v{T+1}, 4, v{T+1}")
    e(f"v_lshlrev_b32 v{T}, 7, v{T}\ns_lshl_b32 s24, s22, 13\ns_add_u32 s24, s24, 65536\nv_add3_u32 v{V_RA}, v{T}, v{T+1}, s24")
    e(f"v_xor_b32 v{V_RA+1}, 64, v{V_RA}\nv_add_u32 v{V_RA+2}, 0x10000, v{V_RA}\nv_add_u32 v{V_RA+3}, 0x10000, v{V_RA+1}")
    e(f"v_lshrrev_b32 v{T}, 4, v0\nv_bfe_u32 v{T+1}, v0, 2, 2\nv_lshl_add_u32 v{T+2}, v{T}, 3, v{T+1}\nv_lshlrev_b32 v{T+2}, 8, v{T+2}")
    e(f"v_and_b32 v{T+3}, 1, v{T}\nv_lshl_add_u32 v{T+3}, v{T+3}, 2, v{T+1}\nv_lshlrev_b32 v{T+3}, 5, v{T+3}")
    e(f"v_and_b32 v{T+4}, 3, v0\nv_lshlrev_b32 v{T+4}, 3, v{T+4}\nv_add3_u32 v{V_RW}, v{T+2}, v{T+3}, v{T+4}")
    for n in range(1, 8): e(f"v_xor_b32 v{V_RW+n}, {32*n}, v{V_RW}")
    e(f"v_lshlrev_b32 v{T+2}, 8, v{T}\nv_add3_u32 v{V_RP}, v{T+2}, v{T+3}, v{T+4}\nv_xor_b32 v{V_RP+1}, 128, v{V_RP}")
    e(f"s_lshl_b32 s57, s20, 19\ns_lshl_b32 s24, s21, 2\ns_add_u32 s24, s24, s22\ns_lshl_b32 s24, s24, 14\ns_add_u32 s57, s57, s24")
    base = WS_VF if ch else WS_KF
    for i in range(4): e(f"s_add_u32 s{sST+i}, s57, {base + i*4096}")
    e(f"s_lshl_b32 s{sFB}, s{sH}, 15\ns_add_u32 s{sFB}, s{sFB}, {WS_KVA + FLO}")
    e(f"v_mov_b32 v{V_ONE}, 1\ns_lshl_b32 s24, s{sH}, 2\nv_mov_b32 v{V_DO}, s24")
    if o.get('fuse3'): e(f"s_movk_i32 s24, 128\nv_writelane_b32 v{V_DO}, s24, 1")
    if fl: e(f"v_min_u32 v{V_DO}, 32, v0\nv_lshlrev_b32 v{V_DO}, 2, v{V_DO}")
    if ch == 0:
        t = TMP
        e(f"v_mov_b32 v{t}, 0")
        e(f"s_lshl_b32 s27, s{sJ}, 2\ns_add_u32 s27, s27, s{sRQ}\ns_cmp_eq_u32 s27, 0\ns_cselect_b32 s24, s{sFB}, {WS_SIZE}\nv_lshl_add_u32 v{T}, v0, 2, s24")
        emit((f"buffer_store_dword v{t}, v{T}, {WSR}, 0 offen sc1", ('G', 2)))
        if o.get('fuse3'):
            for i in range(1, 4): e(f"v_mov_b32 v{t+i}, 0")
            e(f"s_mul_i32 s24, s{sRQ}, 2048\ns_add_u32 s24, s24, {WS_DONE}\ns_cmp_eq_u32 s2, 0\ns_cselect_b32 s24, s24, {WS_SIZE}\nv_add_u32 v{T+1}, s24, v{V_LANE16}")
            for i in range(2): emit((f"buffer_store_dwordx4 {vr(t,4)}, v{T+1}, {WSR}, 0 offen offset:{i*1024} sc1", ('G', 2)))
        e(f"s_lshl_b32 s24, s{sH}, 2\ns_cmp_eq_u32 s27, 0\ns_cselect_b32 s24, s24, 0x1000\nv_mov_b32 v{V_FO}, s24")
        if o.get('fuse3'): e(f"s_add_u32 s24, s2, s3\ns_cmp_eq_u32 s24, 0\ns_movk_i32 s24, 0x1000\ns_cselect_b32 s24, 128, s24\nv_writelane_b32 v{V_FO}, s24, 1")
        e(f"s_lshl_b32 s24, s{sJ}, 2\ns_add_u32 s24, s24, s{sFB}\ns_cmp_eq_u32 s{sRQ}, 0\ns_cselect_b32 s24, s24, {WS_SIZE}\nv_mov_b32 v{V_FL}, s24")
    else:
        e(f"v_lshlrev_b32 v{V_FO}, 2, v0")
    def pf_batch(b):
        ptr, size, two = {(0, 0): (10, 0x400000, 1), (0, 1): (10, 0x400000, 1), (0, 2): (4, 0x200000, 0), (0, 3): (6, 0x180000, 0),
                          (1, 0): (78, 0x400000, 1), (1, 1): (78, 0x400000, 1), (1, 2): (76, 0x80000, 0), (1, 3): (76, 0, 0)}[(ch, b)]
        if size == 0: return []
        oo = [f"s_mov_b32 s72, s{ptr}\ns_and_b32 s73, s{ptr+1}, 0xffff\ns_mov_b32 s75, 0x20000\ns_cmp_eq_u32 s22, {b}\ns_cselect_b32 s74, {size}, 0\n"
              + (f"s_lshl_b32 s68, s2, 14\ns_add_u32 s68, s68, {(b % 2) * 8192}" if two else "s_lshl_b32 s68, s2, 13")
              + f"\nv_lshlrev_b32 v{V_PF}, 7, v0\nv_add_u32 v{V_PF}, s68, v{V_PF}"]
        oo.append((f"buffer_load_dword v{V_PFD}, v{V_PF}, s[72:75], 0 offen", ('PF', b)))
        return oo
    def pf_any(tbl):
        for rq in range(4):
            ptr, size, sh, add = tbl[rq]
            if rq == 0: e(f"s_mov_b32 s72, s{ptr}\ns_mov_b32 s73, s{ptr+1}\ns_mov_b32 s74, {size}\ns_lshl_b32 s68, s2, {sh}\ns_add_u32 s68, s68, {add}")
            else: e(f"s_lshl_b32 s69, s2, {sh}\ns_add_u32 s69, s69, {add}\ns_cmp_eq_u32 s{sRQ}, {rq}\ns_cselect_b32 s72, s{ptr}, s72\ns_cselect_b32 s73, s{ptr+1}, s73\ns_cselect_b32 s74, {size}, s74\ns_cselect_b32 s68, s69, s68")
        e(f"s_and_b32 s73, s73, 0xffff\ns_mov_b32 s75, 0x20000\nv_lshlrev_b32 v{V_PF}, 7, v0\nv_add_u32 v{V_PF}, s68, v{V_PF}")
        emit((f"buffer_load_dword v{V_PFD}, v{V_PF}, s[72:75], 0 offen", ('PF', 0)))
    o['_pf_any'] = pf_any
    if o.get('pfmode', 3) == 2 or (o.get('pfmode', 3) == 3 and ch == 1): pf = 0
    if o.get('pfmode', 3) == 1:
        pf = 0
        if ch == 0: pf_any({0: (10, 0x400000, 14, 0), 1: (10, 0x400000, 14, 8192), 2: (4, 0x200000, 13, 0), 3: (6, 0x180000, 13, 0)})
    def acc1(mt, nt):
        if ch == 0: return ACC1 + (((nt // 2) * 4 + mt) * 2 + nt % 2) * 4
        return ACC1 + ((nt * 2 + mt // 2) * 2 + mt % 2) * 4
    if ch == 0:
        tiles2 = [('Q', 4), ('Q', 5), ('Q', 0), ('Q', 1), ('Q', 2), ('Q', 3)]
        def acc2(kind, idx, mt): return ACC2 + (((idx // 2) * 4 + mt) * 2 + idx % 2) * 4
    else:
        tiles2 = [('Q', 6), ('Q', 7)] + ([] if g3 else [('G', 3)]) + [('P', 0), ('P', 1), ('P', 2)]
        def acc2(kind, idx, mt):
            if kind == 'Q': return ACC2 + 64 + (mt * 2 + idx % 2) * 4
            return ACC2 + (idx * 4 + mt) * 4
    frags = []
    for u in range(NH):
        slot = (u % 4) * 16384
        ab = AF + (u % 2) * 16
        first = (u % 16 == 0)
        tl = [('W', n) for n in range(8)] if u < 16 else tiles2
        for kind, idx in tl:
            if kind == 'W':
                rd = (lambda d, idx=idx, slot=slot: [f"ds_read_b64_tr_b16 {vr(d+2*hf,2)}, v{V_RW+idx} offset:{slot+ch*8192+hf*1024}" for hf in range(2)])
                wfirst = (ch == 0); accf = (lambda mt, idx=idx: acc1(mt, idx))
            elif kind == 'Q':
                rd = (lambda d, idx=idx, slot=slot: [f"ds_read_b64_tr_b16 {vr(d+2*hf,2)}, v{V_RW+idx} offset:{slot+hf*1024}" for hf in range(2)])
                wfirst = True; accf = (lambda mt, idx=idx: acc2('Q', idx, mt))
            elif kind == 'G':
                rd = (lambda d, idx=idx, slot=slot: [f"ds_read_b128 {vr(d,4)}, v{V_LANE16} offset:{slot+8192+3*1024}", ""])
                wfirst = True; accf = (lambda mt, idx=idx: acc2('G', idx, mt))
            else:
                rd = (lambda d, idx=idx, slot=slot: [f"ds_read_b64_tr_b16 {vr(d+2*hf,2)}, v{V_RP+hf} offset:{slot+8192+idx*1024}" for hf in range(2)])
                wfirst = (idx == 0); accf = (lambda mt, idx=idx: acc2('P', idx, mt))
            def mf(w, mt, accf=accf, wfirst=wfirst, ab=ab, first=first):
                d = vr(accf(mt), 4); A = vr(ab + mt * 4, 4); W = vr(w, 4)
                x, y = (W, A) if wfirst else (A, W)
                return f"{MF} {d}, {x}, {y}, {'0' if first else d}"
            frags.append((u, rd, mf))
    def act_reads(u):
        if u >= NH: return []
        s = u // 2; ks = u % 2; sl = s % 3
        ab = AF + (u % 2) * 16
        reg = V_RA + ks + (2 if sl == 2 else 0)
        off = 32768 if sl == 1 else 0
        return [f"ds_read_b128 {vr(ab+mt*4,4)}, v{reg} offset:{off+mt*2048}" for mt in range(4)]
    def barrier(u):
        pred = lambda tg: tg == ('W', u) or tg == ('A', u // 2) or (u == PUB and tg[0] in ('S', 'G')) or (u == GPUB and tg[0] == 'G') or (u == APUB and tg[0] == 'AP')
        if u < NH: e(f"s_waitcnt vmcnt({vm.n_after(pred)}) lgkmcnt(0)\ns_barrier")
        else: e("s_waitcnt lgkmcnt(0)\ns_barrier")
        if o.get('trace'): stamp(u)
    def stamp(i):
        e(f"s_memrealtime s[84:85]\ns_waitcnt lgkmcnt(0)\nv_writelane_b32 v{V_PF2}, s84, {i}")
    def store_kv(j):
        fi = ((j % 4) * 4 + j // 4) if ch == 0 else ((j % 2) * 8 + j // 2)
        return (f"buffer_store_dwordx4 {vr(ACC1+4*j,4)}, v{V_LANE16}, {WSR}, s{sST+fi//4} offen offset:{(fi%4)*1024} {o.get('kvst', 'sc1')}", ('S', j))
    poll = (f"buffer_load_dword v{V_FL}, v{V_FO}, {WSR}, s{sFB} offen sc1", ('F', 0))
    dpoll = (f"buffer_load_dword v{V_DV}, v{V_DO}, {DBR}, 0 offen sc1", ('F', 2))
    def spin(tag, chk, ld):
        e(chk + f"\ns_cbranch_scc1 L_{nm}_{tag}ok")
        e("s_mov_b32 s66, 0x20000")
        a.label(f"L_{nm}_{tag}spin")
        e(f"s_sleep {o.get('sleep', 8)}")
        e(ld)
        e(chk + f"\ns_cbranch_scc1 L_{nm}_{tag}ok")
        e(f"s_sub_u32 s66, s66, 1\ns_cmp_lg_u32 s66, 0\ns_cbranch_scc1 L_{nm}_{tag}spin")
        a.label(f"L_{nm}_{tag}ok")
    def check_clear():
        spin("c", f"v_cmp_ne_u32 vcc, 0, v{V_DV}\ns_cmp_eq_u64 vcc, -1", dpoll[0])
    def check_flags():
        spin("f", f"v_cmp_eq_u32 vcc, 1, v{V_FL}\ns_and_b32 s64, vcc_lo, 0xff\ns_cmp_eq_u32 s64, 0xff", poll[0])
    NF = len(frags)
    D = RING - 1
    def plan(u):
        G = sum(1 for f in frags if f[0] == u) if u else sum(1 for f in frags if f[0] == 0) - D + 1
        if u == NH: G = D - 1
        nsl = 4 * G
        ops = dmaW(u + 3) + dmaA(u // 2 + 2, u % 2)
        for j in range(16):
            if st0 + (j * o.get('stspan', 11)) // 16 == u and not o.get('nost'): ops.append(store_kv(j))
        npre = o.get('pre', 0)
        for j in range(npre):
            if 1 + (j * o.get('prespan', 12)) // npre == u:
                fi = j * (16 // npre)
                if o.get('preld'): ops.append((f"buffer_load_dwordx4 {vr(224,4)}, v{V_LANE16}, {WSR}, s{sST+fi//4} offen offset:{(fi%4)*1024} sc1", ('Z', j)))
                else: ops.append((f"buffer_store_dwordx4 {vr(TMP,4)}, v{V_LANE16}, {WSR}, s{sST+fi//4} offen offset:{(fi%4)*1024} sc1", ('Z', j)))
        side = []
        if stag:
            if ch == 1 and u < 3 and 'g' not in o.get('pro', ''): side.append(only(u, gath))
            gx0 = o.get('gx0', (0, 0))[ch]
            if gx0 <= u < gx0 + 4 and 'x' not in o.get('pro', ''): side.append(only(u - gx0, gxl))
            q0, qs = o.get('q0', 0), o.get('qs', 1)
            if ch == 0 and u >= q0 and (u - q0) % qs == 0 and (u - q0) // qs < 4 and 'q' not in o.get('pro', ''):
                r = (u - q0) // qs
                side.append(only(r, f"s_lshl_b32 s68, s2, 14\ns_add_u32 s68, s68, {r*4096}\nv_lshlrev_b32 v{V_PF}, 6, v0\nbuffer_load_dword v{V_PFD}, v{V_PF}, s[{S_W2}:{S_W2+3}], s68 offen"))
        w0 = o.get('wo0', None)
        if w0 is not None and ch == 1 and w0 <= u < w0 + 4:
            r = u - w0
            body = (f"s_mov_b32 s8, s78\ns_and_b32 s9, s79, 0xffff\ns_mov_b32 s10, 0x400000\ns_mov_b32 s11, 0x20000\ns_lshl_b32 s68, s2, 14\ns_add_u32 s68, s68, {r*4096}\nv_lshlrev_b32 v{V_PF}, 6, v0\n"
                    f"buffer_load_dword v{V_PFD}, v{V_PF}, s[8:11], s68 offen")
            if r == 3: body += (f"\ns_mov_b32 s8, s76\ns_and_b32 s9, s77, 0xffff\ns_mov_b32 s10, 0x80000\ns_lshl_b32 s68, s2, 11\nv_lshlrev_b32 v{V_PF}, 5, v0\nbuffer_load_dword v{V_PFD}, v{V_PF}, s[8:11], s68 offen")
            side.append(only(3 - r, body))
        RL = o.get('rpf', 8)
        if RL and u + RL < 16:
            body = (f"v_bfe_u32 v{V_PF}, v0, 1, 2\nv_lshlrev_b32 v{V_PF}, 13, v{V_PF}\nv_and_b32 v235, 1, v0\nv_lshl_add_u32 v{V_PF}, v235, 7, v{V_PF}\n"
                    f"s_lshl_b32 s68, s{sJ}, 15\ns_add_u32 s68, s68, s{sW}\ns_add_u32 s68, s68, {(u+RL)*32*8192}\nbuffer_load_dword v{V_PFD}, v{V_PF}, s[{S_W1}:{S_W1+3}], s68 offen")
            if ch == 0 and (u + RL) % 2 == 0:
                body += (f"\nv_and_b32 v{V_PF}, 7, v0\nv_lshlrev_b32 v{V_PF}, 10, v{V_PF}\ns_lshl_b32 s68, s{sJ}, 18\ns_lshl_b32 s69, s{sH}, 13\ns_add_u32 s68, s68, s69\ns_add_u32 s68, s68, {((u+RL)//2)*128}\n"
                         f"buffer_load_dword v{V_PFD}, v{V_PF}, s[{S_CKV}:{S_CKV+3}], s68 offen")
            side.append(only((u + 2) % 4, body))
        if ch == 0 and u in o.get('cpf', (12, 28)):
            kn = o['_name']
            side.append(only(0, f"v_and_b32 v{V_PF}, 31, v0\nv_min_u32 v{V_PF}, 19, v{V_PF}\nv_lshl_add_u32 v{V_PF}, v{V_PF}, 7, s98\nv_min_u32 v{V_PF}, L_code_end-L_pc_{kn}-4, v{V_PF}\nv_mov_b32 v{V_PF+1}, s97\n"
                             f"v_add_co_u32 v{V_PF}, vcc, s96, v{V_PF}\nv_addc_co_u32 v{V_PF+1}, vcc, 0, v{V_PF+1}, vcc\nglobal_load_dword v{V_PFD}, v[{V_PF}:{V_PF+1}], off"))
        if pf and not stag:
            u0 = pf1_at if ch == 0 else pf2_at
            order = [b for b in (2, 3, 0, 1) if not (ch == 0 and ((b == 2 and g3 and o.get('nopfx', 1)) or (b == 3 and apc)))]
            if u >= u0 and (u - u0) % pf == 0 and (u - u0) // pf < len(order): ops += pf_batch(order[(u - u0) // pf])
        if u == GPUB and ch == 0: ops = [(f"buffer_store_dword v{V_ONE}, v{V_FO}, {DBR}, 0 offen sc1", ('F', 1))] + ops
        if u == PUB and ch == 0: ops = [(f"buffer_store_dword v{V_ONE}, v{V_FL}, {WSR}, 0 offen sc1", ('F', 1))] + ops
        if u == DPOLL: ops = [dpoll] + ops
        if apc and ch == 1 and u == APST:
            ops = ops + [f"s_mov_b32 s{S_W2}, s{S_WS}\ns_mov_b32 s{S_W2+1}, s{S_WS+1}\ns_cmp_eq_u32 s{sRQ}, 3\ns_cselect_b32 s{S_W2+2}, 0, {WS_SIZE}\ns_mov_b32 s{S_W2+3}, 0x20000\n"
                         f"s_mul_i32 s{sP}, s{sH}, {16*3072}\ns_lshl_b32 s24, s{sRQ}, 10\ns_add_u32 s{sP}, s{sP}, s24\ns_add_u32 s{sP}, s{sP}, {WS_AP}\ns_movk_i32 s{sPST}, 3072\ns_mul_i32 s24, s{sJ}, 6144\ns_add_u32 s24, s24, s{sP}"
                         ] + ([
                         f"v_lshrrev_b32 v{V_P}, 5, v0\nv_mul_u32_u24 v{V_P}, {16*3072}, v{V_P}\nv_and_b32 v235, 31, v0\nv_lshl_add_u32 v{V_P}, v235, 4, v{V_P}\n"
                         f"s_andn2_b32 s74, s{sH}, 3\ns_mul_i32 s74, s74, {16*3072}\ns_lshr_b32 s75, s99, 1\ns_mul_i32 s75, s75, 3072\ns_add_u32 s74, s74, s75\ns_and_b32 s75, s99, 1\ns_lshl_b32 s75, s75, 9\ns_add_u32 s74, s74, s75\n"
                         f"s_lshl_b32 s75, s{sRQ}, 10\ns_add_u32 s74, s74, s75\ns_add_u32 s74, s74, {WS_AP}\ns_add_u32 s75, s74, {2*16*3072}",
                         (f"buffer_store_dwordx4 v[240:243], v{V_P}, s[{S_W2}:{S_W2+3}], s74 offen sc1", ('AP', 0)),
                         (f"buffer_store_dwordx4 v[244:247], v{V_P}, s[{S_W2}:{S_W2+3}], s75 offen sc1", ('AP', 0))] if fl else [
                         (f"buffer_store_dwordx4 v[240:243], v{V_LANE16}, s[{S_W2}:{S_W2+3}], s24 offen sc1", ('AP', 0)),
                         (f"buffer_store_dwordx4 v[244:247], v{V_LANE16}, s[{S_W2}:{S_W2+3}], s24 offen offset:3072 sc1", ('AP', 0))])
        if fl and ch == 0 and u == APUB:
            ops = [f"s_andn2_b32 s24, s{sH}, 3\ns_lshl_b32 s24, s24, 15\ns_and_b32 s27, s{sH}, 3\ns_lshl_b32 s27, s27, 3\ns_add_u32 s27, s27, s{sJ}\ns_lshl_b32 s27, s27, 2\ns_add_u32 s24, s24, s27\n"
                   f"s_add_u32 s24, s24, {WS_KVA + FLO + 64}\ns_cmp_eq_u32 s{sRQ}, 0\ns_cselect_b32 s24, s24, {WS_SIZE}\nv_min_u32 v{V_FO}, 3, v0\nv_lshlrev_b32 v{V_FO}, 15, v{V_FO}\nv_add_u32 v{V_FO}, s24, v{V_FO}",
                   (f"buffer_store_dword v{V_ONE}, v{V_FO}, {WSR}, 0 offen sc1", ('F', 1))] + ops
        elif apc and ch == 0 and u == APUB: ops = [(f"buffer_store_dword v{V_ONE}, v{V_FL}, {WSR}, 0 offen offset:64 sc1", ('F', 1))] + ops
        if apc and ch == 1 and u == APOLL: ops = [poll] + ops
        if ch == 1:
            if u == 16:
                ops = ops + [f"s_mov_b32 s{S_DMA}, s{S_WS}\ns_mov_b32 s{S_DMA+1}, s{S_WS+1}\ns_mov_b32 s{S_DMA+2}, {WS_SIZE}\ns_mov_b32 s{S_DMA+3}, 0x20000\n"
                             f"s_lshl_b32 s{sWOFF}, s{sRQ}, 12\ns_lshl_b32 s7, s{sH}, 19\ns_add_u32 s{sK}, s7, s{sWOFF}\ns_add_u32 s{sV}, s{sK}, {WS_VF - 8192}\n"
                             f"s_add_u32 s13, s{sK}, {WS_KF}\ns_cmp_lt_u32 s{sRQ}, 2\ns_cselect_b32 s13, s13, s{sV}\ns_add_u32 s{sK}, s{sK}, {WS_KF + 8192}\n"
                             f"s_add_u32 s14, s{sWOFF}, {SP0*SLOT}\ns_add_u32 s15, s{sWOFF}, {((SP0+1)%NSLOT)*SLOT}"]
            if u == POLL: ops = ops + [poll]
            if u == CHK: ops = ops + [(x[0], ('KV', 0)) if isinstance(x, tuple) else x for x in kv_dma("s14", "s13", ldmod)]
            if u == min(CHK + o.get('kv1', 0), NH): ops = ops + [(x[0], ('KV', 1)) if isinstance(x, tuple) else x for x in kv_dma("s15", None, ldmod)]
        units = []; cur = []
        for x in ops:
            cur.append(x)
            if isinstance(x, tuple): units.append(cur); cur = []
        sch = {}
        if u == GATE_U and g3:
            t = 232
            gl = [f"v_mov_b32 v{t}, 0"]
            for j in range(4):
                gl += [f"v_lshlrev_b32 v{t+1}, 16, v{GX+j}\nv_lshlrev_b32 v{t+2}, 16, v{GW+j}", f"v_fmac_f32 v{t}, v{t+1}, v{t+2}\nv_and_b32 v{t+1}, 0xffff0000, v{GX+j}",
                       f"v_and_b32 v{t+2}, 0xffff0000, v{GW+j}\nv_fmac_f32 v{t}, v{t+1}, v{t+2}"]
            gl += [f"v_add_f32_dpp v{t}, v{t}, v{t} {sh} row_mask:0xf bank_mask:0xf bound_ctrl:0" for sh in ("row_shr:1", "row_shr:2", "row_shr:4", "row_shr:8")]
            gl += [f"v_add_f32_dpp v{t}, v{t}, v{t} row_bcast:15 row_mask:0xa bank_mask:0xf", f"v_add_f32_dpp v{t}, v{t}, v{t} row_bcast:31 row_mask:0xc bank_mask:0xf"]
            gl += [f"v_mul_f32 v{t}, {f32hex(-LOG2E)}, v{t}", f"v_exp_f32 v{t}, v{t}", f"v_add_f32 v{t}, 1.0, v{t}", f"v_rcp_f32 v{t}, v{t}",
                   f"s_lshl_b32 s58, s58, 2\ns_add_u32 s58, s58, {WS_G}", f"v_readlane_b32 s59, v{t}, 63", f"v_mov_b32 v{t+2}, 0", f"v_mov_b32 v{t+1}, s59",
                   (f"buffer_store_dword v{t+1}, v{t+2}, {WSR}, s58 offen sc1", ('L', 1))]
            for i, x in enumerate(gl): sch.setdefault(i, []).append(x)
        if u == 30:
            su = [f"s_lshl_b32 s4, s{sJ}, 1\ns_sub_u32 s{sJL}, 32, s4", f"s_lshl_b32 s4, s{sJ}, 2",
                  (f"s_add_u32 s5, s4, 3\ns_sub_u32 s{sT}, s5, s{sRQ}" if ch else f"s_sub_u32 s6, 60, s4\ns_add_u32 s{sT}, s6, s{sRQ}"),
                  f"s_lshl_b32 s7, s{sH}, 19\ns_mov_b32 s{sRD}, {SP0*SLOT}", f"s_mov_b32 s{sNB}, 1\ns_mov_b32 s{sREM}, s{sT}", f"s_mov_b32 s{sFLAG}, 0\ns_lshl_b32 s12, s{sRQ}, 13",
                  (f"s_sub_u32 s12, {32768+3*8192}, s12" if ch else "s_nop 0"),
                  f"v_lshrrev_b32 v{T+3}, 4, v0\nv_lshlrev_b32 v{T+3}, 2, v{T+3}", f"v_and_b32 v{T+4}, 15, v0"]
            for r in range(4): su += [f"v_cmp_gt_u32 {sr(sMASK+2*r,2)}, v{T+3}, v{T+4}", f"v_add_u32 v{T+3}, 1, v{T+3}"]
            su += [f"s_mov_b32 s70, {f32hex(LOG2E / math.sqrt(128.0))}\ns_mov_b32 s71, s70", f"s_lshl_b32 s64, s{sRQ}, 14\ns_add_u32 s64, s64, 32768", f"v_add_u32 v{T}, s64, v{V_LANE16}"]
            if ch: su += [f"s_mov_b32 s72, {f32hex(LOG2E)}\ns_mov_b32 s73, s72",
                          f"s_lshl_b32 s74, s{sJ}, 1\ns_sub_u32 s75, 30, s74\ns_sub_u32 s74, s74, 2\ns_cmp_lt_u32 s{sRQ}, 2\ns_cselect_b32 s74, s75, s74\ns_add_u32 s74, s74, s{sRQ}",
                          f"s_lshl_b32 s49, s74, 16\ns_lshl_b32 s75, s{sH}, 11\ns_add_u32 s49, s49, s75\ns_add_u32 s49, s49, {WS_PQ3}",
                          f"s_lshl_b32 s75, s74, 10\ns_add_u32 s75, s75, {WS_G3}\ns_cmp_eq_u32 s{sH}, 0\ns_cselect_b32 s75, s75, {WS_SIZE}\nv_add_u32 v{T+2}, s75, v{V_LANE16}",
                          f"s_mov_b32 s74, {f32hex(1e-6)}\ns_mov_b32 s75, s74"]
            for i, x in enumerate(su): sch.setdefault(min(i, nsl - 1), []).append(x)
        n = len(units)
        for i, un in enumerate(units):
            p = min(int((i + (0.25 if ch == 0 else 0.75)) * nsl / n), nsl - 1)
            for x in un[:-1]: sch.setdefault(max(p - 1, 0), []).append(x)
            sch.setdefault(p, []).append(un[-1])
        if cur: sch.setdefault(nsl - 1, []).extend(cur)
        for i, x in enumerate(side): sch.setdefault(max(nsl - 2 - 4 * i, 0), []).append(x)
        if u:
            for i, x in enumerate(act_reads(u)): sch.setdefault(2 + 3 * i, []).append(x)
        return sch
    pro = o.get('pro', '')
    if 'g' in pro and ch == 1: e(gath)
    if 'x' in pro: e(gxl)
    if 'q' in pro and ch == 0:
        e(f"s_lshl_b32 s68, s2, 14\ns_lshl_b32 s69, s{sRQ}, 12\ns_add_u32 s68, s68, s69\nv_lshlrev_b32 v{V_PF}, 6, v0\nbuffer_load_dword v{V_PFD}, v{V_PF}, s[{S_W2}:{S_W2+3}], s68 offen")
    for _ in range((2 if 'g' in pro and ch == 1 else 0) + ('x' in pro) + ('q' in pro and ch == 0)): vm.issue(('L', 0))
    barrier(0)
    for x in act_reads(0): e(x)
    for q in range(D):
        for x in frags[q][1](WF + (q % RING) * 4): e(x)
    published = 0
    sch = plan(0); slot = 0
    packs = [f"v_cvt_pk_bf16_f32 v{ACC1+4*j+i}, v{ACC1+8*j+2*i}, v{ACC1+8*j+2*i+1}" for j in range(16) for i in range(4)]
    npacked = 0
    for q in range(NF):
        u, rd, mf = frags[q]
        w = WF + (q % RING) * 4
        nxt = q + D
        reads = []
        need_bar = False
        if nxt < NF:
            if frags[nxt][0] > published: need_bar = True
            reads = frags[nxt][1](WF + (nxt % RING) * 4)
        elif nxt == NF: need_bar = True
        avail = 0
        if u == 15:
            nt = q - 15 * 8
            avail = max((16 * ((nt - 1) // 2) if ch == 0 else 8 * (nt - 1)) if nt >= 1 else 0, 0)
        elif u >= 16: avail = 64
        for mt in range(4):
            if u == 16 and q - 128 >= 2:
                while npacked < 64: e(packs[npacked]); npacked += 1
            e(mf(w, mt))
            if not need_bar and reads and mt in (0, 1): e(reads[mt])
            for x in sch.pop(slot, []): emit(x)
            slot += 1
            k = 0
            while npacked < avail and k < 3: e(packs[npacked]); npacked += 1; k += 1
        if need_bar:
            for sl in sorted(sch):
                for x in sch[sl]: emit(x)
            published += 1
            barrier(published)
            for x in reads: e(x)
            if published == DCHK: check_clear()
            if apc and ch == 1 and published == ACHK:
                if fl: spin("a", f"v_cmp_eq_u32 vcc, 1, v{V_FL}\ns_lshr_b64 vcc, vcc, 16\ns_cmp_eq_u32 vcc_lo, -1", poll[0])
                else: spin("a", f"v_cmp_eq_u32 vcc, 1, v{V_FL}\ns_and_b32 s64, vcc_lo, 0xff0000\ns_cmp_eq_u32 s64, 0xff0000", poll[0])
            if ch == 1 and published == CHK:
                check_flags()
                if o.get('trace'): stamp(40)
            sch = plan(published); slot = 0
    for sl in sorted(sch):
        for x in sch[sl]: emit(x)
    def q_out(src, mt, t):
        for i in range(4): e(f"v_pk_mul_f32 {vr(src+2*i,2)}, {vr(src+2*i,2)}, s[70:71]")
        for i in range(4): e(f"v_cvt_pk_bf16_f32 v{src+i}, v{src+2*i}, v{src+2*i+1}")
        e(f"ds_write_b128 v{T}, {vr(src,4)} offset:{mt*4096+t*1024}")
    if ch == 0:
        for t in (2, 0, 1):
            for mt in range(4): q_out(acc2('Q', 2 * t, mt), mt, t)
        e("s_waitcnt lgkmcnt(0)\ns_barrier")
    else:
        for mt in range(4): q_out(acc2('Q', 6, mt), mt, 3)
        if not g3:
            GQ = acc2('G', 3, 0)
            for mt in range(4): e(f"v_mul_f32 v{GQ+mt}, {f32hex(-LOG2E)}, v{GQ+4*mt}")
            for mt in range(4): e(f"v_exp_f32 v{GQ+mt}, v{GQ+mt}")
            for mt in range(4): e(f"v_add_f32 v{GQ+mt}, 1.0, v{GQ+mt}")
            for mt in range(4): e(f"v_rcp_f32 v{GQ+mt}, v{GQ+mt}")
            e(f"v_and_b32 v{T+1}, 15, v0\ns_lshl_b32 s64, s{sRQ}, 8\nv_lshl_add_u32 v{T+1}, v{T+1}, 2, s64")
            for mt in range(4): e(f"ds_write_b32 v{T+1}, v{GQ+mt} offset:{mt*64}")
        qa, ka, va = acc2('P', 0, 0), acc2('P', 1, 0), acc2('P', 2, 0)
        if not g3: emit((f"buffer_store_dwordx4 {vr(GQ,4)}, v{T+2}, {WSR}, 0 offen sc1", ('Q', 0)))
        phi(e, ka, 16)
        for i in range(8): e(f"v_cvt_pk_bf16_f32 v{ka+i}, v{ka+2*i}, v{ka+2*i+1}")
        for i in range(8): e(f"v_cvt_pk_bf16_f32 v{va+i}, v{va+2*i}, v{va+2*i+1}")
        for r in range(4): e(f"v_mov_b32 v{ONES+r}, 0x3f803f80")
        kv = 112; z = 116
        for uu in range(2):
            e(f"{MF} {vr(kv,4)}, {vr(ka+4*uu,4)}, {vr(va+4*uu,4)}, {vr(kv,4) if uu else '0'}")
            e(f"{MF} {vr(z,4)}, {vr(ka+4*uu,4)}, {vr(ONES,4)}, {vr(z,4) if uu else '0'}")
        e(f"s_lshl_b32 s64, s{sRQ}, 11\nv_add_u32 v{T+1}, s64, v{V_LANE16}")
        e(f"ds_write_b128 v{T+1}, {vr(kv,4)} offset:1024\nds_write_b128 v{T+1}, {vr(z,4)} offset:2048")
        e(f"s_waitcnt vmcnt({vm.n_after(lambda tg: tg == ('KV', 0))}) lgkmcnt(0)\ns_barrier")
    o['_acc2'] = acc2
    o['_nkv1'] = vm.n_after(lambda tg: tg == ('KV', 1))
    if o.get('trace'):
        stamp(33)
        e(f"s_lshl_b32 s68, s2, 3\ns_add_u32 s68, s68, s3\ns_lshl_b32 s68, s68, 8\ns_add_u32 s68, s68, {WS_TS + MB}\nv_lshlrev_b32 v{V_PF}, 2, v0")
        e(f"buffer_store_dword v{V_PF2}, v{V_PF}, {WSR}, s68 offen")

def phase2(a, nm, grp, ts, o):
    e = a.e
    D = 8
    force_fb = o.get('force_fb', False)
    ldmod = o.get('ldmod', 'sc1')
    WSR = f"s[{S_WS}:{S_WS+3}]"; DBR = f"s[{S_DBG}:{S_DBG+3}]"
    def dma_ops(m0src): return [x[0] if isinstance(x, tuple) else x for x in kv_dma(m0src, None, ldmod)]
    if ts and o.get('mk', 0) == 0: ts_mark(a)
    def foff(i):
        st, k = divmod(i, 16)
        return (st * 8192 + k * 1024) if k < 8 else (16384 + st * 8192 + (k - 8) * 1024)
    def rd(i): return f"ds_read_b128 {vr(ring(i),4)}, v{V_RN if i >= 32 else V_RD} offset:{foff(i % 32)}"
    if grp and o.get('prio', 1): e("s_setprio 1")
    e(f"v_add_u32 v{V_RN}, s12, v{V_L16}\nv_add_u32 v{V_RD}, {SP0*SLOT}, v{V_L16}")
    for i in range(4):
        e(f"ds_read_b128 {vr(QR+4*i,4)}, v{V_RN} offset:{32768+i*1024}\nds_read_b128 {vr(QR+16+4*i,4)}, v{V_RN} offset:{32768+4096+i*1024}")
        e(rd(8 + i))
    for i in range(4, 8): e(rd(8 + i))
    e(f"s_lshr_b32 s12, s12, 6\nv_and_b32 v{V_T+1}, 15, v0\nv_lshl_add_u32 v{V_T+2}, v{V_T+1}, 2, s12")
    g3 = (o.get('fuse3') and o.get('g3', 1))
    for qt in range(2 if not g3 else 0): e(f"ds_read_b32 v{V_G+qt}, v{V_T+2} offset:{qt*64}")
    if grp:
        for r in range(8): e(f"ds_read_b128 {vr(64+4*r,4)}, v{V_L16} offset:{1024+r*1024}")
    e(f"v_mov_b32 v{V_NINF}, 0xff800000")
    if not grp:
        for r in range(4): e(f"v_mov_b32 v{ONES+r}, 0x3f803f80")
    nextaddr = [f"s_add_u32 s{sRD}, s{sRD}, {SLOT}", f"s_cmp_eq_u32 s{sRD}, {NSLOT*SLOT}\ns_cselect_b32 s{sRD}, 0, s{sRD}", f"v_add_u32 v{V_RN}, s{sRD}, v{V_L16}"]
    bar = (f"s_waitcnt vmcnt({8*(NSLOT-3)})\n" if grp else "") + "s_barrier"
    def bar_post():
        oo = [f"v_mov_b32 v{V_RD}, v{V_RN}"]
        if grp:
            oo.append(f"s_cmp_eq_u32 s{sNB}, s{sPUBN}\ns_cselect_b32 s{S_DBG+2}, {WS_SIZE}, 0\ns_add_u32 s15, s{sNB}, {NSLOT-2}\ns_cmp_gt_u32 s15, s{sJL}\ns_cselect_b32 s{S_DMA+2}, 0, s{S_DMA+2}")
            oo.append(f"buffer_store_dword v5, v4, {DBR}, 0 offen sc1")
            oo += dma_ops(f"s{sDW}")
            oo.append(f"s_add_u32 s{sDW}, s{sDW}, {SLOT}\ns_cmp_ge_u32 s{sDW}, {NSLOT*SLOT}\ns_cselect_b32 s{sDW}, s{sWOFF}, s{sDW}")
        oo.append(f"s_add_u32 s{sNB}, s{sNB}, 1")
        return oo
    def late_dma(j):
        if grp:
            e(f"s_add_u32 s14, s{sWOFF}, {((SP0+j)%NSLOT)*SLOT}")
            for x in dma_ops("s14"): e(x)
    qk0 = [x for _, x in qk_mfmas(0, lambda i: ring(8 + i))]
    for kt in range(2):
        for qt in range(2): qk0 = [x.replace(", " + vr(Cb(kt, qt), 4), ", 0") for x in qk0]
    for x in interleave(qk0, [(8 + i, rd(i)) for i in range(D)]): e(x)
    if grp:
        e(f"s_waitcnt vmcnt({o['_nkv1']}) lgkmcnt(8)\ns_barrier")
        late_dma(2)
        for r in range(1, 4):
            for i in range(8): e(f"v_add_f32 v{64+i}, v{64+i}, v{64+8*r+i}")
        e(f"s_lshl_b32 s64, s{sJ}, 11\ns_add_u32 s64, s64, s{sFB}\ns_sub_u32 s64, s64, {FLO}\ns_cmp_eq_u32 s{sRQ}, 0\ns_cselect_b32 s64, s64, {WS_SIZE}\nv_add_u32 v{V_T}, s64, v{V_L16}")
        for i in range(2): e(f"buffer_store_dwordx4 {vr(64+4*i,4)}, v{V_T}, {WSR}, 0 offen offset:{i*1024} sc1")
        qa = o['_acc2']('P', 0, 0)
        phi(e, qa, 16)
        for i in range(8): e(f"v_cvt_pk_bf16_f32 v{qa+i}, v{qa+2*i}, v{qa+2*i+1}")
        for uu in range(2): e(f"buffer_store_dwordx4 {vr(qa+4*uu,4)}, v{V_L16}, {WSR}, s49 offen offset:{uu*1024} sc1")
        e(f"s_add_u32 s{sDW}, s{sWOFF}, {SP0*SLOT}")
        e(f"s_mov_b32 s{S_DBG}, s{S_WS}\ns_mov_b32 s{S_DBG+1}, s{S_WS+1}\ns_mov_b32 s{S_DBG+2}, 0\ns_mov_b32 s{S_DBG+3}, 0x20000")
        e(f"s_lshl_b32 s64, s{sJ}, 2\ns_add_u32 s64, s64, 32\ns_add_u32 s64, s64, s{sFB}\ns_cmp_eq_u32 s{sRQ}, 0\ns_cselect_b32 s64, s64, {WS_SIZE}\nv_mov_b32 v4, s64\nv_mov_b32 v5, 1\ns_mov_b32 s{sPUBN}, 2")
        e(f"s_cmp_eq_u32 s{sT}, 0\ns_cbranch_scc0 L_{nm}_nomask0")
        for r in range(4):
            m = sr(sMASK + 2 * r, 2)
            e(f"v_cndmask_b32 v{SR+r}, v{SR+r}, v{V_NINF}, {m}\nv_cndmask_b32 v{SR+12+r}, v{SR+12+r}, v{V_NINF}, {m}\nv_mov_b32 v{SR+4+r}, v{V_NINF}")
        a.label(f"L_{nm}_nomask0")
    else:
        e("s_waitcnt lgkmcnt(8)\ns_barrier")
    def rowmax(dst, b, qt, acc=False):
        s = SR + b * 16 + qt * 8
        e(f"v_max3_f32 v{dst}, v{s}, v{s+1}, " + (f"v{dst}" if acc else f"v{s+1}"))
        for i in range(1, 4): e(f"v_max3_f32 v{dst}, v{s+2*i}, v{s+2*i+1}, v{dst}")
    def set_c():
        for qt in range(2):
            for kt in range(2):
                for r in range(4): e(f"v_sub_f32 v{Cb(kt,qt)+r}, 0, v{V_T+4+qt}")
    for qt in range(2): rowmax(V_T + 4 + qt, 0, qt)
    for qt in range(2): xgroup(e, "v_max_f32", V_T + 4 + qt, V_T + 6 + qt)
    late_dma(3)
    set_c()
    for i in range(16): e(f"v_sub_f32 v{SR+i}, v{SR+i}, v{V_T+4+i//8}")
    late_dma(4)
    if grp and o.get('prio', 1): e("s_setprio 0")
    ncb = [0]
    wtpoll = f"buffer_load_dword v241, v243, {WSR}, 0 offen sc1\nbuffer_load_dword v242, v243, {WSR}, 0 offen offset:1024 sc1"
    o['_wtpoll'] = wtpoll
    if grp: e(f"s_lshl_b32 s64, s{sRQ}, 8\ns_add_u32 s64, s64, {WS_DONE}\nv_lshl_add_u32 v243, v0, 2, s64\nv_mov_b32 v241, 0\nv_mov_b32 v242, 0")
    def cond_bar(between=(), vmn=None):
        ncb[0] += 1
        L = f"L_{nm}_cb{ncb[0]}"
        oo = [f"s_cmp_ge_u32 s{sNB}, s{sJL}\ns_cbranch_scc1 {L}"]
        if grp:
            oo.append(f"s_cmp_eq_u32 s{sNB}, 1\ns_cbranch_scc1 {L}")
            oo.append(f"s_add_u32 s15, s{sNB}, 1\ns_cmp_lg_u32 s15, s{sJL}\ns_cbranch_scc1 {L}n\ns_waitcnt vmcnt(0)\n{L}n:")
        oo.append(bar if vmn is None else f"s_waitcnt vmcnt({vmn})\ns_barrier")
        bp = bar_post()[1:-1]
        if grp and o.get('fuse3') and o.get('wt', 1):
            bp = bp[:2] + [f"s_cbranch_scc1 {L}d"] + bp[2:] + [f"s_branch {L}e\n{L}d:\ns_add_u32 s15, s{sNB}, 2\ns_cmp_lg_u32 s15, s{sJL}\ns_cbranch_scc1 {L}e\n{wtpoll}\n{L}e:"]
        elif grp: bp = bp[:2] + [f"s_cbranch_scc1 {L}d"] + bp[2:] + [f"{L}d:"]
        oo += bp
        if vmn is not None:
            oo = [x.replace(f"s_cbranch_scc1 {L}\n", f"s_cbranch_scc1 {L}s\n") if not x.endswith(L) else x + "s" for x in oo]
            oo.append(f"s_branch {L}\n{L}s:\ns_waitcnt vmcnt(0)")
        oo.append(f"{L}:")
        oo += list(between)
        oo += [bar_post()[0], bar_post()[-1]]
        return "\n".join(oo)
    def step(st, tailops=(), mode='loop'):
        mf = qk_mfmas(1 - st, lambda i: ring(st * 16 + i)) + [(8 + f, x) for f, x in pv_mfmas(1 - st, lambda i: ring(st * 16 + 8 + i))]
        main = []
        for m, (f, x) in enumerate(mf):
            if m % 8 == 0: x += " ; also " + ",".join(vr(ring(st*16+f+j), 4) for j in range(1, 4))
            main.append(x)
        main += sum_mfmas(1 - st)
        if mode == 'nobar':
            def zc(x):
                c, _, cm = x.partition(" ;")
                pp = c.split(", "); pp[3] = "0"
                return ", ".join(pp) + (" ;" + cm if cm else "")
            main = main[:16] + [zc(x) for x in main[16:]]
        exps, _, cvts = sm_ops(st)
        fill = [(2 * i, exps[i]) for i in range(16)] + [(4 * i + 3, cvts[i]) for i in range(8)]
        if st == 0:
            for i, x in enumerate(nextaddr): fill.append((3 + 8 * i, x))
        for k in range(16):
            tgt = st * 16 + k + D
            pos = 4 * (k // 2) + 1
            if tgt == 32:
                if mode == 'loop' and grp and o.get('lean', 1):
                    fill.append((pos - 2, bar))
                    bp = bar_post(); bp = [bp[0]] + bp[3:]
                    dp = iter(o.get('dpos', (18, 19, 22, 23, 26, 27, 30, 31)))
                    last = pos
                    for i, x in enumerate(bp):
                        if x.startswith("buffer_"): last = next(dp); fill.append((last, x))
                        elif "m0" in x: fill.append((last, x))
                        else: fill.append((pos + 1 if i == 0 else 32, x))
                elif mode == 'loop':
                    fill.append((pos - 2, bar))
                    for i, x in enumerate(bar_post()): fill.append((pos + 1 + i, x))
                elif mode == 'cond': fill.append((pos - 2, cond_bar()))
                else: fill.append((pos + 2, bar_post()[0])); fill.append((pos + 3, bar_post()[-1]))
            fill.append((pos, rd(tgt)))
        for i, x in enumerate(tailops): fill.append((33, x))
        fill = [(min(p, 33), x) for p, x in fill]
        fill.sort(key=lambda t: t[0])
        for x in interleave(main, fill): e(x)
    def step0_first():
        main = [x for _, x in qk_mfmas(1, ring)]
        exps, _, cvts = sm_ops(0)
        fill = [(i, exps[i]) for i in range(16)] + [(2 * i + 2, cvts[i]) for i in range(8)]
        for i, x in enumerate(nextaddr): fill.append((3 + 4 * i, x))
        for k in range(8): fill.append((8 * (k // 4) + 4 + k % 4, rd(16 + k)))
        fill.sort(key=lambda t: t[0])
        for x in interleave(main, fill): e(x)
    if ts and o.get('mk', 0) == 1: ts_mark(a)
    if grp:
        e(f"s_cmp_lt_u32 s{sREM}, 3\ns_cbranch_scc0 L_{nm}_big")
        for r in range(64): e(f"v_mov_b32 v{OR+r}, 0")
        for r in range(8): e(f"v_mov_b32 v{PR+8+r}, 0\nv_mov_b32 v{LS+r}, 0")
        e(f"s_branch L_{nm}_chk")
        a.label(f"L_{nm}_big")
    step0_first()
    if not grp and o.get('g1pf', 1) and o.get('wo0', None) is None:
        e(f"s_cmp_lt_u32 s{sRQ}, 2\ns_cselect_b32 s72, s78, s76\ns_cselect_b32 s73, s79, s77\ns_mov_b32 s74, 0x80000\ns_cselect_b32 s74, 0x400000, s74\ns_lshl_b32 s68, s2, 1\ns_and_b32 s69, s{sRQ}, 1\ns_add_u32 s68, s68, s69\ns_lshl_b32 s68, s68, 13")
        e(f"s_and_b32 s73, s73, 0xffff\ns_mov_b32 s75, 0x20000\nv_lshlrev_b32 v242, 7, v0\nv_add_u32 v242, s68, v242")
        e(f"buffer_load_dword v241, v242, s[72:75], 0 offen")
    step(1, [f"s_sub_u32 s{sREM}, s{sREM}, 2", f"s_cmp_lt_u32 s{sREM}, 3"], mode='nobar')
    if grp: e(f"s_cbranch_scc1 L_{nm}_chk")
    lean = grp and o.get('lean', 1)
    if lean: e("s_movk_i32 s66, 0x7fff")
    e(".p2align 6")
    a.label(f"L_{nm}_loop")
    step(0, [f"s_sub_u32 s{sREM}, s{sREM}, 2"])
    step(1, [f"s_cmp_ge_u32 s{sREM}, " + ("s66" if lean else "3")])
    e(f"s_cbranch_scc1 L_{nm}_loop")
    if lean:
        e(f"s_cmp_eq_u32 s66, 3\ns_cbranch_scc1 L_{nm}_chk\ns_mov_b32 s66, 3\ns_mov_b32 s{S_DBG+2}, {WS_SIZE}")
        e(f"buffer_store_dword v5, v4, {DBR}, 0 offen sc1\ns_cmp_ge_u32 s{sREM}, 3\ns_cbranch_scc1 L_{nm}_loop")
    a.label(f"L_{nm}_chk")
    e(f"s_cmp_eq_u32 s{sREM}, 0\ns_cbranch_scc1 L_{nm}_tail0")
    e(f"s_cmp_eq_u32 s{sREM}, 1\ns_cbranch_scc0 L_{nm}_chk1")
    mask_ops(e)
    a.label(f"L_{nm}_chk1")
    step(0)
    e(f"s_cmp_eq_u32 s{sREM}, 1\ns_cbranch_scc1 L_{nm}_tail1")
    mask_ops(e)
    step(1, mode='cond')
    def sm_pv(b, fr):
        main = [x for _, x in pv_mfmas(1 - b, fr)] + sum_mfmas(1 - b)
        exps, _, cvts = sm_ops(b)
        fill = [(i, exps[i]) for i in range(16)] + [(2 * i + 3, cvts[i]) for i in range(8)]
        fill.sort(key=lambda t: t[0])
        for x in interleave(main, fill): e(x)
    a.label(f"L_{nm}_tail0")
    for k in range(16): e(f"ds_read_b128 {vr(ring(k),4)}, v{V_RD} offset:{16384 + k*1024}")
    sm_pv(0, lambda i: ring(i))
    e(cond_bar())
    for x in [x for _, x in pv_mfmas(0, lambda i: ring(8 + i))] + sum_mfmas(0): e(x)
    e(f"s_branch L_{nm}_epi")
    a.label(f"L_{nm}_tail1")
    for k in range(8): e(f"ds_read_b128 {vr(ring(k),4)}, v{V_RD} offset:{24576 + k*1024}")
    sm_pv(1, lambda i: ring(i))
    e(cond_bar([f"ds_read_b128 {vr(ring(8+k),4)}, v{V_RN} offset:{16384 + k*1024}" for k in range(8)]))
    for x in [x for _, x in pv_mfmas(1, lambda i: ring(8 + i))] + sum_mfmas(1): e(x)
    def epilogue(check):
        if check:
            e(f"v_add_f32 v{V_T+7}, v{LS}, v{LS+4}")
            e(f"v_cmp_nle_f32 vcc, v{V_T+7}, v{V_T+3}")
            e(f"s_cmp_lg_u64 vcc, 0")
            if force_fb: e("s_cmp_eq_u32 s2, s2")
            e(f"s_cselect_b32 s{sFLAG}, 1, 0\ns_cbranch_scc1 L_{nm}_post")
        for qt in range(2):
            e(f"v_rcp_f32 v{V_T+4+qt}, v{LS+4*qt}")
            if not g3: e(f"v_sub_f32 v{V_T+6}, 1.0, v{V_G+qt}\nv_mul_f32 v{V_T+4+qt}, v{V_T+4+qt}, v{V_T+6}")
        e(f"s_lshr_b32 s4, s{sT}, 1\ns_mul_i32 s4, s4, {144*4096}\ns_lshl_b32 s5, s{sH}, 14\ns_add_u32 s4, s4, s5\ns_and_b32 s5, s{sT}, 1\ns_lshl_b32 s5, s5, 11\ns_add_u32 s4, s4, s5\ns_add_u32 s4, s4, {WS_CTX}")
        for t in range(4):
            for qt in range(2):
                oo = Ob(2 * t, qt)
                for i in range(8): e(f"v_mul_f32 v{oo+i}, v{V_T+4+qt}, v{oo+i}")
                for i in range(4): e(f"v_cvt_pk_bf16_f32 v{oo+i}, v{oo+2*i}, v{oo+2*i+1}")
                e(f"buffer_store_dwordx4 {vr(oo,4)}, v{V_L16}, {WSR}, s4 offen offset:{qt*1024} sc1")
            if t < 3: e("s_add_u32 s4, s4, 4096")
    a.label(f"L_{nm}_epi")
    if ts: ts_mid(a)
    e(f"v_mov_b32 v{V_T+3}, {f32hex(2.0**30)}\nv_mov_b32 v{V_RN}, 0")
    epilogue(True)
    a.label(f"L_{nm}_post")
    fl_load = f"buffer_load_dword v{V_RN}, v{V_T}, {WSR}, s{sFB} offen sc1"
    nomov = lambda x: x.replace(f"v_mov_b32 v{V_RD}, v{V_RN}\n", "")
    if grp:
        sv = VmTrack()
        for g3 in range(3):
            for i in range(8): sv.issue(('D', g3 - 3))
        nbar = [0]
        def sbar():
            k = nbar[0]; nbar[0] += 1
            e(nomov(cond_bar(vmn=sv.n_after(lambda tg: tg == ('D', k - 3)))))
            for i in range(9): sv.issue(('D', k))
        def V(x): e(x); sv.issue(('X', 0))
        KV = OR; WTR = RG; TT = SR
        e(f"v_lshlrev_b32 v{V_T}, 2, v0")
        wt0 = len(a.lines)
        e(f"s_cmp_ge_u32 s{sJ}, 4\ns_cbranch_scc1 L_{nm}_post1")
        a.label(f"L_{nm}_pd")
        e(f"s_cmp_ge_u32 s{sNB}, {o.get('wtd', 8)}\ns_cbranch_scc1 L_{nm}_pdd")
        e(nomov(cond_bar()))
        e(f"s_branch L_{nm}_pd")
        a.label(f"L_{nm}_pdd")
        e(f"s_lshr_b32 s6, s{sT}, 1\ns_lshl_b32 s6, s6, 6\ns_lshl_b32 s8, s{sH}, 1\ns_add_u32 s6, s6, s8\ns_and_b32 s8, s{sT}, 1\ns_add_u32 s6, s6, s8")
        e(f"s_lshl_b32 s8, s6, 13\ns_add_u32 s9, s8, 4096\ns_lshl_b32 s10, s6, 10")
        srd(a, 68, 78, 4096 * 1024); srd(a, 60, 76, 512 * 1024)
        for i in range(8):
            V(f"buffer_load_dwordx4 {vr(WTR+4*i,4)}, v{V_L16}, s[68:71], s{8+i//4} offen offset:{(i%4)*1024}")
            if i in (2, 5): sbar()
        V(f"buffer_load_dwordx4 {vr(WTR+32,4)}, v{V_L16}, s[60:63], s10 offen")
        e(f"v_lshlrev_b32 v{V_T}, 2, v0")
        V(fl_load)
        e(f"v_lshrrev_b32 v{TT}, 3, v0\nv_mul_u32_u24 v{TT}, {144*4096}, v{TT}\nv_and_b32 v{TT+1}, 7, v0\nv_lshl_add_u32 v{TT}, v{TT+1}, 4, v{TT}")
        for i in range(1, 4): e(f"v_xor_b32 v{TT+i}, {32*i}, v{TT}")
        e(f"s_lshl_b32 s9, s6, 4\ns_and_b32 s9, s9, 96\nv_xor_b32 v{TT+4}, s9, v{TT}")
        e(f"s_lshl_b32 s8, s6, 10\ns_add_u32 s8, s8, {WS_WT}\ns_lshl_b32 s9, s6, 7\ns_add_u32 s9, s9, {WS_WT + 128*4096}")
        sbar(); sbar()
        for i in range(8):
            if i in (3, 6): sbar()
            V(f"buffer_store_dwordx4 {vr(WTR+4*i,4)}, v{TT+i//2}, {WSR}, s8 offen offset:{i*128} sc1")
        V(f"buffer_store_dwordx4 {vr(WTR+32,4)}, v{TT+4}, {WSR}, s9 offen sc1")
        if o.get('fuse3') and not o.get('wt', 1): del a.lines[wt0:]
        e(f"s_lshl_b32 s4, s{sJ}, 2\ns_add_u32 s4, s4, s{sRQ}\ns_cmp_lg_u32 s4, {4*o.get('kvj', 1)}\ns_cbranch_scc1 L_{nm}_post1")
        chk2 = f"v_cmp_eq_u32 vcc, 1, v{V_RN}\ns_and_b32 s64, vcc_lo, 0xff00\ns_cmp_eq_u32 s64, 0xff00\ns_cbranch_scc1 L_{nm}_pgo"
        e(chk2)
        a.label(f"L_{nm}_pw")
        e(fl_load)
        e(nomov(cond_bar(vmn=16)))
        e(nomov(cond_bar(vmn=16)))
        e(chk2)
        e(f"s_cmp_lt_u32 s{sNB}, s{sJL}\ns_cbranch_scc1 L_{nm}_pw")
        e("s_mov_b32 s67, 0x20000")
        a.label(f"L_{nm}_spin2")
        e(f"s_sleep 8\n{fl_load}\n{chk2}")
        e(f"s_sub_u32 s67, s67, 1\ns_cmp_lg_u32 s67, 0\ns_cbranch_scc1 L_{nm}_spin2")
        a.label(f"L_{nm}_pgo")
        sv.tags = [('D', g3 - 3) for g3 in range(3) for i in range(8)]; nbar[0] = 0
        e(f"s_sub_u32 s4, s{sFB}, {FLO}")
        for i in range(16):
            V(f"buffer_load_dwordx4 {vr(KV+4*i,4)}, v{V_L16}, {WSR}, s4 offen offset:{(i%4)*1024} sc1")
            if i % 4 == 3 and i < 15: e("s_add_u32 s4, s4, 4096")
            if i == 7: sbar()
        sbar(); sbar()
        for r in range(1, 8):
            for i in range(4): e(f"v_pk_add_f32 {vr(KV+2*i,2)}, {vr(KV+2*i,2)}, {vr(KV+8*r+2*i,2)}")
        for i in range(4): e(f"v_cvt_pk_bf16_f32 v{KV+8+i}, v{KV+2*i}, v{KV+2*i+1}")
        e(f"s_lshl_b32 s4, s{sH}, 10\ns_add_u32 s4, s4, {WS_KVF}")
        V(f"buffer_store_dwordx4 {vr(KV+8,4)}, v{V_L16}, {WSR}, s4 offen sc1")
        a.label(f"L_{nm}_post1")
        if o.get('fuse3') and o.get('earlypub', 1):
            e(f"s_lshr_b32 s4, s{sT}, 1\ns_lshl_b32 s4, s4, 8\ns_lshl_b32 s5, s{sH}, 3\ns_add_u32 s4, s4, s5\ns_and_b32 s5, s{sT}, 1\ns_lshl_b32 s5, s5, 2\ns_add_u32 s4, s4, s5\ns_add_u32 s4, s4, {WS_DONE}\nv_mov_b32 v4, s4")
            e(f"s_add_u32 s{sPUBN}, s{sNB}, 2\ns_cmp_eq_u32 s{sFLAG}, 0\ns_cselect_b32 s{sPUBN}, s{sPUBN}, 0")
        if o.get('fuse3') and o.get('l2pf'):
            d0 = o['l2pf']
            e(f"s_cmp_ge_u32 s{sJ}, 4\ns_cbranch_scc1 L_{nm}_post2\ns_sub_u32 s67, s{sJL}, {d0}")
            a.label(f"L_{nm}_lw")
            e(f"s_cmp_ge_u32 s{sNB}, s67\ns_cbranch_scc1 L_{nm}_lgo")
            e(nomov(cond_bar()))
            e(f"s_branch L_{nm}_lw")
            a.label(f"L_{nm}_lgo")
            sv.tags = [('D', g3_ - 3) for g3_ in range(3) for i in range(8)]; nbar[0] = 0
            e(f"s_mov_b32 s4, {WS_DONE}")
            for i in range(2): V(f"buffer_load_dwordx4 {vr(KV+4*i,4)}, v{V_L16}, {WSR}, s4 offen offset:{i*1024} sc1")
            sbar(); sbar()
            for i in range(1, 8): e(f"v_and_b32 v{KV}, v{KV}, v{KV+i}")
            e(f"v_cmp_eq_u32 vcc, 1, v{KV}\ns_cmp_eq_u64 vcc, -1\ns_cbranch_scc0 L_{nm}_post2")
            e(f"s_lshr_b32 s4, s2, 3\ns_lshl_b32 s4, s4, 2\ns_add_u32 s4, s4, s{sRQ}\ns_mul_i32 s4, s4, 36864\ns_and_b32 s5, s2, 1\ns_mul_i32 s5, s5, {4*144*4096}\ns_add_u32 s4, s4, s5\ns_add_u32 s4, s4, {WS_WT}\nv_lshlrev_b32 v{KV+8}, 7, v0")
            for i in range(5):
                if i == 4: e(f"v_lshlrev_b32 v{KV+8}, 6, v0")
                V(f"buffer_load_dword v{KV+9}, v{KV+8}, {WSR}, s4 offen sc1")
                e("s_add_u32 s4, s4, 8192")
                if i % o.get('l2n', 2) == o.get('l2n', 2) - 1: sbar()
        a.label(f"L_{nm}_post2")
    e(f"s_cmp_ge_u32 s{sNB}, s{sJL}\ns_cbranch_scc1 L_{nm}_postdone")
    e(nomov(cond_bar()))
    e(f"s_branch L_{nm}_post{'2' if grp else ''}")
    a.label(f"L_{nm}_postdone")
    e(f"s_cmp_eq_u32 s{sFLAG}, 0\ns_cbranch_scc1 L_{nm}_nofb")
    def ld8(base, so0, so1):
        for i in range(8): e(f"buffer_load_dwordx4 {vr(ring(base+i),4)}, v{V_L16}, {WSR}, {so0 if i < 4 else so1} offen offset:{(i%4)*1024} sc1")
    for r in range(16): e(f"v_mov_b32 v{CB+r}, 0")
    e(f"v_mov_b32 v{V_T+4}, v{V_NINF}\nv_mov_b32 v{V_T+5}, v{V_NINF}")
    e(f"s_add_u32 s10, s7, {WS_KF}\ns_mov_b32 s{sREM}, s{sT}")
    a.label(f"L_{nm}_fb1")
    e("s_add_u32 s11, s10, 4096")
    ld8(0, "s10", "s11")
    e(f"s_cmp_eq_u32 s{sREM}, 0\ns_cbranch_scc0 L_{nm}_fb1n")
    mask_ops(e)
    a.label(f"L_{nm}_fb1n")
    for _, x in qk_mfmas(0, ring): e(x)
    for qt in range(2): rowmax(V_T + 4 + qt, 0, qt, acc=True)
    e(f"s_add_u32 s10, s10, 8192\ns_cmp_eq_u32 s{sREM}, 0\ns_cbranch_scc1 L_{nm}_fb1d\ns_sub_u32 s{sREM}, s{sREM}, 1\ns_branch L_{nm}_fb1")
    a.label(f"L_{nm}_fb1d")
    for qt in range(2): xgroup(e, "v_max_f32", V_T + 4 + qt, V_T + 6)
    set_c()
    for r in range(64): e(f"v_mov_b32 v{OR+r}, 0")
    for r in range(8): e(f"v_mov_b32 v{LS+r}, 0")
    e(f"s_add_u32 s10, s7, {WS_KF}\ns_add_u32 s12, s7, {WS_VF}\ns_mov_b32 s{sREM}, s{sT}")
    a.label(f"L_{nm}_fb2")
    e("s_add_u32 s11, s10, 4096\ns_add_u32 s13, s12, 4096")
    ld8(0, "s10", "s11"); ld8(8, "s12", "s13")
    e(f"s_cmp_eq_u32 s{sREM}, 0\ns_cbranch_scc0 L_{nm}_fb2n")
    mask_ops(e)
    a.label(f"L_{nm}_fb2n")
    for _, x in qk_mfmas(0, ring): e(x)
    exps, _, cvts = sm_ops(0)
    for x in exps + cvts: e(x)
    for x in [x for _, x in pv_mfmas(0, lambda i: ring(8 + i))] + sum_mfmas(0): e(x)
    e(f"s_add_u32 s10, s10, 8192\ns_add_u32 s12, s12, 8192\ns_cmp_eq_u32 s{sREM}, 0\ns_cbranch_scc1 L_{nm}_fb2d\ns_sub_u32 s{sREM}, s{sREM}, 1\ns_branch L_{nm}_fb2")
    a.label(f"L_{nm}_fb2d")
    epilogue(False)
    a.label(f"L_{nm}_nofb")
    if o.get('fuse3'): return
    if ts: ts_end(a, 0, S_WS, 3, vtmp=176)
    e("s_endpgm")

def phase3(a, nm, grp, ts, o):
    e = a.e
    deep = o.get('deep', 0)
    g3 = o.get('g3', 1)
    assert not g3 or o.get('wt', 1)
    PD = 5 if deep else 3; rot = o.get('rot', 0 if o.get('wt', 1) else 2); cmod = o.get('cmod', 'sc1')
    WSR = f"s[{S_WS}:{S_WS+3}]"
    S_O, S_A, S_B = 4, 8, 12
    ACC = 64; CF = 128; WFr = 208; PQ = 16; KVFr = 48; GG = 12; X = 192; TT = 240
    NS = 18; NL = 4; NC = 6 if deep else 4
    CFS = [128, 144, 160, 176, 192, 240]
    a0, aper = (11, 1) if deep else (o.get('a0', 8), o.get('aper', 2))
    srd(a, S_O, 100, 2048 * 1024); srd(a, S_A, 78, 4096 * 1024); srd(a, S_B, 76, 512 * 1024)
    xm = o.get('xmap', '8x4')
    if xm == '8x4':
        e("s_and_b32 s30, s2, 6\ns_lshl_b32 s30, s30, 2\ns_lshr_b32 s31, s2, 3\ns_and_b32 s32, s31, 7\ns_add_u32 s30, s30, s32\ns_lshr_b32 s31, s31, 3\ns_and_b32 s33, s2, 1\ns_lshl_b32 s33, s33, 2\ns_add_u32 s31, s31, s33")
    else:
        e("s_and_b32 s30, s2, 7\ns_lshr_b32 s31, s2, 3\ns_and_b32 s32, s31, 3\ns_lshl_b32 s30, s30, 2\ns_add_u32 s30, s30, s32\ns_lshr_b32 s31, s31, 2")
        if xm == '4x8n': e("s_mov_b32 s32, s31")
    e(f"s_lshl_b32 s28, s{sJ}, 2\ns_lshr_b32 s28, 0x24130241, s28\ns_and_b32 s28, s28, 7\ns_lshl_b32 s28, s28, 15")
    e(f"s_xor_b32 s33, s3, 4\ns_lshl_b32 s33, s33, 14\ns_add_u32 s33, s33, s28\ns_sub_u32 s29, s33, {NSLOT*SLOT}\ns_cmp_ge_u32 s33, {NSLOT*SLOT}\ns_cselect_b32 s33, s29, s33")
    e("v_lshrrev_b32 v3, 3, v0\nv_lshlrev_b32 v3, 10, v3")
    e("v_lshrrev_b32 v4, 4, v0\nv_lshlrev_b32 v4, 1, v4\nv_and_b32 v5, 7, v0\nv_xor_b32 v4, v4, v5\nv_lshlrev_b32 v4, 4, v4")
    e("v_add_u32 v4, v3, v4\nv_add_u32 v5, 7168, v4\nv_add_u32 v6, 14336, v4\nv_add_u32 v7, 21504, v4")
    wt = o.get('wt', 1)
    if wt: e(f"s_mul_i32 s34, s31, {144*4096}\ns_add_u32 s34, s34, {WS_WT}\ns_lshl_b32 s39, s3, 13\ns_add_u32 s35, s34, s39\ns_add_u32 s35, s35, {128*4096}\ns_lshl_b32 s39, s3, 16\ns_add_u32 s34, s34, s39")
    else: e("s_lshl_b32 s36, s31, 7\ns_lshl_b32 s34, s3, 19\ns_add_u32 s34, s34, s36\ns_lshl_b32 s35, s3, 16\ns_add_u32 s35, s35, s36")
    e(f"s_mul_i32 s37, s30, {144*4096}\ns_add_u32 s37, s37, {WS_CTX}\ns_lshl_b32 s39, s3, 16\ns_add_u32 s37, s37, s39")
    e(f"s_mul_i32 s48, s32, {rot}\ns_and_b32 s48, s48, 15\ns_mov_b32 s52, s48")
    vm = VmTrack()
    def loadW(idx):
        e(f"s_add_u32 m0, s33, {(idx % NL)*4096}")
        if idx < 16:
            e(f"s_lshl_b32 s49, s48, {12 if wt else 15}\ns_add_u32 s49, s49, s34\ns_add_u32 s48, s48, 1\ns_and_b32 s48, s48, 15")
            rs, so = S_A, "s49"
        else: rs, so = S_B, "s35"
        for i in range(4):
            if wt: e(f"buffer_load_dwordx4 v{V_L16}, {WSR}, {so} offen offset:{i*1024} {cmod} lds")
            else: e(f"buffer_load_dwordx4 v{4+i}, s[{rs}:{rs+3}], {so} offen offset:{i*1024} lds")
            vm.issue(('W', idx))
        if idx >= 16: e(f"s_add_u32 s35, s35, {4096 if wt else 32768}")
    def loadC(idx):
        if idx >= 16: return
        e(f"s_lshl_b32 s50, s52, 12\ns_add_u32 s50, s50, s37\ns_add_u32 s52, s52, 1\ns_and_b32 s52, s52, 15")
        for i in range(4):
            e(f"buffer_load_dwordx4 {vr(CFS[idx%NC]+i*4,4)}, v{V_L16}, {WSR}, s50 offen offset:{i*1024} {cmod}"); vm.issue(('C', idx))
    def setup2():
        e("v_lshrrev_b32 v8, 2, v0\nv_lshlrev_b32 v8, 7, v8")
        e("v_lshrrev_b32 v9, 3, v0\nv_and_b32 v9, 3, v9\nv_lshlrev_b32 v9, 5, v9")
        e("v_and_b32 v10, 3, v0\nv_lshlrev_b32 v10, 3, v10\nv_add3_u32 v8, v8, v9, v10\nv_add_u32 v8, s33, v8")
        e("v_xor_b32 v9, 32, v8\nv_xor_b32 v10, 64, v8\nv_xor_b32 v11, 96, v8")
        e(f"s_lshl_b32 s40, s30, 16\ns_lshl_b32 s41, s3, 13\ns_add_u32 s40, s40, s41\ns_add_u32 s40, s40, {WS_PQ3}\ns_add_u32 s41, s40, 4096")
        e(f"s_lshl_b32 s42, s3, 12\ns_add_u32 s42, s42, {WS_KVF}\ns_lshl_b32 s43, s30, 10\ns_add_u32 s43, s43, {WS_G3}\ns_mov_b32 s53, {f32hex(1e-6)}")
        if g3: e(f"s_lshl_b32 s43, s30, 8\ns_add_u32 s43, s43, {WS_G}\nv_and_b32 v7, 15, v0\nv_lshlrev_b32 v7, 2, v7")
    NR = 5 if deep else o.get('nr', 7)
    RR = [16, 32, 48, 208, 224] if deep else [16, 32, 48, 192, 208, 224, 240]
    def wreg(idx): return RR[idx] if idx < NR else WFr + ((idx - NR) % 2) * 16
    def trread(idx):
        e(f"s_waitcnt vmcnt({vm.n_after(lambda t: t == ('W', idx))})")
        for n in range(4):
            for hf in range(2):
                e(f"ds_read_b64_tr_b16 {vr(wreg(idx)+n*4+hf*2,2)}, v{8+n} offset:{(idx%NL)*4096+hf*2048}")
    def prephase():
        for idx in range(NL): loadW(idx)
        for idx in range(NR):
            trread(idx)
            e("s_waitcnt lgkmcnt(0)")
            loadW(idx + NL)
    e(f"s_lshr_b32 s54, s{sT}, 1\ns_lshl_b32 s54, s54, 8\ns_lshl_b32 s55, s{sH}, 3\ns_add_u32 s54, s54, s55\ns_and_b32 s55, s{sT}, 1\ns_lshl_b32 s55, s55, 2\ns_add_u32 s54, s54, s55\ns_add_u32 s54, s54, {WS_DONE}\nv_mov_b32 v2, 0\nv_mov_b32 v3, 1")
    setup2()
    if grp and o.get('earlypub', 1):
        e(f"s_sub_u32 s55, s{sPUBN}, 1\ns_sub_u32 s56, s{sJL}, 1\ns_cmp_lt_u32 s55, s56\ns_cselect_b32 s55, {WS_SIZE}, 0\nv_mov_b32 v2, s55")
    e("s_waitcnt vmcnt(0)")
    e(f"buffer_store_dword v3, v2, {WSR}, s54 offen sc1")
    if wt and grp:
        wchk = f"v_and_b32 v241, v241, v242\nv_cmp_eq_u32 vcc, 1, v241\ns_cmp_eq_u64 vcc, -1\ns_cbranch_scc1 L_{nm}_p3wok"
        e(wchk)
        e("s_mov_b32 s55, 0x40000")
        a.label(f"L_{nm}_p3w")
        e("s_sleep 8")
        e(o['_wtpoll'])
        e(wchk)
        e(f"s_sub_u32 s55, s55, 1\ns_cmp_lg_u32 s55, 0\ns_cbranch_scc1 L_{nm}_p3w")
        a.label(f"L_{nm}_p3wok")
    def pollflags():
        e(f"s_mov_b32 s55, 0x40000\nv_lshlrev_b32 v2, 2, v0\ns_lshl_b32 s54, s30, 8\ns_add_u32 s54, s54, {WS_DONE}\ns_mov_b32 s56, {WS_DONE + 256*(2*o.get('kvj', 1)+1)}")
        a.label(f"L_{nm}_p3spin")
        e(f"buffer_load_dword v3, v2, {WSR}, s54 offen sc1\nbuffer_load_dword v12, v2, {WSR}, s56 offen sc1")
        e(f"v_cmp_eq_u32 vcc, 1, v12\ns_and_b32 s57, vcc_lo, vcc_hi\ns_or_b32 s57, s57, 0x55555555\nv_cmp_eq_u32 vcc, 1, v3\ns_and_b32 s57, s57, vcc_lo\ns_and_b32 s57, s57, vcc_hi\ns_cmp_eq_u32 s57, -1\ns_cbranch_scc1 L_{nm}_p3go\ns_sleep {o.get('sleep3', 8)}")
        e(f"s_sub_u32 s55, s55, 1\ns_cmp_lg_u32 s55, 0\ns_cbranch_scc1 L_{nm}_p3spin")
        a.label(f"L_{nm}_p3go")
    if o.get('e2', 1):
        if grp:
            prephase()
            e("s_barrier")
            e(f"s_cmp_lg_u32 s{sRQ}, 0\ns_cbranch_scc1 L_{nm}_p3go")
            pollflags()
            e("s_barrier")
        else:
            e("s_barrier")
            prephase()
            e("s_barrier")
    else:
        if grp: prephase()
        e("s_barrier")
        if not grp: prephase()
        pollflags()
    if ts: ts_mark(a) if o.get('mk', 0) == 2 else None
    for idx in range(PD): loadC(idx)
    def loadA():
        for i in range(8): e(f"buffer_load_dwordx4 {vr(PQ+4*i,4)}, v{V_L16}, {WSR}, s{40+i//4} offen offset:{(i%4)*1024} {cmod}"); vm.issue(('A', 0))
        for i in range(4): e(f"buffer_load_dwordx4 {vr(KVFr+4*i,4)}, v{V_L16}, {WSR}, s42 offen offset:{i*1024} {cmod}"); vm.issue(('A', 0))
        if g3:
            for t in range(4): e(f"buffer_load_dword v{GG+t}, v7, {WSR}, s43 offen offset:{t*64} {cmod}"); vm.issue(('A', 0))
        else: e(f"buffer_load_dwordx4 {vr(GG,4)}, v{V_L16}, {WSR}, s43 offen {cmod}"); vm.issue(('A', 0))
    def head(hh):
        p = PQ + 8 * hh
        for t in range(4):
            e(f"v_mfma_f32_16x16x16_bf16 {vr(X+4*t,4)}, {vr(KVFr+4*hh,2)}, {vr(p+2*t,2)}, 0")
            e(f"v_mfma_f32_16x16x16_bf16 {vr(TT+4*t,4)}, {vr(KVFr+4*hh+2,2)}, {vr(p+2*t,2)}, 0")
        for t in range(4): e(f"v_add_f32 v{TT+4*t}, s53, v{TT+4*t}")
        for t in range(4): e(f"v_rcp_f32 v{TT+4*t}, v{TT+4*t}")
        for t in range(4): e(f"v_mul_f32 v{TT+4*t}, v{GG+t}, v{TT+4*t}")
        for t in range(4):
            for i in range(4): e(f"v_mul_f32 v{X+4*t+i}, v{TT+4*t}, v{X+4*t+i}")
        if hh % 2 == 0:
            for i in range(8): e(f"v_cvt_pk_bf16_f32 v{p+i}, v{X+2*i}, v{X+2*i+1}")
        else:
            q = p - 8
            for t in (3, 2, 1): e(f"v_mov_b32 v{q+4*t}, v{q+2*t}\nv_mov_b32 v{q+4*t+1}, v{q+2*t+1}")
            for t in range(4): e(f"v_cvt_pk_bf16_f32 v{q+4*t+2}, v{X+4*t}, v{X+4*t+1}\nv_cvt_pk_bf16_f32 v{q+4*t+3}, v{X+4*t+2}, v{X+4*t+3}")
    for idx in range(NS):
        wb = wreg(idx)
        if idx >= NR:
            trread(idx)
            if idx > NR and idx - 1 + NL < NS: loadW(idx - 1 + NL)
        loadC(idx + PD)
        if idx == 3: loadA()
        cb = CFS[idx % NC] if idx < 16 else PQ + (idx - 16) * 16
        if idx == 16 and g3:
            for t in range(4): e(f"v_sub_f32 v{X+2*t}, 1.0, v{GG+t}")
            for n in range(4):
                for i in range(4):
                    d = ACC + (n * 4 + i) * 4
                    for hh in range(2): e(f"v_pk_mul_f32 {vr(d+2*hh,2)}, {vr(d+2*hh,2)}, {vr(X+2*i,2)} op_sel_hi:[1,0]")
        for n in range(4):
            for i in range(4):
                d = ACC + (n * 4 + i) * 4
                e(f"{MF} {vr(d,4)}, {vr(wb+n*4,4)}, {vr(cb+i*4,4)}, {vr(d,4) if idx else '0'}")
        if idx >= a0 and (idx - a0) % aper == 0 and (idx - a0) // aper < 4: head((idx - a0) // aper)
    e(f"v_add_u32 v12, s33, v{V_L16}")
    for t in range(16): e(f"ds_write_b128 v12, {vr(ACC+t*4,4)} offset:{t*1024}")
    e("s_lshr_b32 s41, s3, 1\ns_and_b32 s42, s3, 1")
    e("v_lshrrev_b32 v13, 5, v0\nv_lshlrev_b32 v13, 12, v13")
    e("v_and_b32 v14, 15, v0\nv_lshlrev_b32 v14, 4, v14")
    e("v_and_b32 v15, 16, v0\nv_lshlrev_b32 v15, 5, v15\nv_add3_u32 v13, v13, v14, v15")
    e("s_lshl_b32 s43, s42, 13\ns_lshl_b32 s40, s41, 10\ns_add_u32 s43, s43, s40\nv_add_u32 v13, s43, v13")
    for u in range(4):
        e(f"v_add_u32 v{24+u}, s28, v13")
        if u < 3: e(f"s_add_u32 s28, s28, {SLOT}\ns_cmp_eq_u32 s28, {NSLOT*SLOT}\ns_cselect_b32 s28, 0, s28")
    e("v_and_b32 v20, 15, v0\nv_lshlrev_b32 v20, 10, v20\nv_lshrrev_b32 v21, 4, v0\nv_lshlrev_b32 v21, 4, v21\nv_add_u32 v20, v20, v21")
    e("s_lshl_b32 s43, s30, 16\ns_lshl_b32 s40, s41, 14\ns_add_u32 s43, s43, s40\ns_lshl_b32 s40, s31, 7\ns_add_u32 s43, s43, s40\ns_lshl_b32 s40, s42, 6\ns_add_u32 s43, s43, s40")
    e("s_waitcnt lgkmcnt(0)\ns_barrier")
    for u in range(8):
        for ee in range(2):
            e(f"ds_read_b128 {vr(128+(u*2+ee)*4,4)}, v{24+u//2} offset:{(u%2)*16384+ee*256}")
    for u in range(1, 8):
        for j in range(8): e(f"v_add_f32 v{128+j}, v{128+j}, v{128+u*8+j}")
    for j in range(4): e(f"v_cvt_pk_bf16_f32 v{16+j}, v{128+2*j}, v{129+2*j}")
    e(f"buffer_store_dwordx4 v[16:19], v20, s[{S_O}:{S_O+3}], s43 offen")
    if o.get('diag_until'):
        if 'diag_wg' in o: e(f"s_cmp_lg_u32 s2, {o['diag_wg']}\ns_cbranch_scc1 L_{o['_name']}_end")
        a.label(f"L_{nm}_dg")
        e(f"s_sleep 4\ns_memrealtime s[82:83]\ns_waitcnt lgkmcnt(0)\ns_sub_u32 s82, s82, s80\ns_cmp_lt_u32 s82, {o['diag_until']*100}\ns_cbranch_scc1 L_{nm}_dg")
    if ts: ts_end(a, 0, S_WS, 3, vtmp=176)
    e("s_endpgm")
```
